```python
import torch

def _softmax(x, axis=-1):
    return torch.softmax(x, dim=axis)
def _gelu(x):
    return torch.nn.functional.gelu(x, approximate="tanh")
def _silu(x):
    return torch.nn.functional.silu(x)
def _sigmoid(x):
    return torch.sigmoid(x)
def _layernorm(x, axis=-1, eps=1e-5):
    m = x.mean(dim=axis, keepdim=True)
    v = x.var(dim=axis, keepdim=True, unbiased=False)
    return (x - m) / torch.sqrt(v + eps)
def _scatter_add(tgt, idx, src, axis=0):
    return tgt.clone().index_add_(axis, idx, src)
def _segment_sum(src, seg, n):
    out = torch.zeros((n,) + src.shape[1:], dtype=src.dtype)
    return out.index_add_(0, seg, src)
def _pad(x, pw):
    flat = tuple(v for pair in reversed(pw) for v in pair)
    return torch.nn.functional.pad(x, flat)

kernel_name = 'gated_mix__ssm_conv_s4__linear_attn_block__prompt'

def setup_inputs():

    _w = (lambda a: (lambda t: t.to(torch.bfloat16) if t.is_floating_point() else t)(torch.as_tensor(a)))
    def _A_setup():
        B, L, D, N = 1, 2048, 640, 192
        A_re = -(lambda _x: torch.exp(torch.as_tensor(_x)))((lambda *s: torch.randn(*s, dtype=torch.bfloat16) * 6.4)(D, N))
        A_im = torch.pi * (lambda *s: torch.randn(*s, dtype=torch.bfloat16) * 0.05)(D, N)
        B_re = (lambda *s: torch.randn(*s, dtype=torch.bfloat16) * 0.1)(D, N)
        B_im = (lambda *s: torch.randn(*s, dtype=torch.bfloat16) * 0.1)(D, N)
        C_re = (lambda *s: torch.randn(*s, dtype=torch.bfloat16) * 0.1)(D, N)
        C_im = (lambda *s: torch.randn(*s, dtype=torch.bfloat16) * 0.1)(D, N)
        log_dt = (lambda *s: torch.randn(*s, dtype=torch.bfloat16) * 0.05)(D) * 0.5 - 4.0
        Dskip = (lambda *s: torch.randn(*s, dtype=torch.bfloat16) * 0.05)(D)
        return {
            "u": _w((lambda *s: torch.randn(*s, dtype=torch.bfloat16) * 0.05)(B, L, D)),
            "A_re": _w(A_re),
            "A_im": _w(A_im),
            "B_re": _w(B_re),
            "B_im": _w(B_im),
            "C_re": _w(C_re),
            "C_im": _w(C_im),
            "log_dt": _w(log_dt),
            "Dskip": _w(Dskip),
        }
    _A_in = _A_setup()

    def _B_setup():
        B, S, D = 1, 2048, 640
        return {
            "x": _w((lambda *s: torch.randn(*s, dtype=torch.bfloat16) * 0.05)(B, S, D)),
            "wqkv": _w((lambda *s: torch.randn(*s, dtype=torch.bfloat16) * 0.4)(D, 3 * D)),
            "wo": _w((lambda *s: torch.randn(*s, dtype=torch.bfloat16) * 0.05)(D, D)),
        }
    _B_in = _B_setup()

    return {
        "A_u": _A_in["u"],
        "A_A_re": _A_in["A_re"],
        "A_A_im": _A_in["A_im"],
        "A_B_re": _A_in["B_re"],
        "A_B_im": _A_in["B_im"],
        "A_C_re": _A_in["C_re"],
        "A_C_im": _A_in["C_im"],
        "A_log_dt": _A_in["log_dt"],
        "A_Dskip": _A_in["Dskip"],
        "B_x": _B_in["x"],
        "B_wqkv": _B_in["wqkv"],
        "B_wo": _B_in["wo"],
        "gate_w": _w((lambda *s: torch.randn(*s, dtype=torch.bfloat16) * 0.05)(640) * 16.0),
    }

def reference(A_u, A_A_re, A_A_im, A_B_re, A_B_im, A_C_re, A_C_im, A_log_dt, A_Dskip, B_x, B_wqkv, B_wo, gate_w):
    def _A_ref(u, A_re, A_im, B_re, B_im, C_re, C_im, log_dt, Dskip):
        Bsz, L, D = u.shape
        dt = torch.exp(log_dt)[:, None]
        A = A_re + 1j * A_im
        Bc = B_re + 1j * B_im
        Cc = C_re + 1j * C_im
        logdA = dt * A
        dB = dt * Bc
        l = (lambda x, dt: x.to(dt))(torch.arange(L), A_re.dtype)
        P = torch.exp(logdA[:, :, None] * l[None, None, :])
        K = torch.einsum("dn,dnl,dn->dl", Cc, P, dB).real
        L2 = 2 * L
        Kp = _pad(K, ((0, 0), (0, L)))
        up = (lambda x, *d: x.permute(*d))(u, 0, 2, 1)
        up = _pad(up, ((0, 0), (0, 0), (0, L)))
        Kf = (lambda x, axes=(-2,-1): torch.fft.rfft2(x.float(), dim=axes))(Kp[:, None, :], axes=(-2, -1))
        Uf = (lambda x, axes=(-2,-1): torch.fft.rfft2(x.float(), dim=axes))(up[:, :, None, :], axes=(-2, -1))
        Yf = Uf * Kf[None, :, :, :]
        y = (lambda x, s, axes=(-2,-1): torch.fft.irfft2(x, s=s, dim=axes).to(torch.bfloat16))(Yf, (1, L2), axes=(-2, -1))[:, :, 0, :L]
        y = (lambda x, *d: x.permute(*d))(y, 0, 2, 1) + u * Dskip[None, None, :]
        return y

    def _B_ref(x, wqkv, wo):
        B, S, D = x.shape
        H = 32; Dh = D // H
        qkv = (lambda x, *d: x.permute(*d))((x @ wqkv).reshape(B, S, 3, H, Dh), 2, 0, 3, 1, 4)
        q, k, v = qkv[0], qkv[1], qkv[2]
        phi = lambda t: torch.where(t > 0, t + 1, torch.exp(t)) + 1e-6
        pq, pk = phi(q), phi(k)
        kv = torch.einsum("bhsd,bhse->bhde", pk, v)
        z = torch.einsum("bhsd->bhd", pk)
        num = torch.einsum("bhqd,bhde->bhqe", pq, kv)
        den = torch.einsum("bhqd,bhd->bhq", pq, z)[..., None] + 1e-6
        o = num / den
        return (lambda x, *d: x.permute(*d))(o, 0, 2, 1, 3).reshape(B, S, D) @ wo

    x = A_u
    g = _sigmoid((x * gate_w).sum(-1, keepdims=True))
    a = _A_ref(x, A_A_re, A_A_im, A_B_re, A_B_im, A_C_re, A_C_im, A_log_dt, A_Dskip)
    b = _B_ref(x, B_wqkv, B_wo)
    return g * a + (1 - g) * b
```

```python
import re
TRANS = ("v_exp_f32","v_log_f32","v_rcp_f32","v_rsq_f32","v_sqrt_f32","v_sin_f32","v_cos_f32","v_rcp_iflag_f32")
def v(a, n=1):
    return f"v{a}" if n == 1 else f"v[{a}:{a+n-1}]"
def s(a, n=1):
    return f"s{a}" if n == 1 else f"s[{a}:{a+n-1}]"
def a_(a, n=1):
    return f"a{a}" if n == 1 else f"a[{a}:{a+n-1}]"

_reg = re.compile(r"^-?\|?(?:abs\()?-?([vsa])(?:(\d+)|\[(\d+):(\d+)\])\)?\|?$")
def regs(op):
    op = op.strip()
    if op in ("vcc", "vcc_lo", "vcc_hi"): return {("s", 106), ("s", 107)}
    if op in ("exec", "exec_lo", "exec_hi"): return {("s", 126), ("s", 127)}
    if op == "m0": return {("s", 124)}
    m = _reg.match(op)
    if not m: return set()
    k = m.group(1)
    if m.group(2) is not None: return {(k, int(m.group(2)))}
    return {(k, i) for i in range(int(m.group(3)), int(m.group(4)) + 1)}

class Ins:
    def __init__(self, text):
        self.text = text
        t = text.split(";")[0].strip()
        self.op = t.split()[0] if t else ""
        rest = t[len(self.op):].strip()
        ops, depth, cur = [], 0, ""
        for ch in rest:
            if ch in "[(": depth += 1
            if ch in "])": depth -= 1
            if ch == "," and depth == 0: ops.append(cur.strip()); cur = ""
            else: cur += ch
        if cur.strip(): ops.append(cur.strip())
        self.mods = ""
        if ops:
            parts = ops[-1].split(None, 1)
            ops[-1] = parts[0]
            self.mods = parts[1] if len(parts) > 1 else ""
        self.ops = ops
        op = self.op
        self.label = op.endswith(":") or op.startswith(".") or op == ""
        self.mfma = op.startswith("v_mfma")
        self.valu = op.startswith("v_") and not self.mfma
        self.trans = op.replace("_e32","").replace("_e64","") in TRANS
        self.ds = op.startswith("ds_")
        self.vmem = op.startswith(("buffer_", "global_", "flat_"))
        self.salu = op.startswith("s_")
        self.w, self.r = set(), set()
        R = [regs(o) for o in ops]
        self.passes = 0
        if self.mfma:
            self.passes = 8 if "32x32x16" in op else 4
            self.D, self.A, self.B, self.C = R[0], R[1], R[2], R[3]
            self.w = set(R[0]); self.r = R[1] | R[2] | R[3]
        elif self.valu:
            nd = 1
            if op.startswith(("v_add_co", "v_sub_co", "v_addc_co", "v_subb_co", "v_div_scale", "v_mad_u64")): nd = 2
            if op.startswith("v_permlane") and "swap" in op:
                self.w = R[0] | R[1]; self.r = R[0] | R[1]
            else:
                for x in R[:nd]: self.w |= x
                for x in R[nd:]: self.r |= x
                if op.startswith(("v_fmac", "v_dot2c", "v_pk_fmac", "v_writelane")) or "dpp" in op or "row_" in self.mods or "wave_" in self.mods or "quad_perm" in self.mods:
                    self.r |= R[0]
                if op.startswith("v_cmpx"): self.w |= regs("exec")
        elif self.ds:
            if op.startswith(("ds_read", "ds_bpermute", "ds_permute", "ds_swizzle")) or "_rtn" in op:
                self.w = set(R[0])
                for x in R[1:]: self.r |= x
            else:
                for x in R: self.r |= x
            if "addtid" in op: self.r |= regs("m0")
        elif self.vmem:
            lds = " lds" in (" " + self.mods) or "_lds_" in op
            self.ldsdma = lds
            if lds:
                for x in R: self.r |= x
                self.r |= regs("m0")
            elif "load" in op or ("atomic" in op and "sc0" in self.mods and op.startswith("global")):
                self.w = set(R[0])
                for x in R[1:]: self.r |= x
            else:
                for x in R: self.r |= x
                if "atomic" in op and "sc0" in self.mods: self.w = set(R[0])
            self.widestore = ("store" in op) and ("x3" in op or "x4" in op)
            if self.widestore:
                self.sdata = R[0] if op.startswith("buffer") else R[1]
        elif self.salu:
            if op.startswith(("s_cmp", "s_cbranch", "s_branch", "s_waitcnt", "s_barrier", "s_nop", "s_endpgm", "s_setprio", "s_sleep", "s_bitcmp")):
                for x in R: self.r |= x
            else:
                if R: self.w = set(R[0])
                for x in R[1:]: self.r |= x
                if "saveexec" in op: self.w |= regs("exec")
        self.dpp = self.valu and ("dpp" in op or "row_" in self.mods or "wave_" in self.mods or "quad_perm" in self.mods)
    def states(self):
        if self.label: return 0
        if self.op == "s_nop": return int(self.ops[0], 0) + 1
        return 1

def vonly(S): return {x for x in S if x[0] in "va"}
def sonly(S): return {x for x in S if x[0] == "s"}

def need(p, c):
    n = 0
    if p.valu:
        wv, ws = vonly(p.w), sonly(p.w)
        if c.mfma and wv & c.r: n = max(n, 2)
        if c.mfma and ws & regs("exec"): n = max(n, 4)
        if p.trans and c.valu and not c.trans and wv & (c.r | c.w): n = max(n, 1)
        if p.trans and c.valu and c.trans and wv & c.r: n = max(n, 1)
        if c.valu and ws & c.r: n = max(n, 4 if c.op.startswith(("v_readlane", "v_writelane", "v_div_fmas")) else 2)
        if c.vmem and ws & c.r: n = max(n, 5)
        if c.salu and ws & c.r: n = max(n, 1)
        if c.op.startswith("s_cbranch_vcc") and ws & regs("vcc"): n = max(n, 5)
        if c.valu and c.op.startswith(("v_readlane", "v_readfirstlane")) and wv & c.r: n = max(n, 1)
        if c.valu and c.op.startswith("v_permlane") and wv & c.r: n = max(n, 2)
        if c.dpp and wv & c.r: n = max(n, 2)
        if ("sdwa" in p.op or "dst_sel" in p.mods) and c.valu and wv & (c.r | c.w): n = max(n, 1)
    if p.op.startswith("v_dot") and (c.valu or c.mfma or c.vmem or c.ds) and vonly(p.w) & (c.r | c.w) and c.op != p.op: n = max(n, 3)
    if p.mfma:
        big = p.passes + 4
        if c.mfma:
            if p.D & c.C and not (p.D == c.C and p.passes == c.passes): n = max(n, p.passes + 2)
            if p.D & (c.A | c.B): n = max(n, big)
            if p.D & c.D and not (p.D & c.C): n = max(n, p.passes + 2)
        elif c.valu or c.ds or c.vmem:
            if p.D & (c.r | c.w): n = max(n, big)
        if c.valu and p.C & c.w: n = max(n, p.passes - 1)
    if p.salu and regs("m0") & p.w and regs("m0") & c.r and (c.ds or c.vmem): n = max(n, 1)
    if p.vmem and p.widestore and p.sdata & c.w: n = max(n, 2)
    if p.ds and p.op.startswith("ds_write") and ("b128" in p.op or "b96" in p.op) and c.valu and vonly(p.r) & c.w: n = max(n, 0)
    return n

class Asm:
    def __init__(self):
        self.lines = []
    def __call__(self, text):
        for l in text.split("\n"):
            l = l.strip()
            if l: self.lines.append(l)
    def label(self, name): self.lines.append(name + ":")
    def pad(self, verbose=False):
        out = []
        ins_list = [Ins(l) for l in self.lines]
        nins = 0
        for ins in ins_list:
            if not ins.label:
                dist, req = 0, 0
                for p in reversed(out):
                    if dist > 20: break
                    if p.op in ("s_branch", "s_endpgm"): break
                    if not p.label:
                        req = max(req, need(p, ins) - dist)
                    dist += p.states()
                while req > 0:
                    k = min(req, 16)
                    out.append(Ins(f"s_nop {k-1}")); req -= k; nins += 1
            out.append(ins)
        lab = {i.op[:-1]: n for n, i in enumerate(out) if i.op.endswith(":")}
        for n, i in enumerate(out):
            if i.op.startswith(("s_cbranch", "s_branch")) and i.ops[0] in lab:
                t = lab[i.ops[0]]
                d2 = 0
                for c in out[t:t+40]:
                    if d2 > 20: break
                    if not c.label:
                        dist = d2
                        for p in reversed(out[max(0,n-40):n+1]):
                            if dist > 20: break
                            if not p.label and p is not i and need(p, c) > dist:
                                raise RuntimeError(f"hazard across branch {i.text}: {p.text} -> {c.text} dist {dist}")
                            dist += p.states()
                    d2 += c.states()
        self.lines = [i.text for i in out]
        return nins
    def text(self):
        return "\n".join(("" if (l.endswith(":") or l.startswith(".")) else "    ") + l for l in self.lines) + "\n"
```

```python
import sys, struct
from asmlib import *

NAME = "gated_mix__ssm_conv_s4__linear_attn_block__prompt"
def f2u(x): return struct.unpack("<I", struct.pack("<f", x))[0]
LOG2E = 1.4426950408889634
INV2PI = 0.15915494309189535

WS_AT = 0
WS_OF = 0x300000
WS_G  = 0x600000
WS_KV = 0x610000

S_U, S_ARE, S_AIM, S_BRE, S_BIM, S_CRE, S_CIM, S_LDT = 8, 10, 12, 14, 16, 18, 20, 22
S_DSK, S_BX, S_WQKV, S_WO, S_GW, S_OUT, S_DBG, S_WS = 24, 26, 28, 30, 32, 34, 36, 38

def prologue(A):
    A("s_load_dwordx16 s[8:23], s[0:1], 0")
    A("s_load_dwordx16 s[24:39], s[0:1], 64")

A_CS = 4160
A_U = 4 * A_CS + 16
A_CH = A_U + 512 + 4096
A_LDS = 4 * A_CH
ROWS = [0,1,2,3,4,5,6,7,256,258,260,262,512,516,768,772,1024,1280,1536,1792,2048]
SROW = 272

def block_A(A, sgid):
    sW, sD, sT, sBase, sCnt, sT2 = 40, 41, 42, 43, 44, 45
    sSelLo, sSelHi = 46, 47
    vL = 1
    vU = 16
    vP = 32
    vDer = 48
    vG = 60
    vAA, vBA, vOA = 70, 71, 72
    vFX, vTW1, vTW2, vTW3, vTW0 = 73, 74, 75, 76, 77
    vDsk = 78
    vUW = 79
    vZ, vW, vW2, vZZ = 80, 82, 84, 86
    vS = 88
    vAcc = 112
    vFr = 128
    A(f"v_and_b32 v{vL}, 63, v0")
    A(f"v_lshrrev_b32 v2, 6, v0")
    A(f"v_readfirstlane_b32 s{sW}, v2")
    A(f"s_lshl_b32 s{sD}, s{sgid}, 2")
    A(f"s_add_u32 s{sD}, s{sD}, s{sW}")
    A(f"s_mul_i32 s{sT}, s{sD}, 384")
    A(f"v_lshl_add_u32 v2, v{vL}, 2, s{sT}")
    A(f"v_lshl_add_u32 v3, v{vL}, 1, s{sT}")
    A(f"s_lshl_b32 s{sT}, s{sD}, 1")
    A(f"v_mov_b32 v4, s{sT}")
    A(f"s_movk_i32 s{sT}, 10240")
    A(f"v_mul_lo_u32 v5, v0, s{sT}")
    A(f"s_lshl_b32 s{sT}, s{sgid}, 3")
    A(f"v_add_u32 v5, s{sT}, v5")
    A(f"v_add_u32 v6, 5120, v5")
    A("s_waitcnt lgkmcnt(0)")
    for i, sp in enumerate((S_ARE, S_AIM, S_BRE, S_BIM, S_CRE, S_CIM)):
        A(f"global_load_dword v{vP+i}, v2, {s(sp,2)}")
        A(f"global_load_ushort v{vP+6+i}, v3, {s(sp,2)} offset:256")
    A(f"global_load_ushort v{vP+12}, v4, {s(S_LDT,2)}")
    A(f"global_load_ushort v{vP+13}, v4, {s(S_DSK,2)}")
    for i in range(8):
        A(f"global_load_dwordx2 {v(vU+2*i,2)}, v{5 if i<4 else 6}, {s(S_U,2)} offset:{1280*(i%4) if (i%4)<3 else 3840}")
    A(f"s_mul_i32 s{sBase}, s{sW}, {A_CH}")
    A(f"s_mov_b32 s{sSelLo}, 0x05040100")
    A(f"s_mov_b32 s{sSelHi}, 0x07060302")
    A(f"v_sub_u32 v2, 63, v{vL}")
    A(f"v_lshlrev_b32 v2, 1, v2")
    A(f"v_lshl_add_u32 v{vG}, v2, 2, s{sBase}")
    for beta in (1, 2, 3):
        for e in range(3):
            r = vG + 1 + 3*(beta-1) + e
            A(f"v_add_u32 v3, {e}, v2")
            A(f"v_bfe_u32 v4, v3, {beta}, 1")
            A(f"v_add3_u32 v3, v3, v4, {(1<<(beta-1))-1}")
            A(f"v_lshrrev_b32 v3, {beta}, v3")
            A(f"v_lshl_add_u32 v{r}, v3, 2, s{sBase}")
    A(f"v_and_b32 v2, 15, v{vL}")
    A(f"v_lshrrev_b32 v3, 4, v{vL}")
    A(f"v_sub_u32 v4, 0, v2")
    A(f"v_and_b32 v4, 3, v4")
    A(f"v_mul_u32_u24 v5, {A_CS}, v4")
    A(f"v_add_u32 v6, v2, v4")
    A(f"v_sub_u32 v6, 16, v6")
    A(f"v_lshl_add_u32 v6, v3, 3, v6")
    A(f"v_lshl_add_u32 v5, v6, 1, v5")
    A(f"v_add3_u32 v{vAA}, v5, s{sBase}, 16")
    A(f"v_lshlrev_b32 v5, 5, v2")
    A(f"v_lshl_add_u32 v6, v3, 4, v5")
    A(f"s_add_u32 s{sT}, s{sBase}, {A_U+32}")
    A(f"v_add_u32 v{vBA}, s{sT}, v6")
    A(f"v_lshl_add_u32 v6, v3, 3, v5")
    A(f"s_lshl_b32 s{sT}, s{sD}, 12")
    A(f"v_add_u32 v{vOA}, s{sT}, v6")
    A(f"v_and_b32 v2, 31, v{vL}")
    A(f"v_lshrrev_b32 v3, 5, v{vL}")
    A(f"v_mul_u32_u24 v4, {SROW}, v2")
    A(f"v_lshl_add_u32 v4, v3, 4, v4")
    A(f"v_add_u32 v{vFX}, s{sBase}, v4")
    A(f"v_lshlrev_b32 v4, 5, v2")
    A(f"v_lshl_add_u32 v4, v3, 4, v4")
    A(f"v_add_u32 v{vTW0}, s{sBase}, v4")
    A(f"v_cmp_eq_u32 vcc, 0, v3")
    A(f"v_lshlrev_b32 v4, 4, v2")
    A(f"v_lshlrev_b32 v5, 3, v2")
    A(f"v_add_u32 v6, 1024, v4")
    A(f"v_add_u32 v7, 1536, v5")
    A(f"v_cndmask_b32 v6, v7, v6, vcc")
    A(f"v_add_u32 v{vTW1}, s{sBase}, v6")
    A(f"v_add_u32 v6, 1032, v4")
    A(f"v_add_u32 v7, 1792, v5")
    A(f"v_cndmask_b32 v6, v7, v6, vcc")
    A(f"v_add_u32 v{vTW2}, s{sBase}, v6")
    A(f"v_lshlrev_b32 v4, 2, v2")
    A(f"v_lshl_add_u32 v4, v3, 9, v4")
    A(f"s_add_u32 s{sT}, s{sBase}, 2048")
    A(f"v_add_u32 v{vTW3}, s{sT}, v4")
    A(f"v_lshlrev_b32 v4, 4, v0")
    A(f"v_add_u32 v{vUW}, {A_U+512}, v4")
    A(f"v_mov_b32 v2, 0")
    A(f"v_mov_b32 v3, 0")
    A(f"s_add_u32 s{sT}, s{sBase}, {A_U}")
    A(f"v_lshl_add_u32 v4, v{vL}, 3, s{sT}")
    A(f"ds_write_b64 v4, v[2:3]")
    A(f"s_mov_b32 m0, s{sBase}")
    A(f"v_mov_b32 v5, 0x3f80")
    A(f"ds_write_addtid_b32 v5 offset:{21*SROW}")
    for i in range(0, 80, 2):
        A(f"v_pk_mov_b32 {v(vAcc+i,2)}, v[2:3], v[2:3]")
    A("s_waitcnt vmcnt(8)")
    A(f"v_lshlrev_b32 v2, 16, v{vP+12}")
    A(f"v_mul_f32 v2, {hex(f2u(LOG2E))}, v2")
    A(f"v_exp_f32 v2, v2")
    A(f"v_cmp_eq_u32 vcc, 0, v{vL}")
    A(f"v_lshlrev_b32 v3, 16, v{vP+13}")
    A(f"v_cvt_pk_bf16_f32 v2, v2, v2")
    A(f"v_cndmask_b32 v{vDsk}, 0, v3, vcc")
    A(f"v_and_b32 v2, 0xffff0000, v2")
    for p in range(3):
        for i in range(6):
            src = vP + i if p < 2 else vP + 6 + i
            if p == 1: A(f"v_and_b32 v{4+i}, 0xffff0000, v{src}")
            else:      A(f"v_lshlrev_b32 v{4+i}, 16, v{src}")
        d = vDer + 4*p
        A(f"v_pk_mul_f32 v[4:5], v[4:5], v[2:3] op_sel_hi:[1,0]")
        A(f"v_pk_mul_f32 v[6:7], v[6:7], v[2:3] op_sel_hi:[1,0]")
        A(f"v_mul_f32 v{d}, {hex(f2u(LOG2E))}, v4")
        A(f"v_mul_f32 v{d+1}, 0.15915494, v5")
        A(f"v_pk_mul_f32 v[10:11], v[8:9], v[6:7] op_sel_hi:[1,0]")
        A(f"v_pk_fma_f32 {v(d+2,2)}, v[8:9], v[6:7], v[10:11] op_sel:[1,1,0] op_sel_hi:[0,1,1] neg_lo:[1,0,0]")
    A(f"s_mov_b32 s{sCnt}, 3")
    A(f"s_mov_b32 s{sT}, {hex(f2u(8.0))}")
    A(f"s_mov_b32 s{sT2}, {hex(f2u(256.0))}")
    A(".p2align 3")
    A.label("A_pass")
    body = []
    def cexp(dst, t, scale):
        if scale is None:
            return [f"v_exp_f32 v{t}, v{vDer}", f"v_fract_f32 v{t+1}, v{vDer+1}",
                    f"v_cos_f32 v{dst}, v{t+1}", f"v_sin_f32 v{dst+1}, v{t+1}",
                    f"v_pk_mul_f32 {v(dst,2)}, {v(dst,2)}, {v(t,2)} op_sel_hi:[1,0]"]
        return [f"v_mul_f32 v{t}, s{scale}, v{vDer}", f"v_mul_f32 v{t+1}, s{scale}, v{vDer+1}",
                f"v_exp_f32 v{t}, v{t}", f"v_fract_f32 v{t+1}, v{t+1}",
                f"v_cos_f32 v{dst}, v{t+1}", f"v_sin_f32 v{dst+1}, v{t+1}",
                f"v_pk_mul_f32 {v(dst,2)}, {v(dst,2)}, {v(t,2)} op_sel_hi:[1,0]"]
    e1, e2, e3 = cexp(vW, 2, sT), cexp(vZ, 4, None), cexp(vZZ, 6, sT2)
    for i in range(7):
        for e in (e1, e2, e3):
            if i < len(e): body.append(e[i])
    def P(k): return vS + 6*k
    C = vDer + 2
    X2, X4, X6 = 8, 10, 12
    s1 = [(vW2, vW, vW, 21+2, 0)] + [(P(0), vW2 if j == 4 else P(0), vW2, 21+j, 0) for j in range(4, 32, 2)]
    s2 = [(vW, None, None, 21+1, 0)] + [(P(1), vW if j == 3 else P(1), vW2, 21+j, 0) for j in range(3, 32, 2)]
    s3 = [(C, None, None, 0, 1), (P(2), C, vZ, 1, 1), (X2, P(2), vZ, 2, 1), (P(2), X2, vZ, 3, 1), (X4, P(2), vZ, 4, 1),
          (P(2), X4, vZ, 5, 1), (X6, P(2), vZ, 6, 1), (P(2), X6, vZ, 7, 1),
          (P(2), X4, vZZ, 10, 1), (P(2), P(2), vZZ, 13, 1), (P(2), P(2), vZZ, 15, 1)]
    s4 = [(P(3), C, vZZ, 8, 1), (P(3), P(3), vZZ, 12, 1), (P(3), P(3), vZZ, 14, 1), (P(3), P(3), vZZ, 16, 1),
          (P(3), P(3), vZZ, 17, 1), (P(3), P(3), vZZ, 18, 1), (P(3), P(3), vZZ, 19, 1), (P(3), P(3), vZZ, 20, 1),
          (P(3), X2, vZZ, 9, 1), (P(3), X6, vZZ, 11, 1)]
    streams = [s1, s2, s3, s4]
    rounds = []
    for i in range(16):
        ops = [(k, st[i]) for k, st in enumerate(streams) if i < len(st)]
        r = []
        for k, (d, sr, m, row, ng) in ops:
            if sr is not None: r.append(f"v_pk_mul_f32 {v(P(k)+2,2)}, {v(sr,2)}, {v(m,2)} op_sel_hi:[1,0]")
        for k, (d, sr, m, row, ng) in ops:
            if sr is not None: r.append(f"v_pk_fma_f32 {v(d,2)}, {v(sr,2)}, {v(m,2)}, {v(P(k)+2,2)} op_sel:[1,1,0] op_sel_hi:[0,1,1] neg_lo:[1,0,0]")
        for k, (d, sr, m, row, ng) in ops:
            r.append(f"v_cvt_pk_bf16_f32 v{P(k)+4}, v{d}, {'-' if ng else ''}v{d+1}")
        for k, (d, sr, m, row, ng) in ops:
            r.append(f"ds_write_addtid_b32 v{P(k)+4} offset:{row*SROW}")
        rounds.append(r)
    mf = [f"v_mfma_f32_32x32x16_bf16 {v(vAcc,16)}, {v(vFr+8*q,4)}, {v(vFr+8*q+4,4)}, {v(vAcc,16)}" for q in range(8)]
    for l in body: A(l)
    A("s_waitcnt lgkmcnt(0)")
    for i, r in enumerate(rounds):
        if i < 8: A(mf[i])
        for l in r: A(l)
    for q in range(8):
        A(f"ds_read_b128 {v(vFr+8*q,4)}, v{vFX} offset:{32*q}")
        A(f"ds_read_b128 {v(vFr+8*q+4,4)}, v{vFX} offset:{32*q+21*SROW}")
    for i in range(0, 8, 2):
        A(f"v_pk_mov_b32 {v(vDer+i,2)}, {v(vDer+4+i,2)}, {v(vDer+4+i,2)} op_sel:[0,1]")
    A(f"s_sub_u32 s{sCnt}, s{sCnt}, 1")
    A(f"s_cmp_lg_u32 s{sCnt}, 0")
    A("s_cbranch_scc1 A_pass")
    A("s_waitcnt vmcnt(0)")
    perm = []
    for ch in range(4):
        for i in range(4):
            perm.append(f"v_perm_b32 v{vS+4*ch+i}, v{vU+4*i+2+ch//2}, v{vU+4*i+ch//2}, s{sSelHi if ch%2 else sSelLo}")
    for q in range(8):
        A(f"s_waitcnt lgkmcnt({min(15,14-2*q)})")
        A(mf[q])
        A(perm[2*q]); A(perm[2*q+1])
    for ch in range(4):
        A(f"ds_write_b128 v{vUW}, {v(vS+4*ch,4)} offset:{ch*A_CH}")
    A(f"v_add_f32 v{vAcc}, v{vAcc}, v{vDsk}")
    A(f"ds_write_b128 v{vTW0}, {v(vAcc,4)}")
    A(f"ds_write_b64 v{vTW1}, {v(vAcc+4,2)}")
    A(f"ds_write_b64 v{vTW2}, {v(vAcc+6,2)}")
    for i in range(4):
        A(f"ds_write_b32 v{vTW3}, v{vAcc+8+i} offset:{128*i}")
    vE, vO = 192, 208
    def gather(rp):
        beta = 0 if rp < 2 else 1 if rp < 4 else 2 if rp < 8 else 3
        base = [0, 256, 384, 512][beta]; r0 = [0, 2, 4, 8][beta]
        off = 4 * (base + (128 >> beta) * (rp - r0))
        for e in range(3):
            if beta == 0: A(f"ds_read_b32 v{vFr+3*rp+e}, v{vG} offset:{off+4*e}")
            else: A(f"ds_read_b32 v{vFr+3*rp+e}, v{vG+1+3*(beta-1)+e} offset:{off}")
    for rp in range(16): gather(rp)
    A(f"v_cmp_eq_u32 vcc, 0, v{vL}")
    A(f"v_cvt_pk_bf16_f32 v2, v{vAcc}, 0")
    A(f"v_mov_b32 v3, 0")
    A(f"v_cndmask_b32 v2, 0, v2, vcc")
    A(f"s_add_u32 s{sT}, s{sBase}, 12")
    A(f"s_mov_b32 m0, s{sT}")
    for rp in range(16):
        n = 45 - 3*rp
        if n <= 15: A(f"s_waitcnt lgkmcnt({n})")
        elif rp == 0: A(f"s_waitcnt lgkmcnt(15)")
        A(f"v_cvt_pk_bf16_f32 v{vE+rp}, v{vFr+3*rp+2}, v{vFr+3*rp+1}")
        A(f"v_cvt_pk_bf16_f32 v{vO+rp}, v{vFr+3*rp+1}, v{vFr+3*rp}")
    for rp in range(16):
        rho = 15 - rp
        A(f"ds_write_addtid_b32 v{vE+rp} offset:{4+256*rho}")
        A(f"ds_write_addtid_b32 v{vO+rp} offset:{4+A_CS+256*rho}")
        A(f"ds_write_addtid_b32 v{vE+rp} offset:{2*A_CS+256*rho}")
        A(f"ds_write_addtid_b32 v{vO+rp} offset:{3*A_CS+256*rho}")
    A("s_mov_b64 exec, 0x7fff")
    A(f"ds_write_addtid_b32 v2 offset:{4+4096}")
    A(f"ds_write_addtid_b32 v3 offset:{4+A_CS+4096}")
    A(f"ds_write_addtid_b32 v2 offset:{2*A_CS+4096}")
    A(f"ds_write_addtid_b32 v3 offset:{3*A_CS+4096}")
    A("s_mov_b64 exec, -1")
    A("s_waitcnt lgkmcnt(0)")
    A("s_barrier")
    vY = 80
    sets = [128, 192]
    def reads(r):
        base = sets[r % 2]
        L = []
        for a in range(8):
            c = 8*a + r
            L.append([f"ds_read_b64 {v(base+4*a,2)}, v{vAA} offset:{64*(63-c)}",
                      f"ds_read_b64 {v(base+4*a+2,2)}, v{vAA} offset:{64*(63-c)+8}",
                      f"ds_read_b128 {v(base+32+4*a,4)}, v{vBA} offset:{512*a+64*(7-r)}"])
        return [x for g in L for x in g]
    for l in reads(0): A(l)
    for r in range(8):
        base = sets[r % 2]
        nxt = reads(r+1) if r < 7 else []
        A("s_waitcnt lgkmcnt(0)")
        pairs = [(a, b) for a in range(8) for b in range(8-a)]
        for i, (a, b) in enumerate(pairs):
            t = a + b
            c = "0" if (r == 0 and a == 0) else v(vY+4*t,4)
            A(f"v_mfma_f32_16x16x32_bf16 {v(vY+4*t,4)}, {v(base+4*a,4)}, {v(base+32+4*b,4)}, {c}")
            if i < len(nxt): A(nxt[i])
    for t in range(8):
        A(f"v_cvt_pk_bf16_f32 v{2+2*(t%4)}, v{vY+4*t}, v{vY+4*t+1}")
        A(f"v_cvt_pk_bf16_f32 v{3+2*(t%4)}, v{vY+4*t+2}, v{vY+4*t+3}")
        A(f"global_store_dwordx2 v{vOA}, {v(2+2*(t%4),2)}, {s(S_WS,2)} offset:{512*t}")
    A("s_endpgm")

def kernel_text(name, A, vgpr=256, sgpr=96):
    A.pad()
    return f""".globl {name}
.p2align 8
.type {name},@function
{name}:
{A.text()}""", f""".amdhsa_kernel {name}
  .amdhsa_next_free_vgpr {vgpr}
  .amdhsa_next_free_sgpr {sgpr}
  .amdhsa_accum_offset {min(256,(vgpr+3)//4*4)}
  .amdhsa_group_segment_fixed_size 0
  .amdhsa_kernarg_size 128
  .amdhsa_user_sgpr_count 2
  .amdhsa_user_sgpr_kernarg_segment_ptr 1
  .amdhsa_system_sgpr_workgroup_id_x 1
.end_amdhsa_kernel
"""

def emit(kernels, launches, path):
    hdr = open("cdna_kernels/%s.s.ref" % NAME).read().split("; Override launch")[0]
    out = hdr
    for (k, g, b, l) in launches:
        out += f"; @launch kernel={k} grid=({g},1,1) block=({b},1,1) lds={l}\n"
    out += '.amdgcn_target "amdgcn-amd-amdhsa--gfx950"\n.text\n'
    for code, kd in kernels: out += code
    out += '.section .rodata,"a"\n'
    for code, kd in kernels: out += ".p2align 6\n" + kd
    open(path, "w").write(out)

if __name__ == "__main__":
    A = Asm()
    prologue(A)
    A("s_cmp_ge_u32 s2, 160")
    A("s_cbranch_scc1 A_exit")
    A("s_and_b32 s3, s2, 7"); A("s_mul_i32 s3, s3, 20"); A("s_lshr_b32 s4, s2, 3"); A("s_add_u32 s3, s3, s4")
    block_A(A, 3)
    A.label("A_exit"); A("s_endpgm")
    emit([kernel_text("a_kernel", A)], [("a_kernel", 160, 256, A_LDS)], "k.s")
```

```python
from gen import *

G_X = 0
G_W = 32768
G_WS = 10368
G_GW = G_W + 4*G_WS
G_LDS = G_GW + 2560
KVH = 1680

def srd(A, d, ptr, nbytes):
    A(f"s_mov_b32 s{d}, s{ptr}")
    A(f"s_and_b32 s{d+1}, s{ptr+1}, 0xffff")
    A(f"s_mov_b32 s{d+2}, {nbytes}")
    A(f"s_mov_b32 s{d+3}, 0x20000")

def setexec(A, mask):
    lo, hi = mask & 0xffffffff, mask >> 32
    if mask == (1<<64)-1: A("s_mov_b64 exec, -1"); return
    A(f"s_mov_b32 exec_lo, {hex(lo)}"); A(f"s_mov_b32 exec_hi, {hex(hi)}")

def block_G(A, q, sRB, sCG, sRot, L, sync=None):
    sW, sT, sT2, sKx, sKw, sMx, sMw, sCnt, sRH, sCH = 40, 41, 42, 43, 44, 45, 46, 47, 56, 57
    SX, SWq = 48, 52
    vL = 1
    vXA = 8
    vWA = 12
    vRA = 15
    vRB, vRT = 17, 18
    vGA = 19
    vGF = 20
    vGacc = 28
    vB = 32
    vA = 72
    vAcc = 136
    A(f"v_and_b32 v{vL}, 63, v0")
    A(f"v_lshrrev_b32 v2, 6, v0")
    A(f"v_readfirstlane_b32 s{sW}, v2")
    A(f"v_lshrrev_b32 v3, 3, v{vL}")
    A(f"v_lshl_add_u32 v3, v2, 5, v3")
    A(f"v_and_b32 v4, 7, v{vL}")
    A(f"v_lshrrev_b32 v5, 4, v{vL}")
    A(f"v_xor_b32 v4, v4, v5")
    A(f"s_lshl_b32 s{sT}, s{sRB}, 7")
    if q: A(f"s_lshl_b32 s{sT2}, s{sCG}, 4")
    for j in range(4):
        A(f"v_add_u32 v6, {8*j}, v3")
        if q: A(f"v_xor_b32 v6, s{sT2}, v6")
        A(f"v_add_u32 v6, s{sT}, v6")
        A(f"v_mul_u32_u24 v6, 1280, v6")
        if j & 1:
            A(f"v_xor_b32 v7, 4, v4")
            A(f"v_lshl_add_u32 v{vXA+j}, v7, 4, v6")
        else:
            A(f"v_lshl_add_u32 v{vXA+j}, v4, 4, v6")
    if q:
        A(f"s_mul_i32 s{sT}, s{sCG}, 320"); S1, S2 = 80, 160
    else:
        A(f"s_mul_i32 s{sT}, s{sCG}, 160"); A(f"s_add_u32 s{sT}, s{sT}, 1280"); S1, S2 = 1280, 80
    A(f"s_mul_i32 s{sT2}, s{sW}, {8*3840}")
    A(f"s_add_u32 s{sT}, s{sT}, s{sT2}")
    for j in range(3):
        A(f"v_add_u32 v3, {64*j}, v{vL}")
        A(f"v_mul_u32_u24 v4, 3277, v3")
        A(f"v_lshrrev_b32 v4, 16, v4")
        A(f"v_mul_u32_u24 v5, 20, v4")
        A(f"v_sub_u32 v3, v3, v5")
        A(f"v_mul_u32_u24 v5, 52, v3")
        A(f"v_lshrrev_b32 v5, 8, v5")
        A(f"v_mul_u32_u24 v6, 5, v5")
        A(f"v_sub_u32 v3, v3, v6")
        A(f"v_mul_u32_u24 v4, 3840, v4")
        A(f"v_lshl_add_u32 v4, v3, 4, v4")
        A(f"v_and_b32 v6, 1, v5")
        A(f"v_mul_u32_u24 v6, {S1}, v6")
        A(f"v_lshrrev_b32 v5, 1, v5")
        A(f"v_mul_u32_u24 v5, {S2}, v5")
        A(f"v_add3_u32 v4, v4, v5, v6")
        A(f"v_add_u32 v4, s{sT}, v4")
        if j: A(f"v_subrev_u32 v{vWA+j}, {1024*j}, v4")
        else: A(f"v_mov_b32 v{vWA}, v4")
    A(f"s_lshl_b32 s{sMx}, s{sW}, 12")
    A(f"s_mul_i32 s{sMw}, s{sW}, 2592")
    A(f"s_add_u32 s{sMw}, s{sMw}, {G_W}")
    A(f"s_lshl_b32 s{sKx}, s{sRot}, 7")
    A(f"s_mul_i32 s{sKw}, s{sRot}, {64*3840}")
    A("s_waitcnt lgkmcnt(0)")
    srd(A, SX, S_U, 2048*1280)
    srd(A, SWq, S_WQKV, 640*3840)
    def dmaX(slot):
        Lx = []
        for j in range(4):
            Lx.append([f"s_add_u32 m0, s{sMx}, {G_X + 16384*slot + 1024*j}",
                       "s_nop 0",
                       f"buffer_load_dwordx4 v{vXA+j}, {s(SX,4)}, s{sKx} offen lds"])
        Lx[-1] += [f"s_add_u32 s{sKx}, s{sKx}, 128", f"s_cmp_eq_u32 s{sKx}, 1280", f"s_cselect_b32 s{sKx}, 0, s{sKx}"]
        return Lx
    def dmaW(slot):
        return [[f"s_add_u32 m0, s{sMw}, {G_WS*slot}", "s_nop 0",
                 f"buffer_load_dwordx4 v{vWA}, {s(SWq,4)}, s{sKw} offen lds"],
                [f"buffer_load_dwordx4 v{vWA+1}, {s(SWq,4)}, s{sKw} offen offset:1024 lds"],
                ["s_mov_b32 exec_hi, 0",
                 f"buffer_load_dwordx4 v{vWA+2}, {s(SWq,4)}, s{sKw} offen offset:2048 lds",
                 "s_mov_b32 exec_hi, -1",
                 f"s_add_u32 s{sKw}, s{sKw}, {32*3840}", f"s_cmp_eq_u32 s{sKw}, {640*3840}", f"s_cselect_b32 s{sKw}, 0, s{sKw}"]]
    def flat(LL):
        for g in LL:
            for l in g: A(l)
    if q:
        A(f"v_cmp_gt_u32 vcc, 80, v0")
        A(f"v_subrev_u32 v3, 80, v0")
        A(f"v_cndmask_b32 v3, v3, v0, vcc")
        A(f"v_min_u32 v3, 79, v3")
        A(f"v_lshlrev_b32 v3, 4, v3")
        A(f"global_load_dwordx4 {v(vGF,4)}, v3, {s(S_GW,2)}")
    flat(dmaX(0)); flat(dmaW(0)); flat(dmaW(1)); flat(dmaX(1)); flat(dmaW(2)); flat(dmaW(3))
    A(f"s_lshr_b32 s{sRH}, s{sW}, 1")
    A(f"s_and_b32 s{sCH}, s{sW}, 1")
    A(f"v_and_b32 v2, 15, v{vL}")
    A(f"v_lshrrev_b32 v3, 4, v{vL}")
    A(f"v_lshrrev_b32 v4, 1, v2")
    A(f"v_xor_b32 v4, v4, v3")
    A(f"v_lshlrev_b32 v5, 7, v2")
    A(f"s_lshl_b32 s{sT}, s{sRH}, 13")
    A(f"v_add_u32 v5, s{sT}, v5")
    A(f"v_lshl_add_u32 v{vRA}, v4, 4, v5")
    A(f"v_xor_b32 v{vRA+1}, 64, v{vRA}")
    A(f"v_lshrrev_b32 v4, 2, v2")
    A(f"v_and_b32 v5, 3, v2")
    A(f"v_mul_u32_u24 v6, 2592, v3")
    A(f"v_mul_u32_u24 v4, 320, v4")
    A(f"s_mul_i32 s{sT}, s{sCH}, 160")
    A(f"s_add_u32 s{sT}, s{sT}, {G_W}")
    A(f"v_add3_u32 v6, v6, v4, s{sT}")
    A(f"v_lshl_add_u32 v{vRB}, v5, 3, v6")
    A(f"v_mul_u32_u24 v5, 40, v5")
    A(f"v_add3_u32 v{vRT}, v5, v6, 32")
    if q:
        A(f"s_lshl_b32 s{sT}, s{sRot}, 7")
        A(f"s_add_u32 s{sT}, s{sT}, {G_GW}")
        A(f"v_lshl_add_u32 v{vGA}, v3, 4, s{sT}")
        A(f"v_lshlrev_b32 v3, 4, v0")
        A(f"v_add_u32 v3, {G_GW}, v3")
        A(f"v_cmp_gt_u32 vcc, 160, v0")
        A("s_waitcnt vmcnt(20)")
        A(f"s_and_saveexec_b64 s[58:59], vcc")
        A(f"ds_write_b128 v3, {v(vGF,4)}")
        A(f"s_mov_b64 exec, -1")
    A("v_mov_b32 v2, 0"); A("v_mov_b32 v3, 0")
    for i in range(0, 80, 2): A(f"v_pk_mov_b32 {v(vAcc+i,2)}, v[2:3], v[2:3]")
    if q:
        for i in range(0, 4, 2): A(f"v_pk_mov_b32 {v(vGacc+i,2)}, v[2:3], v[2:3]")
    def reads(i):
        R = []
        bs = vB + 20*(i % 2)
        wo = G_WS * (i % 4)
        for t in range(5):
            for h in range(2):
                if t < 4: R.append(f"ds_read_b64_tr_b16 {v(bs+4*t+2*h,2)}, v{vRB} offset:{wo+1280*h+40*t}")
                else:     R.append(f"ds_read_b64_tr_b16 {v(bs+4*t+2*h,2)}, v{vRT} offset:{wo+1280*h}")
        RA = []
        if i % 2 == 0:
            j = (i // 2) % 2
            for ks in range(2):
                for mt in range(4):
                    RA.append(f"ds_read_b128 {v(vA+32*j+16*ks+4*mt,4)}, v{vRA+ks} offset:{G_X+16384*j+2048*mt}")
        RG = [f"ds_read_b128 {v(vGF+4*(i%2),4)}, v{vGA} offset:{64*i}"] if q else []
        return RA[:4] + R + RG + RA[4:]
    def mfmas(i):
        M = []
        bs = vB + 20*(i % 2); aa = vA + 32*((i//2) % 2) + 16*(i % 2)
        for t in range(5):
            for mt in range(4):
                d = v(vAcc + 20*mt + 4*t, 4)
                if q: M.append(f"v_mfma_f32_16x16x32_bf16 {d}, {v(bs+4*t,4)}, {v(aa+4*mt,4)}, {d}")
                else: M.append(f"v_mfma_f32_16x16x32_bf16 {d}, {v(aa+4*mt,4)}, {v(bs+4*t,4)}, {d}")
        if q: M.append(f"v_mfma_f32_16x16x32_bf16 {v(vGacc,4)}, {v(vGF+4*(i%2),4)}, {v(aa,4)}, {v(vGacc,4)}")
        return M
    def step(i, dma, nwait, last=False):
        M = mfmas(i)
        A("s_waitcnt lgkmcnt(0)")
        A(M[0]); A(M[1])
        if not last:
            A(f"s_waitcnt vmcnt({nwait})")
            A("s_barrier")
        fill = []
        rd = [] if last else [[x] for x in reads(i+1)]
        dm = []
        if dma:
            if i % 2 == 0: dm += dmaX((i//2) % 2)
            dm += dmaW(i % 4)
        k = 0
        while rd or dm:
            if rd: fill.append(rd.pop(0))
            if dm and (k % 2 == 1 or not rd): fill.append(dm.pop(0))
            k += 1
        n = len(M) - 2
        for mi in range(n):
            lo, hi = (mi * len(fill)) // (n-3) if mi < n-3 else len(fill), ((mi+1) * len(fill)) // (n-3) if mi < n-3 else len(fill)
            for g in fill[lo:hi]:
                for l in g: A(l)
            A(M[2+mi])
    A("s_waitcnt vmcnt(13) lgkmcnt(0)")
    A("s_barrier")
    for l in reads(0): A(l)
    A(f"s_mov_b32 s{sCnt}, 4")
    A(".p2align 3")
    A.label(f"{L}_loop")
    for i in range(4):
        step(i, True, 10)
    if q: A(f"v_add_u32 v{vGA}, 256, v{vGA}")
    A(f"s_sub_u32 s{sCnt}, s{sCnt}, 1")
    A(f"s_cmp_lg_u32 s{sCnt}, 0")
    A(f"s_cbranch_scc1 {L}_loop")
    step(0, False, 10); step(1, False, 3); step(2, False, 0); step(3, False, 0, last=True)
    sLg = 60
    A(f"s_mov_b32 s{sLg}, {hex(f2u(LOG2E))}"); A(f"s_mov_b32 s{sLg+1}, {hex(f2u(LOG2E))}")
    A(f"s_mov_b32 s62, {hex(f2u(1e-6))}")
    def phi4(src, dst, tmp):
        return [f"v_pk_mul_f32 {v(tmp,2)}, {v(src,2)}, {s(sLg,2)}",
                f"v_pk_mul_f32 {v(tmp+2,2)}, {v(src+2,2)}, {s(sLg,2)}",
                f"v_exp_f32 v{tmp}, v{tmp} clamp", f"v_exp_f32 v{tmp+1}, v{tmp+1} clamp",
                f"v_exp_f32 v{tmp+2}, v{tmp+2} clamp", f"v_exp_f32 v{tmp+3}, v{tmp+3} clamp",
                f"v_max_f32 v{tmp+4}, s62, v{src}", f"v_max_f32 v{tmp+5}, s62, v{src+1}",
                f"v_max_f32 v{tmp+6}, s62, v{src+2}", f"v_max_f32 v{tmp+7}, s62, v{src+3}",
                f"v_pk_add_f32 {v(tmp,2)}, {v(tmp,2)}, {v(tmp+4,2)}",
                f"v_pk_add_f32 {v(tmp+2,2)}, {v(tmp+2,2)}, {v(tmp+6,2)}",
                f"v_cvt_pk_bf16_f32 v{dst}, v{tmp}, v{tmp+1}",
                f"v_cvt_pk_bf16_f32 v{dst+1}, v{tmp+2}, v{tmp+3}"]
    def cvt4(src, dst):
        return [f"v_cvt_pk_bf16_f32 v{dst}, v{src}, v{src+1}", f"v_cvt_pk_bf16_f32 v{dst+1}, v{src+2}, v{src+3}"]
    acc = lambda mt, t: vAcc + 20*mt + 4*t
    if not q:
        op = lambda nm, p: 32 + 8*["K0","K1","V0","V1","TA","TB"].index(nm) + 4*p
        vPp = 80; tmp = 108
        A(f"v_and_b32 v2, 15, v{vL}"); A(f"v_lshrrev_b32 v3, 4, v{vL}")
        A(f"s_mul_i32 s{sT}, s{sRH}, 6720"); A(f"s_mul_i32 s{sT2}, s{sCH}, {2*KVH}"); A(f"s_add_u32 s{sT}, s{sT}, s{sT2}")
        A(f"v_mul_u32_u24 v4, 80, v2")
        A(f"v_add_u32 v4, s{sT}, v4")
        A(f"v_lshl_add_u32 v5, v3, 4, v4")
        A(f"v_and_b32 v6, 3, v2")
        A(f"v_add_u32 v6, 16, v6")
        A(f"v_cmp_eq_u32 vcc, 0, v2")
        A(f"v_mov_b32 v7, 20")
        A(f"v_cndmask_b32 v6, v6, v7, vcc")
        A(f"v_mul_u32_u24 v6, 80, v6")
        A(f"v_add_u32 v6, s{sT}, v6")
        A(f"v_lshl_add_u32 v7, v3, 4, v6")
        A(f"v_mul_u32_u24 v8, {KVH}, v3")
        A(f"v_add_u32 v8, v8, v6")
        A(f"v_cmp_gt_u32 vcc, 8, v2")
        A(f"v_mov_b32 v9, 0x3f803f80")
        for p in range(2):
            for half in range(2):
                mt = 2*p + half
                for l in cvt4(acc(mt,2), op("V0",p)+2*half): A(l)
                for l in cvt4(acc(mt,3), op("V1",p)+2*half): A(l)
                for l in cvt4(acc(mt,4), op("TB",p)+2*half): A(l)
                for k in range(2): A(f"v_cndmask_b32 v{op('TB',p)+2*half+k}, v{op('TB',p)+2*half+k}, v9, vcc")
                for l in phi4(acc(mt,0), op("K0",p)+2*half, tmp): A(l)
                for l in phi4(acc(mt,1), op("K1",p)+2*half, tmp+8): A(l)
                for l in phi4(acc(mt,4), op("TA",p)+2*half, tmp): A(l)
            for n, (x, y) in enumerate([("K0","V0"),("K1","V1"),("K0","TB"),("K1","TB"),("TA","V0"),("TA","V1"),("TA","TB")]):
                A(f"v_mfma_f32_16x16x32_bf16 {v(vPp+4*n,4)}, {v(op(x,p),4)}, {v(op(y,p),4)}, {'0' if p==0 else v(vPp+4*n,4)}")
        A(f"ds_write_b128 v5, {v(vPp,4)}")
        A(f"ds_write_b128 v5, {v(vPp+4,4)} offset:{KVH}")
        setexec(A, 0x0F010F010F010F01); A(f"ds_write_b128 v7, {v(vPp+8,4)}")
        setexec(A, 0xF001F001F001F001); A(f"ds_write_b128 v7, {v(vPp+12,4)} offset:{KVH}")
        setexec(A, 0xFFFF); A(f"ds_write_b128 v4, {v(vPp+16,4)} offset:64")
        setexec(A, 0xFFFF0000); A(f"ds_write_b128 v4, {v(vPp+20,4)} offset:{KVH+64}")
        setexec(A, 0xF0010F01); A(f"ds_write_b128 v8, {v(vPp+24,4)} offset:64")
        setexec(A, (1<<64)-1)
        A(f"v_lshlrev_b32 v2, 2, v0")
        A(f"s_mul_i32 s{sT}, s{sCG}, 6720")
        A(f"s_add_u32 s{sT}, s{sT}, {WS_KV}")
        A(f"v_add_u32 v3, s{sT}, v2")
        A(f"v_add_u32 v4, 4096, v3")
        A("s_waitcnt lgkmcnt(0)")
        A("s_barrier")
        for k in range(7):
            A(f"ds_read_b32 v{32+2*k}, v2 offset:{1024*k}")
            A(f"ds_read_b32 v{33+2*k}, v2 offset:{1024*k+6720}")
        if sync: sync["pre_atomic"](A)
        A(f"v_cmp_gt_u32 vcc, {1680-1536}, v0")
        for k in range(7):
            A(f"s_waitcnt lgkmcnt({12-2*k})")
            A(f"v_add_f32 v{32+2*k}, v{32+2*k}, v{33+2*k}")
            if k == 6:
                A("s_and_saveexec_b64 s[58:59], vcc")
                A(f"s_cbranch_execz {L}_skip")
            A(f"global_atomic_add_f32 v{3 if k<4 else 4}, v{32+2*k}, {s(S_WS,2)} offset:{1024*(k%4)}")
        A.label(f"{L}_skip")
        A("s_mov_b64 exec, -1")
        if sync: sync["post_atomic"](A)
        A("s_endpgm")
    else:
        vQ = 32; tmp = 216
        for nt in range(4):
            b = vQ + 12*nt
            for l in phi4(acc(nt,0), b, tmp): A(l)
            for l in phi4(acc(nt,4), b+2, tmp+8): A(l)
            for l in phi4(acc(nt,1), b+4, tmp): A(l)
            for l in phi4(acc(nt,2), b+6, tmp+8): A(l)
            A(f"v_pk_mov_b32 {v(b+8,2)}, {v(b+2,2)}, {v(b+2,2)} op_sel:[0,1]")
            for l in phi4(acc(nt,3), b+10, tmp): A(l)
        A(f"v_and_b32 v2, 15, v{vL}"); A(f"v_lshrrev_b32 v3, 4, v{vL}")
        A(f"v_mul_f32 v4, {hex(f2u(-LOG2E))}, v{vGacc}")
        A(f"v_exp_f32 v4, v4")
        A(f"s_lshl_b32 s{sT}, s{sRB}, 1"); A(f"s_add_u32 s{sT}, s{sT}, s{sRH}"); A(f"s_lshl_b32 s{sT}, s{sT}, 2")
        A(f"v_add_f32 v4, 1.0, v4")
        A(f"v_rcp_f32 v4, v4")
        A(f"s_add_u32 s{sT2}, s{sT}, s{sCG}")
        A(f"s_lshl_b32 s{sT2}, s{sT2}, 6")
        A(f"s_add_u32 s{sT2}, s{sT2}, {WS_G}")
        A(f"v_lshl_add_u32 v5, v2, 2, s{sT2}")
        A(f"global_store_dword v5, v4, {s(S_WS,2)}")
        A(f"s_lshl_b32 s{sT2}, s{sCG}, 1"); A(f"s_add_u32 s{sT2}, s{sT2}, s{sCH}"); A(f"s_mul_i32 s{sT2}, s{sT2}, {4*KVH}")
        A(f"s_add_u32 s{sT2}, s{sT2}, {WS_KV}")
        A(f"v_mul_u32_u24 v4, 80, v2")
        A(f"v_add_u32 v4, s{sT2}, v4")
        A(f"v_lshl_add_u32 v5, v3, 4, v4")
        A(f"v_add_u32 v10, {2*KVH}, v4")
        A(f"v_add_u32 v11, {2*KVH}, v5")
        A(f"v_lshrrev_b32 v6, 2, v2"); A(f"v_and_b32 v7, 3, v2")
        A(f"v_mul_u32_u24 v8, {KVH}, v6")
        A(f"v_mul_u32_u24 v9, 80, v7")
        A(f"v_add3_u32 v8, v8, v9, s{sT2}")
        A(f"v_lshl_add_u32 v9, v3, 4, v8")
        A(f"v_mul_u32_u24 v12, {KVH}, v7")
        A(f"v_add_u32 v12, s{sT2}, v12")
        A(f"v_lshl_add_u32 v13, v3, 4, v12")
        A(f"s_mul_i32 s63, s{sCG}, 5");
        A(f"s_lshl_b32 s64, s{sCH}, 1"); A(f"s_add_u32 s64, s64, s63"); A(f"s_lshl_b32 s64, s64, 10")
        A(f"s_add_u32 s64, s64, {WS_OF}")
        A(f"v_lshl_add_u32 v14, v{vL}, 4, s64")
        A(f"s_add_u32 s63, s63, 4"); A(f"s_lshl_b32 s63, s63, 10"); A(f"s_lshl_b32 s64, s{sCH}, 3"); A(f"s_add_u32 s63, s63, s64")
        A(f"s_add_u32 s63, s63, {WS_OF}")
        A(f"v_lshl_add_u32 v15, v{vL}, 4, s63")
        if sync: sync["pre_kv"](A)
        sc = " sc1" if sync else ""
        vK = 136
        for h in range(4):
            A(f"global_load_dwordx4 {v(vK+8*h,4)}, v{5 if h<2 else 11}, {s(S_WS,2)} offset:{KVH*(h%2)}{sc}")
            A(f"global_load_dwordx4 {v(vK+8*h+4,4)}, v{4 if h<2 else 10}, {s(S_WS,2)} offset:{KVH*(h%2)+64}{sc}")
        A(f"global_load_dwordx4 {v(vK+32,4)}, v9, {s(S_WS,2)} offset:1280{sc}")
        A(f"global_load_dwordx4 {v(vK+36,4)}, v8, {s(S_WS,2)} offset:{1280+64}{sc}")
        A(f"global_load_dwordx4 {v(vK+40,4)}, v13, {s(S_WS,2)} offset:1600{sc}")
        A(f"global_load_dwordx4 {v(vK+44,4)}, v12, {s(S_WS,2)} offset:{1600+64}{sc}")
        vAo = 80
        A("v_mov_b32 v16, 0"); A("v_mov_b32 v17, 0")
        for i in range(0, 48, 2): A(f"v_pk_mov_b32 {v(vAo+i,2)}, v[16:17], v[16:17]")
        A("s_waitcnt vmcnt(0)")
        rep = lambda m16: m16 | m16 << 16 | m16 << 32 | m16 << 48
        for h in range(4):
            mo, to = (0, 2) if h % 2 == 0 else (2, 0)
            gm = 0xFFFF << (16*h)
            b = vAo + 12*h
            for l in cvt4(vK+8*h, b+mo): A(l)
            setexec(A, gm)
            for l in cvt4(vK+8*h+4, b+to): A(l)
            mM = rep(0xF << (4*h)); mD = rep(0x1111 << h)
            setexec(A, mM)
            for l in cvt4(vK+32, b+4+mo): A(l)
            setexec(A, mM & gm)
            for l in cvt4(vK+36, b+4+to): A(l)
            setexec(A, mD)
            for l in cvt4(vK+40, b+8+mo): A(l)
            setexec(A, mD & gm)
            for l in cvt4(vK+44, b+8+to): A(l)
            setexec(A, (1<<64)-1)
        A("s_nop 1")
        for nt in range(4):
            r = 136 + 24*nt
            for h in range(4):
                bq = vQ + 12*nt + [0, 2, 6, 8][h]
                A(f"v_mfma_f32_16x16x32_bf16 {v(r+20,4)}, {v(vAo+12*h+8,4)}, {v(bq,4)}, {'0' if h==0 else v(r+20,4)}")
            for h in range(4):
                bq = vQ + 12*nt + [0, 2, 6, 8][h]
                A(f"v_mfma_f32_16x16x32_bf16 {v(r+16,4)}, {v(vAo+12*h+4,4)}, {v(bq,4)}, {'0' if h==0 else v(r+16,4)}")
            for h in range(4):
                bq = vQ + 12*nt + [0, 2, 6, 8][h]
                A(f"v_mfma_f32_16x16x32_bf16 {v(r+4*h,4)}, {v(vAo+12*h,4)}, {v(bq,4)}, 0")
        for nt in range(4):
            r = 136 + 24*nt
            for h in range(4): A(f"v_add_f32 v{r+20+h}, s62, v{r+20+h}")
            for h in range(4): A(f"v_rcp_f32 v{r+20+h}, v{r+20+h}")
            A(f"v_mov_b32 v16, v{r+20}")
            for h in range(1, 4):
                setexec(A, 0xFFFF << (16*h)); A(f"v_mov_b32 v16, v{r+20+h}")
            setexec(A, (1<<64)-1)
            for h in range(4):
                pr = r + 20 + (h & 2)
                sel = f"op_sel:[0,{h&1}] op_sel_hi:[1,{h&1}]"
                A(f"v_pk_mul_f32 {v(r+4*h,2)}, {v(r+4*h,2)}, {v(pr,2)} {sel}")
                A(f"v_pk_mul_f32 {v(r+4*h+2,2)}, {v(r+4*h+2,2)}, {v(pr,2)} {sel}")
            A(f"v_pk_mul_f32 {v(r+16,2)}, {v(r+16,2)}, v[16:17] op_sel_hi:[1,0]")
            A(f"v_pk_mul_f32 {v(r+18,2)}, {v(r+18,2)}, v[16:17] op_sel_hi:[1,0]")
            o = 32 + 12*nt
            for h in range(4):
                for l in cvt4(r+4*h, o+2*h): A(l)
            for l in cvt4(r+16, o+8): A(l)
            A(f"s_xor_b32 s63, s{sCG}, {nt}"); A(f"s_add_u32 s63, s63, s{sT}"); A(f"s_mul_i32 s63, s63, 20480")
            A(f"s_add_u32 s64, s{S_WS}, s63"); A(f"s_addc_u32 s65, s{S_WS+1}, 0")
            A(f"global_store_dwordx4 v14, {v(o,4)}, s[64:65]")
            A(f"global_store_dwordx4 v14, {v(o+4,4)}, s[64:65] offset:1024")
            A(f"global_store_dwordx2 v15, {v(o+8,2)}, s[64:65]")
        A("s_endpgm")

def block_Z(A):
    A("s_lshl_b32 s3, s2, 8")
    A("v_add_u32 v1, s3, v0")
    A("v_cmp_gt_u32 vcc, 3360, v1")
    A("v_lshlrev_b32 v1, 4, v1")
    A(f"v_add_u32 v1, {WS_KV}, v1")
    for i in range(4): A(f"v_mov_b32 v{4+i}, 0")
    A("s_waitcnt lgkmcnt(0)")
    A("s_and_saveexec_b64 s[4:5], vcc")
    A("s_cbranch_execz Z_exit")
    A(f"global_store_dwordx4 v1, v[4:7], {s(S_WS,2)}")
    A.label("Z_exit"); A("s_endpgm")

F_AT = 102400
F_LDS = F_AT + 10240
def block_F(A, sRB, sCB):
    sW, sT, sT2, sM, sK = 40, 41, 42, 43, 44
    SWo, SAt = 48, 52
    vL = 1
    vDA = 8
    vR1, vR2, vRAt, vG, vO = 13, 14, 15, 16, 17
    vAcc = 20
    vWf = 40
    vOf = 80
    A(f"v_and_b32 v{vL}, 63, v0")
    A(f"v_lshrrev_b32 v2, 6, v0")
    A(f"v_readfirstlane_b32 s{sW}, v2")
    A(f"s_mul_i32 s{sT}, s{sCB}, 160")
    for j in range(5):
        A(f"v_add_u32 v3, {64*j}, v{vL}")
        A(f"v_mul_u32_u24 v4, 6554, v3")
        A(f"v_lshrrev_b32 v4, 16, v4")
        A(f"v_mul_u32_u24 v5, 10, v4")
        A(f"v_sub_u32 v3, v3, v5")
        A(f"v_mul_u32_u24 v4, 1280, v4")
        A(f"v_lshl_add_u32 v4, v3, 4, v4")
        if 0 < j < 4: A(f"v_subrev_u32 v4, {1024*j}, v4")
        A(f"v_add_u32 v{vDA+j}, s{sT}, v4")
    A(f"s_lshl_b32 s{sT}, s{sRB}, 2"); A(f"s_add_u32 s{sT}, s{sT}, s{sW}")
    A(f"s_mul_i32 s{sT2}, s{sT}, 20480"); A(f"s_add_u32 s{sT2}, s{sT2}, {WS_OF+4096}")
    A(f"v_lshl_add_u32 v3, v{vL}, 4, s{sT2}")
    A(f"v_add_u32 v4, 8192, v3"); A(f"v_add_u32 v5, 16384, v3")
    A(f"v_and_b32 v6, 15, v{vL}")
    A(f"s_lshl_b32 s{sT2}, s{sT}, 6"); A(f"s_add_u32 s{sT2}, s{sT2}, {WS_G}")
    A(f"v_lshl_add_u32 v7, v6, 2, s{sT2}")
    A(f"v_lshrrev_b32 v18, 3, v0"); A(f"v_and_b32 v19, 7, v0")
    A(f"v_lshlrev_b32 v18, 12, v18"); A(f"v_lshl_add_u32 v18, v19, 4, v18")
    A(f"s_mul_i32 s45, s{sCB}, {80*4096}"); A(f"s_lshl_b32 s46, s{sRB}, 7"); A(f"s_add_u32 s45, s45, s46")
    A(f"s_mul_i32 s{sM}, s{sW}, 5120")
    A(f"s_mul_i32 s{sK}, s{sW}, {32*1280}")
    A("s_waitcnt lgkmcnt(0)")
    srd(A, SWo, S_WO, 640*1280)
    srd(A, SAt, S_WS, 640*4096)
    def rnd(n):
        A(f"s_add_u32 m0, s{sM}, {20480*n}")
        A(f"s_add_u32 s47, s{sK}, {128*1280*n}")
        for j in range(4): A(f"buffer_load_dwordx4 v{vDA+j}, {s(SWo,4)}, s47 offen offset:{1024*j} lds")
        A(f"s_add_u32 m0, s{sM}, {20480*n+4096}")
        A("s_nop 0")
        A(f"buffer_load_dwordx4 v{vDA+4}, {s(SWo,4)}, s47 offen lds")
    def of(cg):
        for f in range(5*cg, 5*cg+5):
            r, o = [(3, f*1024-4096), (4, f*1024-12288), (5, f*1024-20480)][f//8]
            A(f"global_load_dwordx4 {v(vOf+4*f,4)}, v{r}, {s(S_WS,2)} offset:{o}")
    rnd(0); of(0); rnd(1); of(1); rnd(2); of(2); rnd(3); of(3); rnd(4)
    A(f"global_load_dword v{vG}, v7, {s(S_WS,2)}")
    A(f"s_lshl_b32 s46, s{sW}, 10")
    for j in range(3):
        A(f"s_add_u32 m0, s46, {F_AT + 4096*j}")
        A(f"s_add_u32 s47, s45, {32*4096*j}")
        if j == 2:
            A(f"s_cmp_ge_u32 s{sW}, 2"); A("s_cbranch_scc1 F_noat")
        A(f"buffer_load_dwordx4 v18, {s(SAt,4)}, s47 offen lds")
    A.label("F_noat")
    A(f"v_lshrrev_b32 v3, 4, v{vL}")
    A(f"v_lshrrev_b32 v4, 2, v6")
    A(f"v_and_b32 v5, 3, v6")
    A(f"v_lshl_add_u32 v7, v3, 2, v4")
    A(f"v_mul_u32_u24 v2, 160, v7")
    A(f"v_lshl_add_u32 v{vR1}, v5, 3, v2")
    A(f"v_mul_u32_u24 v2, 20, v3")
    A(f"v_add3_u32 v2, v2, v4, 16")
    A(f"v_mul_u32_u24 v2, 160, v2")
    A(f"v_lshl_add_u32 v{vR2}, v5, 3, v2")
    A(f"v_lshlrev_b32 v2, 7, v7")
    A(f"v_lshl_add_u32 v2, v5, 3, v2")
    A(f"s_lshl_b32 s46, s{sW}, 5"); A(f"s_add_u32 s46, s46, {F_AT}")
    A(f"v_add_u32 v{vRAt}, s46, v2")
    A(f"s_lshl_b32 s46, s{sT}, 4")
    A(f"v_add_u32 v2, s46, v6")
    A(f"v_mul_u32_u24 v2, 1280, v2")
    A(f"s_mul_i32 s46, s{sCB}, 160")
    A(f"v_lshl_add_u32 v2, v3, 3, v2")
    A(f"v_add_u32 v{vO}, s46, v2")
    def reads(f):
        cg, ph = divmod(f, 5)
        R = []
        for t in range(5):
            for h in range(2):
                if ph < 4: R.append(f"ds_read_b64_tr_b16 {v(vWf+20*(f%2)+4*t+2*h,2)}, v{vR1} offset:{160*(40*ph+20*h)+32*t}")
                else:      R.append(f"ds_read_b64_tr_b16 {v(vWf+20*(f%2)+4*t+2*h,2)}, v{vR2} offset:{160*(80*h)+32*t}")
        return R
    for f in range(20):
        cg, ph = divmod(f, 5)
        if ph == 0:
            A(f"s_waitcnt vmcnt({48 - 10*(cg+1) - 5})")
            A("s_barrier")
            for l in reads(f): A(l)
        A("s_waitcnt lgkmcnt(0)")
        nxt = reads(f+1) if ph < 4 else []
        for t in range(5):
            A(f"v_mfma_f32_16x16x32_bf16 {v(vAcc+4*t,4)}, {v(vWf+20*(f%2)+4*t,4)}, {v(vOf+4*f,4)}, {'0' if f==0 else v(vAcc+4*t,4)}")
            for l in nxt[2*t:2*t+2]: A(l)
        if ph == 4 and cg < 3:
            A(f"v_add_u32 v{vR1}, 25600, v{vR1}"); A(f"v_add_u32 v{vR2}, 25600, v{vR2}")
    A("s_waitcnt vmcnt(0)")
    A("s_barrier")
    for t in range(5): A(f"ds_read_b64_tr_b16 {v(40+2*t,2)}, v{vRAt} offset:{2048*t}")
    for t in range(5):
        A(f"s_waitcnt lgkmcnt({4-t})")
        tm = 52 + 4*t
        A(f"v_lshlrev_b32 v{tm}, 16, v{40+2*t}"); A(f"v_and_b32 v{tm+1}, 0xffff0000, v{40+2*t}")
        A(f"v_lshlrev_b32 v{tm+2}, 16, v{41+2*t}"); A(f"v_and_b32 v{tm+3}, 0xffff0000, v{41+2*t}")
        for k in (0, 2):
            A(f"v_pk_add_f32 {v(tm+k,2)}, {v(tm+k,2)}, {v(vAcc+4*t+k,2)} neg_lo:[0,1] neg_hi:[0,1]")
            A(f"v_pk_fma_f32 {v(tm+k,2)}, {v(tm+k,2)}, {v(vG,2)}, {v(vAcc+4*t+k,2)} op_sel_hi:[1,0,1]")
        A(f"v_cvt_pk_bf16_f32 v{tm}, v{tm}, v{tm+1}"); A(f"v_cvt_pk_bf16_f32 v{tm+1}, v{tm+2}, v{tm+3}")
        A(f"global_store_dwordx2 v{vO}, {v(tm,2)}, {s(S_OUT,2)} offset:{32*t}")
    A("s_endpgm")

def build_v1(path):
    ks, ls = [], []
    A = Asm(); prologue(A); block_Z(A)
    ks.append(kernel_text("z_kernel", A, 16, 48)); ls.append(("z_kernel", 14, 256, 0))
    A = Asm(); prologue(A)
    A("s_cmp_ge_u32 s2, 160"); A("s_cbranch_scc1 A_exit")
    A("s_and_b32 s3, s2, 7"); A("s_mul_i32 s3, s3, 20"); A("s_lshr_b32 s4, s2, 3"); A("s_add_u32 s3, s3, s4")
    block_A(A, 3); A.label("A_exit"); A("s_endpgm")
    ks.append(kernel_text("a_kernel", A)); ls.append(("a_kernel", 160, 256, A_LDS))
    A = Asm(); prologue(A)
    A("s_cmp_ge_u32 s2, 128"); A("s_cbranch_scc1 KV_exit")
    A("s_and_b32 s3, s2, 15"); A("s_lshr_b32 s4, s2, 4"); A("s_mov_b32 s5, s4")
    block_G(A, False, 3, 4, 5, "KV"); A.label("KV_exit"); A("s_endpgm")
    ks.append(kernel_text("kv_kernel", A)); ls.append(("kv_kernel", 128, 256, G_LDS))
    A = Asm(); prologue(A)
    A("s_cmp_ge_u32 s2, 64"); A("s_cbranch_scc1 Q_exit")
    A("s_and_b32 s3, s2, 15"); A("s_lshr_b32 s4, s2, 4"); A("s_lshl_b32 s5, s4, 1")
    block_G(A, True, 3, 4, 5, "Q"); A.label("Q_exit"); A("s_endpgm")
    ks.append(kernel_text("q_kernel", A)); ls.append(("q_kernel", 64, 256, G_LDS))
    A = Asm(); prologue(A)
    A("s_cmp_ge_u32 s2, 256"); A("s_cbranch_scc1 F_exit")
    A("s_and_b32 s3, s2, 31"); A("s_lshr_b32 s4, s2, 5")
    block_F(A, 3, 4); A.label("F_exit"); A("s_endpgm")
    ks.append(kernel_text("f_kernel", A, 160)); ls.append(("f_kernel", 256, 256, F_LDS))
    emit(ks, ls, path)

if __name__ == "__main__":
    build_v1("k.s")
```

```python
import sys, struct
from asmlib import *

NAME = "gated_mix__ssm_conv_s4__linear_attn_block__prompt"
def f2u(x): return struct.unpack("<I", struct.pack("<f", x))[0]
LOG2E = 1.4426950408889634
INV2PI = 0.15915494309189535

WS_AT = 0
WS_OF = 0x300000
WS_G  = 0x600000
WS_KV = 0x610000

S_U, S_ARE, S_AIM, S_BRE, S_BIM, S_CRE, S_CIM, S_LDT = 8, 10, 12, 14, 16, 18, 20, 22
S_DSK, S_BX, S_WQKV, S_WO, S_GW, S_OUT, S_DBG, S_WS = 24, 26, 28, 30, 32, 34, 36, 38

STAMPS = False
WS_ST = 0x800000
def stamp(A, i):
    if STAMPS: A(f"s_memtime s[{70+2*i}:{71+2*i}]")
def endpgm(A, kidx=0):
    if STAMPS:
        A("s_memtime s[90:91]")
        A("s_memrealtime s[92:93]")
        A("s_getreg_b32 s94, hwreg(HW_REG_HW_ID)")
        A("s_getreg_b32 s95, hwreg(HW_REG_XCC_ID)")
        A("s_waitcnt vmcnt(0) lgkmcnt(0)")
        A("s_mov_b64 exec, -1")
        A("v_mov_b32 v2, 0")
        for i in range(11): A(f"v_writelane_b32 v2, s{70+2*i}, {i}")
        A("v_writelane_b32 v2, s68, 11"); A("v_writelane_b32 v2, s92, 12"); A("v_writelane_b32 v2, s94, 13"); A("v_writelane_b32 v2, s95, 14")
        A("s_lshl_b32 s66, s67, 9")
        A(f"s_add_u32 s66, s66, {WS_ST + kidx*0x40000}")
        A("v_lshrrev_b32 v3, 6, v0"); A("v_lshlrev_b32 v3, 6, v3")
        A("v_and_b32 v4, 63, v0"); A("v_lshl_add_u32 v3, v4, 2, v3"); A("v_add_u32 v3, s66, v3")
        A("s_mov_b64 exec, 0xffff")
        A(f"global_store_dword v3, v2, {s(S_WS,2)}")
    A("s_endpgm")

def prologue(A):
    if STAMPS:
        for i in range(70, 92): A(f"s_mov_b32 s{i}, 0")
        A("s_mov_b32 s67, s2")
        A("s_memrealtime s[68:69]")
        stamp(A, 0)
    A("s_load_dwordx16 s[8:23], s[0:1], 0")
    A("s_load_dwordx16 s[24:39], s[0:1], 64")

A_CS = 4160
A_U = 4 * A_CS + 16
A_CH = A_U + 512 + 4096
A_LDS = 4 * A_CH
ROWS = [0,1,2,3,4,5,6,7,256,258,260,262,512,516,768,772,1024,1280,1536,1792,2048]
SROW = 272

def block_A(A, sgid, kidx=0):
    sW, sD, sT, sBase, sCnt, sT2 = 40, 41, 42, 43, 44, 45
    sSelLo, sSelHi = 46, 47
    vL = 1
    vU = 16
    vP = 32
    vDer = 48
    vG = 60
    vAA, vBA, vOA = 70, 71, 72
    vFX, vTW1, vTW2, vTW3, vTW0 = 73, 74, 75, 76, 77
    vDsk = 78
    vUW = 79
    vZ, vW, vW2, vZZ = 80, 82, 84, 86
    vS = 88
    vAcc = 112
    vFr = 128
    A(f"v_and_b32 v{vL}, 63, v0")
    A(f"v_lshrrev_b32 v2, 6, v0")
    A(f"v_readfirstlane_b32 s{sW}, v2")
    A(f"s_lshl_b32 s{sD}, s{sgid}, 2")
    A(f"s_add_u32 s{sD}, s{sD}, s{sW}")
    A(f"s_mul_i32 s{sT}, s{sD}, 384")
    A(f"v_lshl_add_u32 v2, v{vL}, 2, s{sT}")
    A(f"v_lshl_add_u32 v3, v{vL}, 1, s{sT}")
    A(f"s_lshl_b32 s{sT}, s{sD}, 1")
    A(f"v_mov_b32 v4, s{sT}")
    A(f"s_movk_i32 s{sT}, 10240")
    A(f"v_mul_lo_u32 v5, v0, s{sT}")
    A(f"s_lshl_b32 s{sT}, s{sgid}, 3")
    A(f"v_add_u32 v5, s{sT}, v5")
    A(f"v_add_u32 v6, 5120, v5")
    A("s_waitcnt lgkmcnt(0)")
    for i, sp in enumerate((S_ARE, S_AIM, S_BRE, S_BIM, S_CRE, S_CIM)):
        A(f"global_load_dword v{vP+i}, v2, {s(sp,2)}")
        A(f"global_load_ushort v{vP+6+i}, v3, {s(sp,2)} offset:256")
    A(f"global_load_ushort v{vP+12}, v4, {s(S_LDT,2)}")
    A(f"global_load_ushort v{vP+13}, v4, {s(S_DSK,2)}")
    for i in range(8):
        A(f"global_load_dwordx2 {v(vU+2*i,2)}, v{5 if i<4 else 6}, {s(S_U,2)} offset:{1280*(i%4) if (i%4)<3 else 3840}")
    A(f"s_mul_i32 s{sBase}, s{sW}, {A_CH}")
    A(f"s_mov_b32 s{sSelLo}, 0x05040100")
    A(f"s_mov_b32 s{sSelHi}, 0x07060302")
    A(f"v_sub_u32 v2, 63, v{vL}")
    A(f"v_lshlrev_b32 v2, 1, v2")
    A(f"v_lshl_add_u32 v{vG}, v2, 2, s{sBase}")
    for beta in (1, 2, 3):
        for e in range(3):
            r = vG + 1 + 3*(beta-1) + e
            A(f"v_add_u32 v3, {e}, v2")
            A(f"v_bfe_u32 v4, v3, {beta}, 1")
            A(f"v_add3_u32 v3, v3, v4, {(1<<(beta-1))-1}")
            A(f"v_lshrrev_b32 v3, {beta}, v3")
            A(f"v_lshl_add_u32 v{r}, v3, 2, s{sBase}")
    A(f"v_and_b32 v2, 15, v{vL}")
    A(f"v_lshrrev_b32 v3, 4, v{vL}")
    A(f"v_sub_u32 v4, 0, v2")
    A(f"v_and_b32 v4, 3, v4")
    A(f"v_mul_u32_u24 v5, {A_CS}, v4")
    A(f"v_add_u32 v6, v2, v4")
    A(f"v_sub_u32 v6, 16, v6")
    A(f"v_lshl_add_u32 v6, v3, 3, v6")
    A(f"v_lshl_add_u32 v5, v6, 1, v5")
    A(f"v_add3_u32 v{vAA}, v5, s{sBase}, 16")
    A(f"v_lshlrev_b32 v5, 5, v2")
    A(f"v_lshl_add_u32 v6, v3, 4, v5")
    A(f"s_add_u32 s{sT}, s{sBase}, {A_U+32}")
    A(f"v_add_u32 v{vBA}, s{sT}, v6")
    A(f"v_lshl_add_u32 v6, v3, 3, v5")
    A(f"s_lshl_b32 s{sT}, s{sD}, 12")
    A(f"v_add_u32 v{vOA}, s{sT}, v6")
    A(f"v_and_b32 v2, 31, v{vL}")
    A(f"v_lshrrev_b32 v3, 5, v{vL}")
    A(f"v_mul_u32_u24 v4, {SROW}, v2")
    A(f"v_lshl_add_u32 v4, v3, 4, v4")
    A(f"v_add_u32 v{vFX}, s{sBase}, v4")
    A(f"v_lshlrev_b32 v4, 5, v2")
    A(f"v_lshl_add_u32 v4, v3, 4, v4")
    A(f"v_add_u32 v{vTW0}, s{sBase}, v4")
    A(f"v_cmp_eq_u32 vcc, 0, v3")
    A(f"v_lshlrev_b32 v4, 4, v2")
    A(f"v_lshlrev_b32 v5, 3, v2")
    A(f"v_add_u32 v6, 1024, v4")
    A(f"v_add_u32 v7, 1536, v5")
    A(f"v_cndmask_b32 v6, v7, v6, vcc")
    A(f"v_add_u32 v{vTW1}, s{sBase}, v6")
    A(f"v_add_u32 v6, 1032, v4")
    A(f"v_add_u32 v7, 1792, v5")
    A(f"v_cndmask_b32 v6, v7, v6, vcc")
    A(f"v_add_u32 v{vTW2}, s{sBase}, v6")
    A(f"v_lshlrev_b32 v4, 2, v2")
    A(f"v_lshl_add_u32 v4, v3, 9, v4")
    A(f"s_add_u32 s{sT}, s{sBase}, 2048")
    A(f"v_add_u32 v{vTW3}, s{sT}, v4")
    A(f"v_lshlrev_b32 v4, 4, v0")
    A(f"v_add_u32 v{vUW}, {A_U+512}, v4")
    A(f"v_mov_b32 v2, 0")
    A(f"v_mov_b32 v3, 0")
    A(f"s_add_u32 s{sT}, s{sBase}, {A_U}")
    A(f"v_lshl_add_u32 v4, v{vL}, 3, s{sT}")
    A(f"ds_write_b64 v4, v[2:3]")
    A(f"s_mov_b32 m0, s{sBase}")
    A(f"v_mov_b32 v5, 0x3f80")
    A(f"ds_write_addtid_b32 v5 offset:{21*SROW}")
    for i in range(0, 80, 2):
        A(f"v_pk_mov_b32 {v(vAcc+i,2)}, v[2:3], v[2:3]")
    stamp(A, 1)
    A("s_waitcnt vmcnt(8)")
    stamp(A, 2)
    A(f"v_lshlrev_b32 v2, 16, v{vP+12}")
    A(f"v_mul_f32 v2, {hex(f2u(LOG2E))}, v2")
    A(f"v_exp_f32 v2, v2")
    A(f"v_cmp_eq_u32 vcc, 0, v{vL}")
    A(f"v_lshlrev_b32 v3, 16, v{vP+13}")
    A(f"v_cvt_pk_bf16_f32 v2, v2, v2")
    A(f"v_cndmask_b32 v{vDsk}, 0, v3, vcc")
    A(f"v_and_b32 v2, 0xffff0000, v2")
    for p in range(3):
        for i in range(6):
            src = vP + i if p < 2 else vP + 6 + i
            if p == 1: A(f"v_and_b32 v{4+i}, 0xffff0000, v{src}")
            else:      A(f"v_lshlrev_b32 v{4+i}, 16, v{src}")
        d = vDer + 4*p
        A(f"v_pk_mul_f32 v[4:5], v[4:5], v[2:3] op_sel_hi:[1,0]")
        A(f"v_pk_mul_f32 v[6:7], v[6:7], v[2:3] op_sel_hi:[1,0]")
        A(f"v_mul_f32 v{d}, {hex(f2u(LOG2E))}, v4")
        A(f"v_mul_f32 v{d+1}, 0.15915494, v5")
        A(f"v_pk_mul_f32 v[10:11], v[8:9], v[6:7] op_sel_hi:[1,0]")
        A(f"v_pk_fma_f32 {v(d+2,2)}, v[8:9], v[6:7], v[10:11] op_sel:[1,1,0] op_sel_hi:[0,1,1] neg_lo:[1,0,0]")
    A(f"s_mov_b32 s{sCnt}, 3")
    A(f"s_mov_b32 s{sT}, {hex(f2u(8.0))}")
    A(f"s_mov_b32 s{sT2}, {hex(f2u(256.0))}")
    stamp(A, 3)
    A(".p2align 3")
    A.label("A_pass")
    body = []
    def cexp(dst, t, scale):
        if scale is None:
            return [f"v_exp_f32 v{t}, v{vDer}", f"v_fract_f32 v{t+1}, v{vDer+1}",
                    f"v_cos_f32 v{dst}, v{t+1}", f"v_sin_f32 v{dst+1}, v{t+1}",
                    f"v_pk_mul_f32 {v(dst,2)}, {v(dst,2)}, {v(t,2)} op_sel_hi:[1,0]"]
        return [f"v_mul_f32 v{t}, s{scale}, v{vDer}", f"v_mul_f32 v{t+1}, s{scale}, v{vDer+1}",
                f"v_exp_f32 v{t}, v{t}", f"v_fract_f32 v{t+1}, v{t+1}",
                f"v_cos_f32 v{dst}, v{t+1}", f"v_sin_f32 v{dst+1}, v{t+1}",
                f"v_pk_mul_f32 {v(dst,2)}, {v(dst,2)}, {v(t,2)} op_sel_hi:[1,0]"]
    e1, e2, e3 = cexp(vW, 2, sT), cexp(vZ, 4, None), cexp(vZZ, 6, sT2)
    for i in range(7):
        for e in (e1, e2, e3):
            if i < len(e): body.append(e[i])
    def P(k): return vS + 6*k
    C = vDer + 2
    X2, X4, X6 = 8, 10, 12
    s1 = [(vW2, vW, vW, 21+2, 0)] + [(P(0), vW2 if j == 4 else P(0), vW2, 21+j, 0) for j in range(4, 32, 2)]
    s2 = [(vW, None, None, 21+1, 0)] + [(P(1), vW if j == 3 else P(1), vW2, 21+j, 0) for j in range(3, 32, 2)]
    s3 = [(C, None, None, 0, 1), (P(2), C, vZ, 1, 1), (X2, P(2), vZ, 2, 1), (P(2), X2, vZ, 3, 1), (X4, P(2), vZ, 4, 1),
          (P(2), X4, vZ, 5, 1), (X6, P(2), vZ, 6, 1), (P(2), X6, vZ, 7, 1),
          (P(2), X4, vZZ, 10, 1), (P(2), P(2), vZZ, 13, 1), (P(2), P(2), vZZ, 15, 1)]
    s4 = [(P(3), C, vZZ, 8, 1), (P(3), P(3), vZZ, 12, 1), (P(3), P(3), vZZ, 14, 1), (P(3), P(3), vZZ, 16, 1),
          (P(3), P(3), vZZ, 17, 1), (P(3), P(3), vZZ, 18, 1), (P(3), P(3), vZZ, 19, 1), (P(3), P(3), vZZ, 20, 1),
          (P(3), X2, vZZ, 9, 1), (P(3), X6, vZZ, 11, 1)]
    streams = [s1, s2, s3, s4]
    rounds = []
    for i in range(16):
        ops = [(k, st[i]) for k, st in enumerate(streams) if i < len(st)]
        r = []
        for k, (d, sr, m, row, ng) in ops:
            if sr is not None: r.append(f"v_pk_mul_f32 {v(P(k)+2,2)}, {v(sr,2)}, {v(m,2)} op_sel_hi:[1,0]")
        for k, (d, sr, m, row, ng) in ops:
            if sr is not None: r.append(f"v_pk_fma_f32 {v(d,2)}, {v(sr,2)}, {v(m,2)}, {v(P(k)+2,2)} op_sel:[1,1,0] op_sel_hi:[0,1,1] neg_lo:[1,0,0]")
        for k, (d, sr, m, row, ng) in ops:
            r.append(f"v_cvt_pk_bf16_f32 v{P(k)+4}, v{d}, {'-' if ng else ''}v{d+1}")
        for k, (d, sr, m, row, ng) in ops:
            r.append(f"ds_write_addtid_b32 v{P(k)+4} offset:{row*SROW}")
        rounds.append(r)
    mf = [f"v_mfma_f32_32x32x16_bf16 {v(vAcc,16)}, {v(vFr+8*q,4)}, {v(vFr+8*q+4,4)}, {v(vAcc,16)}" for q in range(8)]
    for l in body: A(l)
    A("s_waitcnt lgkmcnt(0)")
    for i, r in enumerate(rounds):
        if i < 8: A(mf[i])
        for l in r: A(l)
    for q in range(8):
        A(f"ds_read_b128 {v(vFr+8*q,4)}, v{vFX} offset:{32*q}")
        A(f"ds_read_b128 {v(vFr+8*q+4,4)}, v{vFX} offset:{32*q+21*SROW}")
    for i in range(0, 8, 2):
        A(f"v_pk_mov_b32 {v(vDer+i,2)}, {v(vDer+4+i,2)}, {v(vDer+4+i,2)} op_sel:[0,1]")
    A(f"s_sub_u32 s{sCnt}, s{sCnt}, 1")
    A(f"s_cmp_lg_u32 s{sCnt}, 0")
    A("s_cbranch_scc1 A_pass")
    stamp(A, 4)
    A("s_waitcnt vmcnt(0)")
    stamp(A, 5)
    perm = []
    for ch in range(4):
        for i in range(4):
            perm.append(f"v_perm_b32 v{vS+4*ch+i}, v{vU+4*i+2+ch//2}, v{vU+4*i+ch//2}, s{sSelHi if ch%2 else sSelLo}")
    for q in range(8):
        A(f"s_waitcnt lgkmcnt({min(15,14-2*q)})")
        A(mf[q])
        A(perm[2*q]); A(perm[2*q+1])
    for ch in range(4):
        A(f"ds_write_b128 v{vUW}, {v(vS+4*ch,4)} offset:{ch*A_CH}")
    A(f"v_add_f32 v{vAcc}, v{vAcc}, v{vDsk}")
    A(f"ds_write_b128 v{vTW0}, {v(vAcc,4)}")
    A(f"ds_write_b64 v{vTW1}, {v(vAcc+4,2)}")
    A(f"ds_write_b64 v{vTW2}, {v(vAcc+6,2)}")
    for i in range(4):
        A(f"ds_write_b32 v{vTW3}, v{vAcc+8+i} offset:{128*i}")
    vE, vO = 192, 208
    def gather(rp):
        beta = 0 if rp < 2 else 1 if rp < 4 else 2 if rp < 8 else 3
        base = [0, 256, 384, 512][beta]; r0 = [0, 2, 4, 8][beta]
        off = 4 * (base + (128 >> beta) * (rp - r0))
        for e in range(3):
            if beta == 0: A(f"ds_read_b32 v{vFr+3*rp+e}, v{vG} offset:{off+4*e}")
            else: A(f"ds_read_b32 v{vFr+3*rp+e}, v{vG+1+3*(beta-1)+e} offset:{off}")
    for rp in range(16): gather(rp)
    A(f"v_cmp_eq_u32 vcc, 0, v{vL}")
    A(f"v_cvt_pk_bf16_f32 v2, v{vAcc}, 0")
    A(f"v_mov_b32 v3, 0")
    A(f"v_cndmask_b32 v2, 0, v2, vcc")
    A(f"s_add_u32 s{sT}, s{sBase}, 12")
    A(f"s_mov_b32 m0, s{sT}")
    for rp in range(16):
        n = 45 - 3*rp
        if n <= 15: A(f"s_waitcnt lgkmcnt({n})")
        elif rp == 0: A(f"s_waitcnt lgkmcnt(15)")
        A(f"v_cvt_pk_bf16_f32 v{vE+rp}, v{vFr+3*rp+2}, v{vFr+3*rp+1}")
        A(f"v_cvt_pk_bf16_f32 v{vO+rp}, v{vFr+3*rp+1}, v{vFr+3*rp}")
    for rp in range(16):
        rho = 15 - rp
        A(f"ds_write_addtid_b32 v{vE+rp} offset:{4+256*rho}")
        A(f"ds_write_addtid_b32 v{vO+rp} offset:{4+A_CS+256*rho}")
        A(f"ds_write_addtid_b32 v{vE+rp} offset:{2*A_CS+256*rho}")
        A(f"ds_write_addtid_b32 v{vO+rp} offset:{3*A_CS+256*rho}")
    A("s_mov_b64 exec, 0x7fff")
    A(f"ds_write_addtid_b32 v2 offset:{4+4096}")
    A(f"ds_write_addtid_b32 v3 offset:{4+A_CS+4096}")
    A(f"ds_write_addtid_b32 v2 offset:{2*A_CS+4096}")
    A(f"ds_write_addtid_b32 v3 offset:{3*A_CS+4096}")
    A("s_mov_b64 exec, -1")
    A("s_waitcnt lgkmcnt(0)")
    stamp(A, 6)
    A("s_barrier")
    stamp(A, 7)
    vY = 80
    sets = [128, 192]
    def reads(r):
        base = sets[r % 2]
        L = []
        for a in range(8):
            c = 8*a + r
            L.append([f"ds_read_b64 {v(base+4*a,2)}, v{vAA} offset:{64*(63-c)}",
                      f"ds_read_b64 {v(base+4*a+2,2)}, v{vAA} offset:{64*(63-c)+8}",
                      f"ds_read_b128 {v(base+32+4*a,4)}, v{vBA} offset:{512*a+64*(7-r)}"])
        return [x for g in L for x in g]
    for l in reads(0): A(l)
    for r in range(8):
        base = sets[r % 2]
        nxt = reads(r+1) if r < 7 else []
        A("s_waitcnt lgkmcnt(0)")
        pairs = [(a, b) for a in range(8) for b in range(8-a)]
        for i, (a, b) in enumerate(pairs):
            t = a + b
            c = "0" if (r == 0 and a == 0) else v(vY+4*t,4)
            A(f"v_mfma_f32_16x16x32_bf16 {v(vY+4*t,4)}, {v(base+4*a,4)}, {v(base+32+4*b,4)}, {c}")
            if i < len(nxt): A(nxt[i])
    stamp(A, 8)
    for t in range(8):
        A(f"v_cvt_pk_bf16_f32 v{2+2*(t%4)}, v{vY+4*t}, v{vY+4*t+1}")
        A(f"v_cvt_pk_bf16_f32 v{3+2*(t%4)}, v{vY+4*t+2}, v{vY+4*t+3}")
        A(f"global_store_dwordx2 v{vOA}, {v(2+2*(t%4),2)}, {s(S_WS,2)} offset:{512*t}")
    endpgm(A, kidx)

def kernel_text(name, A, vgpr=256, sgpr=96):
    A.pad()
    return f""".globl {name}
.p2align 8
.type {name},@function
{name}:
{A.text()}""", f""".amdhsa_kernel {name}
  .amdhsa_next_free_vgpr {vgpr}
  .amdhsa_next_free_sgpr {sgpr}
  .amdhsa_accum_offset {min(256,(vgpr+3)//4*4)}
  .amdhsa_group_segment_fixed_size 0
  .amdhsa_kernarg_size 128
  .amdhsa_user_sgpr_count 2
  .amdhsa_user_sgpr_kernarg_segment_ptr 1
  .amdhsa_system_sgpr_workgroup_id_x 1
.end_amdhsa_kernel
"""

def emit(kernels, launches, path):
    hdr = open("cdna_kernels/%s.s.ref" % NAME).read().split("; Override launch")[0]
    out = hdr
    for (k, g, b, l) in launches:
        out += f"; @launch kernel={k} grid=({g},1,1) block=({b},1,1) lds={l}\n"
    out += '.amdgcn_target "amdgcn-amd-amdhsa--gfx950"\n.text\n'
    for code, kd in kernels: out += code
    out += '.section .rodata,"a"\n'
    for code, kd in kernels: out += ".p2align 6\n" + kd
    open(path, "w").write(out)

if __name__ == "__main__":
    A = Asm()
    prologue(A)
    A("s_cmp_ge_u32 s2, 160")
    A("s_cbranch_scc1 A_exit")
    A("s_and_b32 s3, s2, 7"); A("s_mul_i32 s3, s3, 20"); A("s_lshr_b32 s4, s2, 3"); A("s_add_u32 s3, s3, s4")
    block_A(A, 3)
    A.label("A_exit"); A("s_endpgm")
    emit([kernel_text("a_kernel", A)], [("a_kernel", 160, 256, A_LDS)], "k.s")
```

```python
import gen
from gen import *

G_X = 0
G_W = 32768
G_WS = 10368
G_GW = G_W + 4*G_WS
G_LDS = G_GW + 2560
KVH = 1680

def srd(A, d, ptr, nbytes):
    A(f"s_mov_b32 s{d}, s{ptr}")
    A(f"s_and_b32 s{d+1}, s{ptr+1}, 0xffff")
    A(f"s_mov_b32 s{d+2}, {nbytes}")
    A(f"s_mov_b32 s{d+3}, 0x20000")

def setexec(A, mask):
    lo, hi = mask & 0xffffffff, mask >> 32
    if mask == (1<<64)-1: A("s_mov_b64 exec, -1"); return
    A(f"s_mov_b32 exec_lo, {hex(lo)}"); A(f"s_mov_b32 exec_hi, {hex(hi)}")

def block_G(A, q, sRB, sCG, sRot, L, sync=None, kidx=0):
    sW, sT, sT2, sKx, sKw, sMx, sMw, sCnt, sRH, sCH = 40, 41, 42, 43, 44, 45, 46, 47, 56, 57
    SX, SWq = 48, 52
    vL = 1
    vXA = 8
    vWA = 12
    vRA = 15
    vRB, vRT = 17, 18
    vGA = 19
    vGF = 20
    vGacc = 28
    vB = 32
    vA = 72
    vAcc = 136
    A(f"v_and_b32 v{vL}, 63, v0")
    A(f"v_lshrrev_b32 v2, 6, v0")
    A(f"v_readfirstlane_b32 s{sW}, v2")
    A(f"v_lshrrev_b32 v3, 3, v{vL}")
    A(f"v_lshl_add_u32 v3, v2, 5, v3")
    A(f"v_and_b32 v4, 7, v{vL}")
    A(f"v_lshrrev_b32 v5, 4, v{vL}")
    A(f"v_xor_b32 v4, v4, v5")
    A(f"s_lshl_b32 s{sT}, s{sRB}, 7")
    if q: A(f"s_lshl_b32 s{sT2}, s{sCG}, 4")
    for j in range(4):
        A(f"v_add_u32 v6, {8*j}, v3")
        if q: A(f"v_xor_b32 v6, s{sT2}, v6")
        A(f"v_add_u32 v6, s{sT}, v6")
        A(f"v_mul_u32_u24 v6, 1280, v6")
        if j & 1:
            A(f"v_xor_b32 v7, 4, v4")
            A(f"v_lshl_add_u32 v{vXA+j}, v7, 4, v6")
        else:
            A(f"v_lshl_add_u32 v{vXA+j}, v4, 4, v6")
    if q:
        A(f"s_mul_i32 s{sT}, s{sCG}, 320"); S1, S2 = 80, 160
    else:
        A(f"s_mul_i32 s{sT}, s{sCG}, 160"); A(f"s_add_u32 s{sT}, s{sT}, 1280"); S1, S2 = 1280, 80
    A(f"s_mul_i32 s{sT2}, s{sW}, {8*3840}")
    A(f"s_add_u32 s{sT}, s{sT}, s{sT2}")
    for j in range(3):
        A(f"v_add_u32 v3, {64*j}, v{vL}")
        A(f"v_mul_u32_u24 v4, 3277, v3")
        A(f"v_lshrrev_b32 v4, 16, v4")
        A(f"v_mul_u32_u24 v5, 20, v4")
        A(f"v_sub_u32 v3, v3, v5")
        A(f"v_mul_u32_u24 v5, 52, v3")
        A(f"v_lshrrev_b32 v5, 8, v5")
        A(f"v_mul_u32_u24 v6, 5, v5")
        A(f"v_sub_u32 v3, v3, v6")
        A(f"v_mul_u32_u24 v4, 3840, v4")
        A(f"v_lshl_add_u32 v4, v3, 4, v4")
        A(f"v_and_b32 v6, 1, v5")
        A(f"v_mul_u32_u24 v6, {S1}, v6")
        A(f"v_lshrrev_b32 v5, 1, v5")
        A(f"v_mul_u32_u24 v5, {S2}, v5")
        A(f"v_add3_u32 v4, v4, v5, v6")
        A(f"v_add_u32 v4, s{sT}, v4")
        if j: A(f"v_subrev_u32 v{vWA+j}, {1024*j}, v4")
        else: A(f"v_mov_b32 v{vWA}, v4")
    A(f"s_lshl_b32 s{sMx}, s{sW}, 12")
    A(f"s_mul_i32 s{sMw}, s{sW}, 2592")
    A(f"s_add_u32 s{sMw}, s{sMw}, {G_W}")
    A(f"s_lshl_b32 s{sKx}, s{sRot}, 7")
    A(f"s_mul_i32 s{sKw}, s{sRot}, {64*3840}")
    A("s_waitcnt lgkmcnt(0)")
    srd(A, SX, S_U, 2048*1280)
    srd(A, SWq, S_WQKV, 640*3840)
    def dmaX(slot):
        Lx = []
        for j in range(4):
            Lx.append([f"s_add_u32 m0, s{sMx}, {G_X + 16384*slot + 1024*j}",
                       "s_nop 0",
                       f"buffer_load_dwordx4 v{vXA+j}, {s(SX,4)}, s{sKx} offen lds"])
        Lx[-1] += [f"s_add_u32 s{sKx}, s{sKx}, 128", f"s_cmp_eq_u32 s{sKx}, 1280", f"s_cselect_b32 s{sKx}, 0, s{sKx}"]
        return Lx
    def dmaW(slot):
        return [[f"s_add_u32 m0, s{sMw}, {G_WS*slot}", "s_nop 0",
                 f"buffer_load_dwordx4 v{vWA}, {s(SWq,4)}, s{sKw} offen lds"],
                [f"buffer_load_dwordx4 v{vWA+1}, {s(SWq,4)}, s{sKw} offen offset:1024 lds"],
                ["s_mov_b32 exec_hi, 0",
                 f"buffer_load_dwordx4 v{vWA+2}, {s(SWq,4)}, s{sKw} offen offset:2048 lds",
                 "s_mov_b32 exec_hi, -1",
                 f"s_add_u32 s{sKw}, s{sKw}, {32*3840}", f"s_cmp_eq_u32 s{sKw}, {640*3840}", f"s_cselect_b32 s{sKw}, 0, s{sKw}"]]
    def flat(LL):
        for g in LL:
            for l in g: A(l)
    if q:
        A(f"v_cmp_gt_u32 vcc, 80, v0")
        A(f"v_subrev_u32 v3, 80, v0")
        A(f"v_cndmask_b32 v3, v3, v0, vcc")
        A(f"v_min_u32 v3, 79, v3")
        A(f"v_lshlrev_b32 v3, 4, v3")
        A(f"global_load_dwordx4 {v(vGF,4)}, v3, {s(S_GW,2)}")
    flat(dmaX(0)); flat(dmaW(0)); flat(dmaW(1)); flat(dmaX(1)); flat(dmaW(2)); flat(dmaW(3))
    A(f"s_lshr_b32 s{sRH}, s{sW}, 1")
    A(f"s_and_b32 s{sCH}, s{sW}, 1")
    A(f"v_and_b32 v2, 15, v{vL}")
    A(f"v_lshrrev_b32 v3, 4, v{vL}")
    A(f"v_lshrrev_b32 v4, 1, v2")
    A(f"v_xor_b32 v4, v4, v3")
    A(f"v_lshlrev_b32 v5, 7, v2")
    A(f"s_lshl_b32 s{sT}, s{sRH}, 13")
    A(f"v_add_u32 v5, s{sT}, v5")
    A(f"v_lshl_add_u32 v{vRA}, v4, 4, v5")
    A(f"v_xor_b32 v{vRA+1}, 64, v{vRA}")
    A(f"v_lshrrev_b32 v4, 2, v2")
    A(f"v_and_b32 v5, 3, v2")
    A(f"v_mul_u32_u24 v6, 2592, v3")
    A(f"v_mul_u32_u24 v4, 320, v4")
    A(f"s_mul_i32 s{sT}, s{sCH}, 160")
    A(f"s_add_u32 s{sT}, s{sT}, {G_W}")
    A(f"v_add3_u32 v6, v6, v4, s{sT}")
    A(f"v_lshl_add_u32 v{vRB}, v5, 3, v6")
    A(f"v_mul_u32_u24 v5, 40, v5")
    A(f"v_add3_u32 v{vRT}, v5, v6, 32")
    if q:
        A(f"s_lshl_b32 s{sT}, s{sRot}, 7")
        A(f"s_add_u32 s{sT}, s{sT}, {G_GW}")
        A(f"v_lshl_add_u32 v{vGA}, v3, 4, s{sT}")
        A(f"v_lshlrev_b32 v3, 4, v0")
        A(f"v_add_u32 v3, {G_GW}, v3")
        A(f"v_cmp_gt_u32 vcc, 160, v0")
        A("s_waitcnt vmcnt(20)")
        A(f"s_and_saveexec_b64 s[58:59], vcc")
        A(f"ds_write_b128 v3, {v(vGF,4)}")
        A(f"s_mov_b64 exec, -1")
    A("v_mov_b32 v2, 0"); A("v_mov_b32 v3, 0")
    for i in range(0, 80, 2): A(f"v_pk_mov_b32 {v(vAcc+i,2)}, v[2:3], v[2:3]")
    if q:
        for i in range(0, 4, 2): A(f"v_pk_mov_b32 {v(vGacc+i,2)}, v[2:3], v[2:3]")
    def reads(i):
        R = []
        bs = vB + 20*(i % 2)
        wo = G_WS * (i % 4)
        for t in range(5):
            for h in range(2):
                if t < 4: R.append(f"ds_read_b64_tr_b16 {v(bs+4*t+2*h,2)}, v{vRB} offset:{wo+1280*h+40*t}")
                else:     R.append(f"ds_read_b64_tr_b16 {v(bs+4*t+2*h,2)}, v{vRT} offset:{wo+1280*h}")
        RA = []
        if i % 2 == 0:
            j = (i // 2) % 2
            for ks in range(2):
                for mt in range(4):
                    RA.append(f"ds_read_b128 {v(vA+32*j+16*ks+4*mt,4)}, v{vRA+ks} offset:{G_X+16384*j+2048*mt}")
        RG = [f"ds_read_b128 {v(vGF+4*(i%2),4)}, v{vGA} offset:{64*i}"] if q else []
        return RA[:4] + R + RG + RA[4:]
    def mfmas(i):
        M = []
        bs = vB + 20*(i % 2); aa = vA + 32*((i//2) % 2) + 16*(i % 2)
        for t in range(5):
            for mt in range(4):
                d = v(vAcc + 20*mt + 4*t, 4)
                if q: M.append(f"v_mfma_f32_16x16x32_bf16 {d}, {v(bs+4*t,4)}, {v(aa+4*mt,4)}, {d}")
                else: M.append(f"v_mfma_f32_16x16x32_bf16 {d}, {v(aa+4*mt,4)}, {v(bs+4*t,4)}, {d}")
        if q: M.append(f"v_mfma_f32_16x16x32_bf16 {v(vGacc,4)}, {v(vGF+4*(i%2),4)}, {v(aa,4)}, {v(vGacc,4)}")
        return M
    def step(i, dma, nwait, last=False):
        M = mfmas(i)
        A("s_waitcnt lgkmcnt(0)")
        A(M[0]); A(M[1])
        if not last:
            A(f"s_waitcnt vmcnt({nwait})")
            A("s_barrier")
        fill = []
        rd = [] if last else [[x] for x in reads(i+1)]
        dm = []
        if dma:
            if i % 2 == 0: dm += dmaX((i//2) % 2)
            dm += dmaW(i % 4)
        k = 0
        while rd or dm:
            if rd: fill.append(rd.pop(0))
            if dm and (k % 2 == 1 or not rd): fill.append(dm.pop(0))
            k += 1
        n = len(M) - 2
        for mi in range(n):
            lo, hi = (mi * len(fill)) // (n-3) if mi < n-3 else len(fill), ((mi+1) * len(fill)) // (n-3) if mi < n-3 else len(fill)
            for g in fill[lo:hi]:
                for l in g: A(l)
            A(M[2+mi])
    stamp(A, 1)
    A("s_waitcnt vmcnt(13) lgkmcnt(0)")
    A("s_barrier")
    stamp(A, 2)
    for l in reads(0): A(l)
    A(f"s_mov_b32 s{sCnt}, 4")
    A(".p2align 3")
    A.label(f"{L}_loop")
    for i in range(4):
        step(i, True, 10)
    if q: A(f"v_add_u32 v{vGA}, 256, v{vGA}")
    A(f"s_sub_u32 s{sCnt}, s{sCnt}, 1")
    A(f"s_cmp_lg_u32 s{sCnt}, 0")
    A(f"s_cbranch_scc1 {L}_loop")
    stamp(A, 3)
    step(0, False, 10); step(1, False, 3); step(2, False, 0); step(3, False, 0, last=True)
    stamp(A, 4)
    sLg = 60
    A(f"s_mov_b32 s{sLg}, {hex(f2u(LOG2E))}"); A(f"s_mov_b32 s{sLg+1}, {hex(f2u(LOG2E))}")
    A(f"s_mov_b32 s62, {hex(f2u(1e-6))}")
    def phi4(src, dst, tmp):
        return [f"v_pk_mul_f32 {v(tmp,2)}, {v(src,2)}, {s(sLg,2)}",
                f"v_pk_mul_f32 {v(tmp+2,2)}, {v(src+2,2)}, {s(sLg,2)}",
                f"v_exp_f32 v{tmp}, v{tmp} clamp", f"v_exp_f32 v{tmp+1}, v{tmp+1} clamp",
                f"v_exp_f32 v{tmp+2}, v{tmp+2} clamp", f"v_exp_f32 v{tmp+3}, v{tmp+3} clamp",
                f"v_max_f32 v{tmp+4}, s62, v{src}", f"v_max_f32 v{tmp+5}, s62, v{src+1}",
                f"v_max_f32 v{tmp+6}, s62, v{src+2}", f"v_max_f32 v{tmp+7}, s62, v{src+3}",
                f"v_pk_add_f32 {v(tmp,2)}, {v(tmp,2)}, {v(tmp+4,2)}",
                f"v_pk_add_f32 {v(tmp+2,2)}, {v(tmp+2,2)}, {v(tmp+6,2)}",
                f"v_cvt_pk_bf16_f32 v{dst}, v{tmp}, v{tmp+1}",
                f"v_cvt_pk_bf16_f32 v{dst+1}, v{tmp+2}, v{tmp+3}"]
    def cvt4(src, dst):
        return [f"v_cvt_pk_bf16_f32 v{dst}, v{src}, v{src+1}", f"v_cvt_pk_bf16_f32 v{dst+1}, v{src+2}, v{src+3}"]
    acc = lambda mt, t: vAcc + 20*mt + 4*t
    if not q:
        op = lambda nm, p: 32 + 8*["K0","K1","V0","V1","TA","TB"].index(nm) + 4*p
        vPp = 80; tmp = 108
        A(f"v_and_b32 v2, 15, v{vL}"); A(f"v_lshrrev_b32 v3, 4, v{vL}")
        A(f"s_mul_i32 s{sT}, s{sRH}, 6720"); A(f"s_mul_i32 s{sT2}, s{sCH}, {2*KVH}"); A(f"s_add_u32 s{sT}, s{sT}, s{sT2}")
        A(f"v_mul_u32_u24 v4, 80, v2")
        A(f"v_add_u32 v4, s{sT}, v4")
        A(f"v_lshl_add_u32 v5, v3, 4, v4")
        A(f"v_and_b32 v6, 3, v2")
        A(f"v_add_u32 v6, 16, v6")
        A(f"v_cmp_eq_u32 vcc, 0, v2")
        A(f"v_mov_b32 v7, 20")
        A(f"v_cndmask_b32 v6, v6, v7, vcc")
        A(f"v_mul_u32_u24 v6, 80, v6")
        A(f"v_add_u32 v6, s{sT}, v6")
        A(f"v_lshl_add_u32 v7, v3, 4, v6")
        A(f"v_mul_u32_u24 v8, {KVH}, v3")
        A(f"v_add_u32 v8, v8, v6")
        A(f"v_cmp_gt_u32 vcc, 8, v2")
        A(f"v_mov_b32 v9, 0x3f803f80")
        for p in range(2):
            for half in range(2):
                mt = 2*p + half
                for l in cvt4(acc(mt,2), op("V0",p)+2*half): A(l)
                for l in cvt4(acc(mt,3), op("V1",p)+2*half): A(l)
                for l in cvt4(acc(mt,4), op("TB",p)+2*half): A(l)
                for k in range(2): A(f"v_cndmask_b32 v{op('TB',p)+2*half+k}, v{op('TB',p)+2*half+k}, v9, vcc")
                for l in phi4(acc(mt,0), op("K0",p)+2*half, tmp): A(l)
                for l in phi4(acc(mt,1), op("K1",p)+2*half, tmp+8): A(l)
                for l in phi4(acc(mt,4), op("TA",p)+2*half, tmp): A(l)
            for n, (x, y) in enumerate([("K0","V0"),("K1","V1"),("K0","TB"),("K1","TB"),("TA","V0"),("TA","V1"),("TA","TB")]):
                A(f"v_mfma_f32_16x16x32_bf16 {v(vPp+4*n,4)}, {v(op(x,p),4)}, {v(op(y,p),4)}, {'0' if p==0 else v(vPp+4*n,4)}")
        stamp(A, 5)
        A(f"ds_write_b128 v5, {v(vPp,4)}")
        A(f"ds_write_b128 v5, {v(vPp+4,4)} offset:{KVH}")
        setexec(A, 0x0F010F010F010F01); A(f"ds_write_b128 v7, {v(vPp+8,4)}")
        setexec(A, 0xF001F001F001F001); A(f"ds_write_b128 v7, {v(vPp+12,4)} offset:{KVH}")
        setexec(A, 0xFFFF); A(f"ds_write_b128 v4, {v(vPp+16,4)} offset:64")
        setexec(A, 0xFFFF0000); A(f"ds_write_b128 v4, {v(vPp+20,4)} offset:{KVH+64}")
        setexec(A, 0xF0010F01); A(f"ds_write_b128 v8, {v(vPp+24,4)} offset:64")
        setexec(A, (1<<64)-1)
        A(f"v_lshlrev_b32 v2, 2, v0")
        A(f"s_mul_i32 s{sT}, s{sCG}, 6720")
        A(f"s_add_u32 s{sT}, s{sT}, {WS_KV}")
        A(f"v_add_u32 v3, s{sT}, v2")
        A(f"v_add_u32 v4, 4096, v3")
        A("s_waitcnt lgkmcnt(0)")
        A("s_barrier")
        for k in range(7):
            A(f"ds_read_b32 v{32+2*k}, v2 offset:{1024*k}")
            A(f"ds_read_b32 v{33+2*k}, v2 offset:{1024*k+6720}")
        if sync: sync["pre_atomic"](A)
        A(f"v_cmp_gt_u32 vcc, {1680-1536}, v0")
        for k in range(7):
            A(f"s_waitcnt lgkmcnt({12-2*k})")
            A(f"v_add_f32 v{32+2*k}, v{32+2*k}, v{33+2*k}")
            if k == 6:
                A("s_and_saveexec_b64 s[58:59], vcc")
                A(f"s_cbranch_execz {L}_skip")
            A(f"global_atomic_add_f32 v{3 if k<4 else 4}, v{32+2*k}, {s(S_WS,2)} offset:{1024*(k%4)}")
        A.label(f"{L}_skip")
        A("s_mov_b64 exec, -1")
        stamp(A, 6)
        if sync: sync["post_atomic"](A)
        elif gen.STAMPS: A("s_waitcnt vmcnt(0)")
        endpgm(A, kidx)
    else:
        vQ = 32; tmp = 216
        for nt in range(4):
            b = vQ + 12*nt
            for l in phi4(acc(nt,0), b, tmp): A(l)
            for l in phi4(acc(nt,4), b+2, tmp+8): A(l)
            for l in phi4(acc(nt,1), b+4, tmp): A(l)
            for l in phi4(acc(nt,2), b+6, tmp+8): A(l)
            A(f"v_pk_mov_b32 {v(b+8,2)}, {v(b+2,2)}, {v(b+2,2)} op_sel:[0,1]")
            for l in phi4(acc(nt,3), b+10, tmp): A(l)
        A(f"v_and_b32 v2, 15, v{vL}"); A(f"v_lshrrev_b32 v3, 4, v{vL}")
        A(f"v_mul_f32 v4, {hex(f2u(-LOG2E))}, v{vGacc}")
        A(f"v_exp_f32 v4, v4")
        A(f"s_lshl_b32 s{sT}, s{sRB}, 1"); A(f"s_add_u32 s{sT}, s{sT}, s{sRH}"); A(f"s_lshl_b32 s{sT}, s{sT}, 2")
        A(f"v_add_f32 v4, 1.0, v4")
        A(f"v_rcp_f32 v4, v4")
        A(f"s_add_u32 s{sT2}, s{sT}, s{sCG}")
        A(f"s_lshl_b32 s{sT2}, s{sT2}, 6")
        A(f"s_add_u32 s{sT2}, s{sT2}, {WS_G}")
        A(f"v_lshl_add_u32 v5, v2, 2, s{sT2}")
        A(f"global_store_dword v5, v4, {s(S_WS,2)}")
        A(f"s_lshl_b32 s{sT2}, s{sCG}, 1"); A(f"s_add_u32 s{sT2}, s{sT2}, s{sCH}"); A(f"s_mul_i32 s{sT2}, s{sT2}, {4*KVH}")
        A(f"s_add_u32 s{sT2}, s{sT2}, {WS_KV}")
        A(f"v_mul_u32_u24 v4, 80, v2")
        A(f"v_add_u32 v4, s{sT2}, v4")
        A(f"v_lshl_add_u32 v5, v3, 4, v4")
        A(f"v_add_u32 v10, {2*KVH}, v4")
        A(f"v_add_u32 v11, {2*KVH}, v5")
        A(f"v_lshrrev_b32 v6, 2, v2"); A(f"v_and_b32 v7, 3, v2")
        A(f"v_mul_u32_u24 v8, {KVH}, v6")
        A(f"v_mul_u32_u24 v9, 80, v7")
        A(f"v_add3_u32 v8, v8, v9, s{sT2}")
        A(f"v_lshl_add_u32 v9, v3, 4, v8")
        A(f"v_mul_u32_u24 v12, {KVH}, v7")
        A(f"v_add_u32 v12, s{sT2}, v12")
        A(f"v_lshl_add_u32 v13, v3, 4, v12")
        A(f"s_mul_i32 s63, s{sCG}, 5");
        A(f"s_lshl_b32 s64, s{sCH}, 1"); A(f"s_add_u32 s64, s64, s63"); A(f"s_lshl_b32 s64, s64, 10")
        A(f"s_add_u32 s64, s64, {WS_OF}")
        A(f"v_lshl_add_u32 v14, v{vL}, 4, s64")
        A(f"s_add_u32 s63, s63, 4"); A(f"s_lshl_b32 s63, s63, 10"); A(f"s_lshl_b32 s64, s{sCH}, 3"); A(f"s_add_u32 s63, s63, s64")
        A(f"s_add_u32 s63, s63, {WS_OF}")
        A(f"v_lshl_add_u32 v15, v{vL}, 4, s63")
        stamp(A, 5)
        if sync: sync["pre_kv"](A)
        stamp(A, 6)
        sc = " sc1" if sync else ""
        vK = 136
        for h in range(4):
            A(f"global_load_dwordx4 {v(vK+8*h,4)}, v{5 if h<2 else 11}, {s(S_WS,2)} offset:{KVH*(h%2)}{sc}")
            A(f"global_load_dwordx4 {v(vK+8*h+4,4)}, v{4 if h<2 else 10}, {s(S_WS,2)} offset:{KVH*(h%2)+64}{sc}")
        A(f"global_load_dwordx4 {v(vK+32,4)}, v9, {s(S_WS,2)} offset:1280{sc}")
        A(f"global_load_dwordx4 {v(vK+36,4)}, v8, {s(S_WS,2)} offset:{1280+64}{sc}")
        A(f"global_load_dwordx4 {v(vK+40,4)}, v13, {s(S_WS,2)} offset:1600{sc}")
        A(f"global_load_dwordx4 {v(vK+44,4)}, v12, {s(S_WS,2)} offset:{1600+64}{sc}")
        vAo = 80
        A("v_mov_b32 v16, 0"); A("v_mov_b32 v17, 0")
        for i in range(0, 48, 2): A(f"v_pk_mov_b32 {v(vAo+i,2)}, v[16:17], v[16:17]")
        A("s_waitcnt vmcnt(0)")
        stamp(A, 7)
        rep = lambda m16: m16 | m16 << 16 | m16 << 32 | m16 << 48
        for h in range(4):
            mo, to = (0, 2) if h % 2 == 0 else (2, 0)
            gm = 0xFFFF << (16*h)
            b = vAo + 12*h
            for l in cvt4(vK+8*h, b+mo): A(l)
            setexec(A, gm)
            for l in cvt4(vK+8*h+4, b+to): A(l)
            mM = rep(0xF << (4*h)); mD = rep(0x1111 << h)
            setexec(A, mM)
            for l in cvt4(vK+32, b+4+mo): A(l)
            setexec(A, mM & gm)
            for l in cvt4(vK+36, b+4+to): A(l)
            setexec(A, mD)
            for l in cvt4(vK+40, b+8+mo): A(l)
            setexec(A, mD & gm)
            for l in cvt4(vK+44, b+8+to): A(l)
            setexec(A, (1<<64)-1)
        A("s_nop 1")
        for nt in range(4):
            r = 136 + 24*nt
            for h in range(4):
                bq = vQ + 12*nt + [0, 2, 6, 8][h]
                A(f"v_mfma_f32_16x16x32_bf16 {v(r+20,4)}, {v(vAo+12*h+8,4)}, {v(bq,4)}, {'0' if h==0 else v(r+20,4)}")
            for h in range(4):
                bq = vQ + 12*nt + [0, 2, 6, 8][h]
                A(f"v_mfma_f32_16x16x32_bf16 {v(r+16,4)}, {v(vAo+12*h+4,4)}, {v(bq,4)}, {'0' if h==0 else v(r+16,4)}")
            for h in range(4):
                bq = vQ + 12*nt + [0, 2, 6, 8][h]
                A(f"v_mfma_f32_16x16x32_bf16 {v(r+4*h,4)}, {v(vAo+12*h,4)}, {v(bq,4)}, 0")
        for nt in range(4):
            r = 136 + 24*nt
            for h in range(4): A(f"v_add_f32 v{r+20+h}, s62, v{r+20+h}")
            for h in range(4): A(f"v_rcp_f32 v{r+20+h}, v{r+20+h}")
            A(f"v_mov_b32 v16, v{r+20}")
            for h in range(1, 4):
                setexec(A, 0xFFFF << (16*h)); A(f"v_mov_b32 v16, v{r+20+h}")
            setexec(A, (1<<64)-1)
            for h in range(4):
                pr = r + 20 + (h & 2)
                sel = f"op_sel:[0,{h&1}] op_sel_hi:[1,{h&1}]"
                A(f"v_pk_mul_f32 {v(r+4*h,2)}, {v(r+4*h,2)}, {v(pr,2)} {sel}")
                A(f"v_pk_mul_f32 {v(r+4*h+2,2)}, {v(r+4*h+2,2)}, {v(pr,2)} {sel}")
            A(f"v_pk_mul_f32 {v(r+16,2)}, {v(r+16,2)}, v[16:17] op_sel_hi:[1,0]")
            A(f"v_pk_mul_f32 {v(r+18,2)}, {v(r+18,2)}, v[16:17] op_sel_hi:[1,0]")
            o = 32 + 12*nt
            for h in range(4):
                for l in cvt4(r+4*h, o+2*h): A(l)
            for l in cvt4(r+16, o+8): A(l)
            A(f"s_xor_b32 s63, s{sCG}, {nt}"); A(f"s_add_u32 s63, s63, s{sT}"); A(f"s_mul_i32 s63, s63, 20480")
            A(f"s_add_u32 s64, s{S_WS}, s63"); A(f"s_addc_u32 s65, s{S_WS+1}, 0")
            A(f"global_store_dwordx4 v14, {v(o,4)}, s[64:65]")
            A(f"global_store_dwordx4 v14, {v(o+4,4)}, s[64:65] offset:1024")
            A(f"global_store_dwordx2 v15, {v(o+8,2)}, s[64:65]")
        endpgm(A, kidx)

def block_Z(A):
    A("s_lshl_b32 s3, s2, 8")
    A("v_add_u32 v1, s3, v0")
    A("v_cmp_gt_u32 vcc, 3360, v1")
    A("v_lshlrev_b32 v1, 4, v1")
    A(f"v_add_u32 v1, {WS_KV}, v1")
    for i in range(4): A(f"v_mov_b32 v{4+i}, 0")
    A("s_waitcnt lgkmcnt(0)")
    A("s_and_saveexec_b64 s[4:5], vcc")
    A("s_cbranch_execz Z_exit")
    A(f"global_store_dwordx4 v1, v[4:7], {s(S_WS,2)}")
    A.label("Z_exit"); A("s_endpgm")

F_AT = 102400
F_LDS = F_AT + 10240
def block_F(A, sRB, sCB, kidx=0):
    sW, sT, sT2, sM, sK = 40, 41, 42, 43, 44
    SWo, SAt = 48, 52
    vL = 1
    vDA = 8
    vR1, vR2, vRAt, vG, vO = 13, 14, 15, 16, 17
    vAcc = 20
    vWf = 40
    vOf = 80
    A(f"v_and_b32 v{vL}, 63, v0")
    A(f"v_lshrrev_b32 v2, 6, v0")
    A(f"v_readfirstlane_b32 s{sW}, v2")
    A(f"s_mul_i32 s{sT}, s{sCB}, 160")
    for j in range(5):
        A(f"v_add_u32 v3, {64*j}, v{vL}")
        A(f"v_mul_u32_u24 v4, 6554, v3")
        A(f"v_lshrrev_b32 v4, 16, v4")
        A(f"v_mul_u32_u24 v5, 10, v4")
        A(f"v_sub_u32 v3, v3, v5")
        A(f"v_mul_u32_u24 v4, 1280, v4")
        A(f"v_lshl_add_u32 v4, v3, 4, v4")
        if 0 < j < 4: A(f"v_subrev_u32 v4, {1024*j}, v4")
        A(f"v_add_u32 v{vDA+j}, s{sT}, v4")
    A(f"s_lshl_b32 s{sT}, s{sRB}, 2"); A(f"s_add_u32 s{sT}, s{sT}, s{sW}")
    A(f"s_mul_i32 s{sT2}, s{sT}, 20480"); A(f"s_add_u32 s{sT2}, s{sT2}, {WS_OF+4096}")
    A(f"v_lshl_add_u32 v3, v{vL}, 4, s{sT2}")
    A(f"v_add_u32 v4, 8192, v3"); A(f"v_add_u32 v5, 16384, v3")
    A(f"v_and_b32 v6, 15, v{vL}")
    A(f"s_lshl_b32 s{sT2}, s{sT}, 6"); A(f"s_add_u32 s{sT2}, s{sT2}, {WS_G}")
    A(f"v_lshl_add_u32 v7, v6, 2, s{sT2}")
    A(f"v_lshrrev_b32 v18, 3, v0"); A(f"v_and_b32 v19, 7, v0")
    A(f"v_lshlrev_b32 v18, 12, v18"); A(f"v_lshl_add_u32 v18, v19, 4, v18")
    A(f"s_mul_i32 s45, s{sCB}, {80*4096}"); A(f"s_lshl_b32 s46, s{sRB}, 7"); A(f"s_add_u32 s45, s45, s46")
    A(f"s_mul_i32 s{sM}, s{sW}, 5120")
    A(f"s_mul_i32 s{sK}, s{sW}, {32*1280}")
    A("s_waitcnt lgkmcnt(0)")
    srd(A, SWo, S_WO, 640*1280)
    srd(A, SAt, S_WS, 640*4096)
    def rnd(n):
        A(f"s_add_u32 m0, s{sM}, {20480*n}")
        A(f"s_add_u32 s47, s{sK}, {128*1280*n}")
        for j in range(4): A(f"buffer_load_dwordx4 v{vDA+j}, {s(SWo,4)}, s47 offen offset:{1024*j} lds")
        A(f"s_add_u32 m0, s{sM}, {20480*n+4096}")
        A("s_nop 0")
        A(f"buffer_load_dwordx4 v{vDA+4}, {s(SWo,4)}, s47 offen lds")
    def of(cg):
        for f in range(5*cg, 5*cg+5):
            r, o = [(3, f*1024-4096), (4, f*1024-12288), (5, f*1024-20480)][f//8]
            A(f"global_load_dwordx4 {v(vOf+4*f,4)}, v{r}, {s(S_WS,2)} offset:{o}")
    rnd(0); of(0); rnd(1); of(1); rnd(2); of(2); rnd(3); of(3); rnd(4)
    A(f"global_load_dword v{vG}, v7, {s(S_WS,2)}")
    A(f"s_lshl_b32 s46, s{sW}, 10")
    for j in range(3):
        A(f"s_add_u32 m0, s46, {F_AT + 4096*j}")
        A(f"s_add_u32 s47, s45, {32*4096*j}")
        if j == 2:
            A(f"s_cmp_ge_u32 s{sW}, 2"); A("s_cbranch_scc1 F_noat")
        A(f"buffer_load_dwordx4 v18, {s(SAt,4)}, s47 offen lds")
    A.label("F_noat")
    A(f"v_lshrrev_b32 v3, 4, v{vL}")
    A(f"v_lshrrev_b32 v4, 2, v6")
    A(f"v_and_b32 v5, 3, v6")
    A(f"v_lshl_add_u32 v7, v3, 2, v4")
    A(f"v_mul_u32_u24 v2, 160, v7")
    A(f"v_lshl_add_u32 v{vR1}, v5, 3, v2")
    A(f"v_mul_u32_u24 v2, 20, v3")
    A(f"v_add3_u32 v2, v2, v4, 16")
    A(f"v_mul_u32_u24 v2, 160, v2")
    A(f"v_lshl_add_u32 v{vR2}, v5, 3, v2")
    A(f"v_lshlrev_b32 v2, 7, v7")
    A(f"v_lshl_add_u32 v2, v5, 3, v2")
    A(f"s_lshl_b32 s46, s{sW}, 5"); A(f"s_add_u32 s46, s46, {F_AT}")
    A(f"v_add_u32 v{vRAt}, s46, v2")
    A(f"s_lshl_b32 s46, s{sT}, 4")
    A(f"v_add_u32 v2, s46, v6")
    A(f"v_mul_u32_u24 v2, 1280, v2")
    A(f"s_mul_i32 s46, s{sCB}, 160")
    A(f"v_lshl_add_u32 v2, v3, 3, v2")
    A(f"v_add_u32 v{vO}, s46, v2")
    def reads(f):
        cg, ph = divmod(f, 5)
        R = []
        for t in range(5):
            for h in range(2):
                if ph < 4: R.append(f"ds_read_b64_tr_b16 {v(vWf+20*(f%2)+4*t+2*h,2)}, v{vR1} offset:{160*(40*ph+20*h)+32*t}")
                else:      R.append(f"ds_read_b64_tr_b16 {v(vWf+20*(f%2)+4*t+2*h,2)}, v{vR2} offset:{160*(80*h)+32*t}")
        return R
    for f in range(20):
        cg, ph = divmod(f, 5)
        if ph == 0:
            stamp(A, 1+2*cg)
            A(f"s_waitcnt vmcnt({48 - 10*(cg+1) - 5})")
            A("s_barrier")
            stamp(A, 2+2*cg)
            for l in reads(f): A(l)
        A("s_waitcnt lgkmcnt(0)")
        nxt = reads(f+1) if ph < 4 else []
        for t in range(5):
            A(f"v_mfma_f32_16x16x32_bf16 {v(vAcc+4*t,4)}, {v(vWf+20*(f%2)+4*t,4)}, {v(vOf+4*f,4)}, {'0' if f==0 else v(vAcc+4*t,4)}")
            for l in nxt[2*t:2*t+2]: A(l)
        if ph == 4 and cg < 3:
            A(f"v_add_u32 v{vR1}, 25600, v{vR1}"); A(f"v_add_u32 v{vR2}, 25600, v{vR2}")
    stamp(A, 9)
    A("s_waitcnt vmcnt(0)")
    A("s_barrier")
    for t in range(5): A(f"ds_read_b64_tr_b16 {v(40+2*t,2)}, v{vRAt} offset:{2048*t}")
    for t in range(5):
        A(f"s_waitcnt lgkmcnt({4-t})")
        tm = 52 + 4*t
        A(f"v_lshlrev_b32 v{tm}, 16, v{40+2*t}"); A(f"v_and_b32 v{tm+1}, 0xffff0000, v{40+2*t}")
        A(f"v_lshlrev_b32 v{tm+2}, 16, v{41+2*t}"); A(f"v_and_b32 v{tm+3}, 0xffff0000, v{41+2*t}")
        for k in (0, 2):
            A(f"v_pk_add_f32 {v(tm+k,2)}, {v(tm+k,2)}, {v(vAcc+4*t+k,2)} neg_lo:[0,1] neg_hi:[0,1]")
            A(f"v_pk_fma_f32 {v(tm+k,2)}, {v(tm+k,2)}, {v(vG,2)}, {v(vAcc+4*t+k,2)} op_sel_hi:[1,0,1]")
        A(f"v_cvt_pk_bf16_f32 v{tm}, v{tm}, v{tm+1}"); A(f"v_cvt_pk_bf16_f32 v{tm+1}, v{tm+2}, v{tm+3}")
        A(f"global_store_dwordx2 v{vO}, {v(tm,2)}, {s(S_OUT,2)} offset:{32*t}")
    endpgm(A, kidx)

def build_v1(path):
    ks, ls = [], []
    A = Asm(); prologue(A); block_Z(A)
    ks.append(kernel_text("z_kernel", A, 16, 96)); ls.append(("z_kernel", 14, 256, 0))
    A = Asm(); prologue(A)
    A("s_cmp_ge_u32 s2, 160"); A("s_cbranch_scc1 A_exit")
    A("s_and_b32 s3, s2, 7"); A("s_mul_i32 s3, s3, 20"); A("s_lshr_b32 s4, s2, 3"); A("s_add_u32 s3, s3, s4")
    block_A(A, 3, kidx=0); A.label("A_exit"); A("s_endpgm")
    ks.append(kernel_text("a_kernel", A)); ls.append(("a_kernel", 160, 256, A_LDS))
    A = Asm(); prologue(A)
    A("s_cmp_ge_u32 s2, 128"); A("s_cbranch_scc1 KV_exit")
    A("s_and_b32 s3, s2, 15"); A("s_lshr_b32 s4, s2, 4"); A("s_mov_b32 s5, s4")
    block_G(A, False, 3, 4, 5, "KV", kidx=1); A.label("KV_exit"); A("s_endpgm")
    ks.append(kernel_text("kv_kernel", A)); ls.append(("kv_kernel", 128, 256, G_LDS))
    A = Asm(); prologue(A)
    A("s_cmp_ge_u32 s2, 64"); A("s_cbranch_scc1 Q_exit")
    A("s_and_b32 s3, s2, 15"); A("s_lshr_b32 s4, s2, 4"); A("s_lshl_b32 s5, s4, 1")
    block_G(A, True, 3, 4, 5, "Q", kidx=2); A.label("Q_exit"); A("s_endpgm")
    ks.append(kernel_text("q_kernel", A)); ls.append(("q_kernel", 64, 256, G_LDS))
    A = Asm(); prologue(A)
    A("s_cmp_ge_u32 s2, 256"); A("s_cbranch_scc1 F_exit")
    A("s_and_b32 s3, s2, 31"); A("s_lshr_b32 s4, s2, 5")
    block_F(A, 3, 4, kidx=3); A.label("F_exit"); A("s_endpgm")
    ks.append(kernel_text("f_kernel", A, 160)); ls.append(("f_kernel", 256, 256, F_LDS))
    emit(ks, ls, path)

if __name__ == "__main__":
    build_v1("k.s")
    gen.STAMPS = True
    build_v1("ks.s")
```

```python
import genG, gen
from genG import *
def mk(kind, name, sfx):
    A = Asm(); prologue(A)
    if kind == "z":
        block_Z(A); k = kernel_text(name, A, 16, 96); l = (name, 14, 256, 0)
    elif kind == "a":
        A("s_cmp_ge_u32 s2, 160"); A("s_cbranch_scc1 A_exit")
        A("s_and_b32 s3, s2, 7"); A("s_mul_i32 s3, s3, 20"); A("s_lshr_b32 s4, s2, 3"); A("s_add_u32 s3, s3, s4")
        block_A(A, 3); A.label("A_exit"); A("s_endpgm"); k = kernel_text(name, A); l = (name, 160, 256, A_LDS)
    elif kind == "kv":
        A("s_cmp_ge_u32 s2, 128"); A("s_cbranch_scc1 KV_exit")
        A("s_and_b32 s3, s2, 15"); A("s_lshr_b32 s4, s2, 4"); A("s_mov_b32 s5, s4")
        block_G(A, False, 3, 4, 5, "KV"); A.label("KV_exit"); A("s_endpgm"); k = kernel_text(name, A); l = (name, 128, 256, G_LDS)
    elif kind == "q":
        A("s_cmp_ge_u32 s2, 64"); A("s_cbranch_scc1 Q_exit")
        A("s_and_b32 s3, s2, 15"); A("s_lshr_b32 s4, s2, 4"); A("s_lshl_b32 s5, s4, 1")
        block_G(A, True, 3, 4, 5, "Q"); A.label("Q_exit"); A("s_endpgm"); k = kernel_text(name, A); l = (name, 64, 256, G_LDS)
    elif kind == "f":
        A("s_cmp_ge_u32 s2, 256"); A("s_cbranch_scc1 F_exit")
        A("s_and_b32 s3, s2, 31"); A("s_lshr_b32 s4, s2, 5")
        block_F(A, 3, 4); A.label("F_exit"); A("s_endpgm"); k = kernel_text(name, A, 160); l = (name, 256, 256, F_LDS)
    elif kind == "p":
        A("s_cmp_ge_u32 s2, 256"); A("s_cbranch_scc1 P_exit")
        A("s_lshl_b32 s3, s2, 8"); A("v_add_u32 v1, s3, v0"); A("v_lshlrev_b32 v1, 4, v1")
        A("s_waitcnt lgkmcnt(0)")
        r = 8
        for ptr, n in ((S_U,2621440),(S_WQKV,2457600),(S_WO,819200),(S_ARE,245760),(S_AIM,245760),(S_BRE,245760),(S_BIM,245760),(S_CRE,245760),(S_CIM,245760)):
            srd(A, 48, ptr, n)
            for o in range(0, n, 1<<20):
                A(f"s_mov_b32 s4, {o}"); A(f"buffer_load_dwordx4 v[{r}:{r+3}], v1, s[48:51], s4 offen"); r += 4
        A("s_waitcnt vmcnt(0)")
        A.label("P_exit"); A("s_endpgm"); k = kernel_text(name, A, 96); l = (name, 256, 256, 0)
    import re
    code = re.sub(r"\b(A_exit|A_pass|KV_\w+|Q_\w+|F_\w+|Z_exit|P_exit)\b", lambda m: m.group(1)+sfx, k[0])
    return (code, k[1]), l
def build(seq, path):
    ks, ls, seen = [], [], {}
    for it in seq:
        kind = it.rstrip("0123456789")
        if it not in seen:
            k, l = mk(kind, it+"_kernel", "_"+it); ks.append(k); seen[it] = l
        ls.append(seen[it])
    emit(ks, ls, path)
build(["z","a","kv","q","f","f2"], "e1.s")
build(["z","a","a2","kv","q","f"], "e2.s")
build(["z","z2","z3","z4","z5","a","kv","q","f"], "e3.s")
build(["p","z","a","kv","q","f"], "e4.s")
build(["p","p","z","a","kv","q","f"], "e5.s")
build(["z","a","kv","q","q2","f"], "e6.s")
```

```python
import re, sys
import exp1
src = open(sys.argv[1]).read()
kn = "gated_mix__ssm_conv_s4__linear_attn_block__prompt_kernel"
L = [l for l in src.split("\n") if l.startswith("; @launch")][0]
def add(seq, path):
    t = src; lines = []; code = ""; kds = ""; seen = set()
    for it in seq:
        if it == "m": lines.append(L); continue
        (c, kd), l = exp1.mk(it, it+"_kernel", "_"+it)
        if it == "z": l = (l[0], 256, 256, 0)
        lines.append(f"; @launch kernel={l[0]} grid=({l[1]},1,1) block=({l[2]},1,1) lds={l[3]}")
        if it not in seen: code += c; kds += ".p2align 6\n" + kd; seen.add(it)
    t = t.replace(L, "\n".join(lines))
    t = t.replace('.section .rodata,"a"\n', code + '.section .rodata,"a"\n' + kds)
    open(path, "w").write(t)
add(["m"], "x0.s"); add(["m","m"], "x1.s"); add(["z","m"], "x2.s"); add(["p","m"], "x3.s"); add(["m","m","m"], "x4.s"); add(["z","z","z","m"], "x5.s")
```

```python
import genG, gen
from genG import *
def mk(kind, name, sfx):
    A = Asm(); prologue(A)
    if kind == "z":
        block_Z(A); k = kernel_text(name, A, 16, 96); l = (name, 14, 256, 0)
    elif kind == "a":
        A("s_cmp_ge_u32 s2, 160"); A("s_cbranch_scc1 A_exit")
        A("s_and_b32 s3, s2, 7"); A("s_mul_i32 s3, s3, 20"); A("s_lshr_b32 s4, s2, 3"); A("s_add_u32 s3, s3, s4")
        block_A(A, 3); A.label("A_exit"); A("s_endpgm"); k = kernel_text(name, A); l = (name, 160, 256, A_LDS)
    elif kind == "kv":
        A("s_cmp_ge_u32 s2, 128"); A("s_cbranch_scc1 KV_exit")
        A("s_and_b32 s3, s2, 15"); A("s_lshr_b32 s4, s2, 4"); A("s_mov_b32 s5, s4")
        block_G(A, False, 3, 4, 5, "KV"); A.label("KV_exit"); A("s_endpgm"); k = kernel_text(name, A); l = (name, 128, 256, G_LDS)
    elif kind == "q":
        A("s_cmp_ge_u32 s2, 64"); A("s_cbranch_scc1 Q_exit")
        A("s_and_b32 s3, s2, 15"); A("s_lshr_b32 s4, s2, 4"); A("s_lshl_b32 s5, s4, 1")
        block_G(A, True, 3, 4, 5, "Q"); A.label("Q_exit"); A("s_endpgm"); k = kernel_text(name, A); l = (name, 64, 256, G_LDS)
    elif kind == "f":
        A("s_cmp_ge_u32 s2, 256"); A("s_cbranch_scc1 F_exit")
        A("s_and_b32 s3, s2, 31"); A("s_lshr_b32 s4, s2, 5")
        block_F(A, 3, 4); A.label("F_exit"); A("s_endpgm"); k = kernel_text(name, A, 160); l = (name, 256, 256, F_LDS)
    elif kind == "p":
        A("s_cmp_ge_u32 s2, 256"); A("s_cbranch_scc1 P_exit")
        A("s_lshl_b32 s3, s2, 8"); A("v_add_u32 v1, s3, v0"); A("v_lshlrev_b32 v1, 4, v1")
        A("s_waitcnt lgkmcnt(0)")
        r = 8
        for ptr, n in ((S_U,2621440),(S_WQKV,2457600),(S_WO,819200),(S_ARE,245760),(S_AIM,245760),(S_BRE,245760),(S_BIM,245760),(S_CRE,245760),(S_CIM,245760)):
            srd(A, 48, ptr, n)
            for o in range(0, n, 1<<20):
                A(f"s_mov_b32 s4, {o}"); A(f"buffer_load_dwordx4 v[{r}:{r+3}], v1, s[48:51], s4 offen"); r += 4
        A("s_waitcnt vmcnt(0)")
        A.label("P_exit"); A("s_endpgm"); k = kernel_text(name, A, 96); l = (name, 256, 256, 0)
    import re
    code = re.sub(r"\b(A_exit|A_pass|KV_\w+|Q_\w+|F_\w+|Z_exit|P_exit)\b", lambda m: m.group(1)+sfx, k[0])
    return (code, k[1]), l
def build(seq, path):
    ks, ls, seen = [], [], {}
    for it in seq:
        kind = it.rstrip("0123456789")
        if it not in seen:
            k, l = mk(kind, it+"_kernel", "_"+it); ks.append(k); seen[it] = l
        ls.append(seen[it])
    emit(ks, ls, path)
build(["z","a","kv","q","f","f2"], "e1.s")
build(["z","a","a2","kv","q","f"], "e2.s")
build(["z","z2","z3","z4","z5","a","kv","q","f"], "e3.s")
build(["p","z","a","kv","q","f"], "e4.s")
build(["p","p","z","a","kv","q","f"], "e5.s")
build(["z","a","kv","q","q2","f"], "e6.s")

def mk_t(name, stride, inputs):
    A = Asm(); prologue(A)
    A("s_cmp_ge_u32 s2, 256"); A(f"s_cbranch_scc1 {name}_exit")
    A(f"v_mul_u32_u24 v1, {stride}, v0")
    A("s_waitcnt lgkmcnt(0)")
    r = 8
    L = [(S_WS, 0xC00000), (S_OUT, 2621440)]
    if inputs: L += [(S_U,2621440),(S_WQKV,2457600),(S_WO,819200),(S_ARE,245760),(S_AIM,245760),(S_BRE,245760),(S_BIM,245760),(S_CRE,245760),(S_CIM,245760)]
    for ptr, n in L:
        srd(A, 48, ptr, n)
        for o in range(0, n, stride*256):
            A(f"s_mov_b32 s4, {o}"); A(f"buffer_load_dword v{r}, v1, s[48:51], s4 offen"); r += 1
    A("s_waitcnt vmcnt(0)")
    A.label(f"{name}_exit"); A("s_endpgm")
    return kernel_text(name, A, 96), (name, 256, 256, 0)
```

```python
import re, sys
import exp1
src = open(sys.argv[1]).read()
L = [l for l in src.split("\n") if l.startswith("; @launch")][0]
def add(items, path):
    t = src; lines = []; code = ""; kds = ""
    for it in items:
        if it == "m": lines.append(L); continue
        (c, kd), l = it
        lines.append(f"; @launch kernel={l[0]} grid=({l[1]},1,1) block=({l[2]},1,1) lds={l[3]}")
        code += c; kds += ".p2align 6\n" + kd
    t = t.replace(L, "\n".join(lines))
    t = t.replace('.section .rodata,"a"\n', code + '.section .rodata,"a"\n' + kds)
    open(path, "w").write(t)
add(["m"], "y0.s")
add([exp1.mk_t("t_kernel", 65536, False), "m"], "y1.s")
add([exp1.mk_t("t_kernel", 65536, True), "m"], "y2.s")
add([exp1.mk_t("t_kernel", 2097152, True), "m"], "y3.s")
add([exp1.mk("p","p_kernel","_p"), exp1.mk_t("t_kernel", 65536, True), "m"], "y4.s")
```

```python
import gen
from gen import *
from genG import srd, setexec, KVH

G_X = 0
G_W = 32768
G_WS = 10240
G_GW = G_W + 4*G_WS
G_LDS = G_GW + 2560
FULL = (1<<64)-1

def phi4(src, dst, tmp, sLg=60, sEps=62):
    return [f"v_pk_mul_f32 {v(tmp,2)}, {v(src,2)}, {s(sLg,2)}",
            f"v_pk_mul_f32 {v(tmp+2,2)}, {v(src+2,2)}, {s(sLg,2)}",
            f"v_exp_f32 v{tmp}, v{tmp} clamp", f"v_exp_f32 v{tmp+1}, v{tmp+1} clamp",
            f"v_exp_f32 v{tmp+2}, v{tmp+2} clamp", f"v_exp_f32 v{tmp+3}, v{tmp+3} clamp",
            f"v_max_f32 v{src}, s{sEps}, v{src}", f"v_max_f32 v{src+1}, s{sEps}, v{src+1}",
            f"v_max_f32 v{src+2}, s{sEps}, v{src+2}", f"v_max_f32 v{src+3}, s{sEps}, v{src+3}",
            f"v_pk_add_f32 {v(tmp,2)}, {v(tmp,2)}, {v(src,2)}",
            f"v_pk_add_f32 {v(tmp+2,2)}, {v(tmp+2,2)}, {v(src+2,2)}",
            f"v_cvt_pk_bf16_f32 v{dst}, v{tmp}, v{tmp+1}",
            f"v_cvt_pk_bf16_f32 v{dst+1}, v{tmp+2}, v{tmp+3}"]
def cvt4(src, dst):
    return [f"v_cvt_pk_bf16_f32 v{dst}, v{src}, v{src+1}", f"v_cvt_pk_bf16_f32 v{dst+1}, v{src+2}, v{src+3}"]

def G_loader(A, sRB, sXor, sB0, sS1, sS2, sRot, L):
    sT, sKx, sKw, sCnt = 41, 43, 44, 47
    SX, SWq = 48, 52
    vL = 1; vXA = 8; vWA = 24
    A(f"v_lshrrev_b32 v3, 3, v{vL}")
    A(f"v_and_b32 v4, 7, v{vL}")
    A(f"v_lshrrev_b32 v5, 4, v{vL}")
    A(f"v_xor_b32 v4, v4, v5")
    A(f"v_lshlrev_b32 v4, 4, v4")
    A(f"v_mul_u32_u24 v3, 1280, v3")
    A(f"v_add_u32 v6, v3, v4")
    A(f"v_xor_b32 v4, 64, v4")
    A(f"v_add_u32 v7, v3, v4")
    A(f"v_add_u32 v7, {8*1280 - 1024}, v7")
    A(f"s_lshl_b32 s{sT}, s{sRB}, 7")
    for p in range(8):
        A(f"s_xor_b32 s42, s{sXor}, {16*p}")
        A(f"s_add_u32 s42, s42, s{sT}")
        A(f"s_mul_i32 s42, s42, 1280")
        A(f"v_add_u32 v{vXA+2*p}, s42, v6")
        A(f"v_add_u32 v{vXA+2*p+1}, s42, v7")
    for j in range(10):
        A(f"v_add_u32 v3, {64*j}, v{vL}")
        A(f"v_mul_u32_u24 v4, 3277, v3")
        A(f"v_lshrrev_b32 v4, 16, v4")
        A(f"v_mul_u32_u24 v5, 20, v4")
        A(f"v_sub_u32 v3, v3, v5")
        A(f"v_lshrrev_b32 v5, 2, v4")
        A(f"v_and_b32 v5, 2, v5")
        A(f"v_xor_b32 v3, v3, v5")
        A(f"v_mul_u32_u24 v5, 52, v3")
        A(f"v_lshrrev_b32 v5, 8, v5")
        A(f"v_mul_u32_u24 v6, 5, v5")
        A(f"v_sub_u32 v3, v3, v6")
        A(f"v_mul_u32_u24 v4, 3840, v4")
        A(f"v_lshl_add_u32 v4, v3, 4, v4")
        A(f"v_and_b32 v6, 1, v5")
        A(f"v_mad_u32_u24 v4, v6, s{sS1}, v4")
        A(f"v_lshrrev_b32 v5, 1, v5")
        A(f"v_mad_u32_u24 v4, v5, s{sS2}, v4")
        if j % 4: A(f"v_subrev_u32 v4, {1024*(j%4)}, v4")
        A(f"v_add_u32 v{vWA+j}, s{sB0}, v4")
        if j == 0:
            A(f"s_lshl_b32 s{sKx}, s{sRot}, 7")
            A(f"s_mul_i32 s{sKw}, s{sRot}, {64*3840}")
            A("s_waitcnt lgkmcnt(0)")
            srd(A, SX, S_U, 2048*1280)
            srd(A, SWq, S_WQKV, 640*3840)
            def dmaX(slot):
                for p in range(8):
                    A(f"s_mov_b32 m0, {G_X + 16384*slot + 2048*p}")
                    A(f"buffer_load_dwordx4 v{vXA+2*p}, {s(SX,4)}, s{sKx} offen lds")
                    A(f"buffer_load_dwordx4 v{vXA+2*p+1}, {s(SX,4)}, s{sKx} offen offset:1024 lds")
                A(f"s_add_u32 s{sKx}, s{sKx}, 128"); A(f"s_cmp_eq_u32 s{sKx}, 1280"); A(f"s_cselect_b32 s{sKx}, 0, s{sKx}")
            dmaX(0)
    def dmaW(slot):
        for j in range(10):
            if j % 4 == 0: A(f"s_mov_b32 m0, {G_W + G_WS*slot + 1024*j}")
            A(f"buffer_load_dwordx4 v{vWA+j}, {s(SWq,4)}, s{sKw} offen" + (f" offset:{1024*(j%4)}" if j%4 else "") + " lds")
        A(f"s_add_u32 s{sKw}, s{sKw}, {32*3840}"); A(f"s_cmp_eq_u32 s{sKw}, {640*3840}"); A(f"s_cselect_b32 s{sKw}, 0, s{sKw}")
    dmaW(0); dmaW(1); dmaX(1); dmaW(2)
    stamp(A, 1)
    A("s_waitcnt vmcnt(36)")
    A("s_barrier")
    stamp(A, 2)
    dmaW(3)
    A(f"s_mov_b32 s{sCnt}, 4")
    A.label(f"{L}_lloop")
    for i in range(4):
        A("s_waitcnt vmcnt(36)")
        A("s_barrier")
        if i % 2 == 0: dmaX((i//2) % 2)
        dmaW(i)
    A(f"s_sub_u32 s{sCnt}, s{sCnt}, 1")
    A(f"s_cmp_lg_u32 s{sCnt}, 0")
    A(f"s_cbranch_scc1 {L}_lloop")
    stamp(A, 3)
    for n in (36, 10, 0):
        A(f"s_waitcnt vmcnt({n})")
        A("s_barrier")

def G_compute(A, q, sRB, sCG, sRot, sW, L, sync=None, kidx=0):
    sT, sT2, sRH, sCH = 41, 42, 56, 57
    vL = 1
    vRA = 2
    vRB = 4
    vGA = 9
    vGF = 12
    vGacc = 16
    vB = 20
    vA = 40
    vAcc = 88
    if q:
        A(f"v_cmp_gt_u32 vcc, 80, v0")
        A(f"v_subrev_u32 v20, 80, v0")
        A(f"v_cndmask_b32 v20, v20, v0, vcc")
        A(f"v_min_u32 v20, 79, v20")
        A(f"v_lshlrev_b32 v20, 4, v20")
        A("s_waitcnt lgkmcnt(0)")
        A(f"global_load_dwordx4 {v(vGF,4)}, v20, {s(S_GW,2)}")
    if sync and "start" in sync: sync["start"](A)
    A(f"s_lshr_b32 s{sRH}, s{sW}, 1")
    A(f"s_and_b32 s{sCH}, s{sW}, 1")
    A(f"v_and_b32 v22, 15, v{vL}")
    A(f"v_lshrrev_b32 v23, 4, v{vL}")
    A(f"v_lshrrev_b32 v24, 1, v22")
    A(f"v_xor_b32 v24, v24, v23")
    A(f"v_lshlrev_b32 v25, 7, v22")
    A(f"s_lshl_b32 s{sT}, s{sRH}, 13")
    A(f"v_add_u32 v25, s{sT}, v25")
    A(f"v_lshl_add_u32 v{vRA}, v24, 4, v25")
    A(f"v_xor_b32 v{vRA+1}, 64, v{vRA}")
    A(f"v_lshrrev_b32 v24, 2, v22")
    A(f"v_and_b32 v25, 3, v22")
    A(f"v_lshl_add_u32 v24, v23, 3, v24")
    A(f"v_mul_u32_u24 v24, 320, v24")
    A(f"v_add_u32 v24, {G_W}, v24")
    A(f"v_and_b32 v26, 1, v23"); A(f"v_lshlrev_b32 v26, 5, v26")
    A(f"s_mul_i32 s{sT}, s{sCH}, 160")
    for t in range(5):
        if t < 4:
            A(f"s_add_u32 s{sT2}, s{sT}, {40*t}")
            A(f"v_lshl_add_u32 v27, v25, 3, s{sT2}")
        else:
            A(f"s_add_u32 s{sT2}, s{sT}, 32")
            A(f"v_mul_u32_u24 v27, 40, v25")
            A(f"v_add_u32 v27, s{sT2}, v27")
        A(f"v_xor_b32 v27, v27, v26")
        A(f"v_add_u32 v{vRB+t}, v27, v24")
    if q:
        A(f"s_lshl_b32 s{sT}, s{sRot}, 7")
        A(f"s_add_u32 s{sT}, s{sT}, {G_GW}")
        A(f"v_lshl_add_u32 v{vGA}, v23, 4, s{sT}")
        A(f"v_lshlrev_b32 v20, 4, v0")
        A(f"v_add_u32 v20, {G_GW}, v20")
        A(f"v_cmp_gt_u32 vcc, 160, v0")
        A("s_waitcnt vmcnt(0)")
        A(f"s_and_saveexec_b64 s[58:59], vcc")
        A(f"ds_write_b128 v20, {v(vGF,4)}")
        A(f"s_mov_b64 exec, -1")
    A(f"s_mov_b32 s60, {hex(f2u(LOG2E))}"); A(f"s_mov_b32 s61, {hex(f2u(LOG2E))}")
    A(f"s_mov_b32 s62, {hex(f2u(1e-6))}")
    grp = lambda i: vA + 16*(i % 3)
    def rdB(i, t):
        return [f"ds_read_b64_tr_b16 {v(vB+4*t+2*h,2)}, v{vRB+t} offset:{G_WS*(i%4)+1280*h}" for h in range(2)]
    def rdA(i):
        j = (i//2) % 2
        return [f"ds_read_b128 {v(grp(i+ks)+4*mt,4)}, v{vRA+ks} offset:{G_X+16384*j+2048*mt}" for ks in range(2) for mt in range(4)]
    def rdG(i): return [f"ds_read_b128 {v(vGF,4)}, v{vGA} offset:{64*i}"] if q else []
    def mf(i, t, mt):
        d = v(vAcc + 20*mt + 4*t, 4); c = "0" if i == 0 else d
        x, y = v(grp(i)+4*mt,4), v(vB+4*t,4)
        return f"v_mfma_f32_16x16x32_bf16 {d}, {y}, {x}, {c}" if q else f"v_mfma_f32_16x16x32_bf16 {d}, {x}, {y}, {c}"
    def mfg(i): return f"v_mfma_f32_16x16x32_bf16 {v(vGacc,4)}, {v(vGF,4)}, {v(grp(i),4)}, {'0' if i==0 else v(vGacc,4)}"
    order = [0, 1, 4, 2, 3]
    stamp(A, 1)
    A("s_waitcnt lgkmcnt(0)")
    A("s_barrier")
    stamp(A, 2)
    ra = rdA(0)
    for l in ra[:4] + rdB(0, order[0]) + rdB(0, order[1]) + rdG(0) + rdB(0, order[2]) + rdB(0, order[3]) + ra[4:] + rdB(0, order[4]): A(l)
    pend = None
    for i in range(20):
        last = i == 19
        if i == 16: stamp(A, 3)
        tailn = 6 + (4 if i % 2 == 0 else 0)
        A(f"s_waitcnt lgkmcnt({tailn})")
        for mt in range(4): A(mf(i, order[0], mt))
        if q: A(mfg(i))
        for mt in range(4): A(mf(i, order[1], mt))
        A("s_waitcnt lgkmcnt(0)")
        if not last: A("s_barrier")
        ra = rdA(i+1) if (i % 2 == 1 and not last) else []
        f2 = [] if last else ra[:4] + rdB(i+1, order[0]) + rdB(i+1, order[1]) + rdG(i+1)
        def spread(ms, fl):
            for k, m_ in enumerate(ms):
                A(m_)
                lo, hi = (k*len(fl))//len(ms), ((k+1)*len(fl))//len(ms)
                for l in fl[lo:hi]: A(l)
        h = (len(f2)*2+2)//3
        spread([mf(i, order[2], mt) for mt in range(4)], f2[:h])
        spread([mf(i, order[3], mt) for mt in range(4)], f2[h:] + ([] if last else rdB(i+1, order[2])))
        spread([mf(i, order[4], mt) for mt in range(4)], ([] if last else rdB(i+1, order[3])) + ra[4:])
        if not last:
            for l in rdB(i+1, order[4]): A(l)
    stamp(A, 4)
    acc = lambda mt, t: vAcc + 20*mt + 4*t
    if not q:
        op = lambda nm, p: 12 + 8*["K0","K1","V0","V1","TA","TB"].index(nm) + 4*p
        vPp = 60; tmp = [4, 8]
        A(f"s_mov_b32 vcc_lo, 0x00ff00ff"); A(f"s_mov_b32 vcc_hi, 0x00ff00ff")
        A(f"v_mov_b32 v2, 0x3f803f80")
        prods = [("K0","V0"),("K1","V1"),("K0","TB"),("K1","TB"),("TA","V0"),("TA","V1"),("TA","TB")]
        pm = lambda n, p: f"v_mfma_f32_16x16x32_bf16 {v(vPp+4*n,4)}, {v(op(prods[n][0],p),4)}, {v(op(prods[n][1],p),4)}, {'0' if p==0 else v(vPp+4*n,4)}"
        k = 0
        for p in range(2):
            V = []
            for half in range(2):
                mt = 2*p + half
                V += phi4(acc(mt,0), op("K0",p)+2*half, tmp[0])
                V += phi4(acc(mt,1), op("K1",p)+2*half, tmp[1])
            for half in range(2):
                mt = 2*p + half
                V += cvt4(acc(mt,4), op("TB",p)+2*half)
                V += cvt4(acc(mt,2), op("V0",p)+2*half) + cvt4(acc(mt,3), op("V1",p)+2*half)
                V += [f"v_cndmask_b32 v{op('TB',p)+2*half+kk}, v{op('TB',p)+2*half+kk}, v2, vcc" for kk in range(2)]
            T = phi4(acc(2*p,4), op("TA",p), tmp[0]) + phi4(acc(2*p+1,4), op("TA",p)+2, tmp[1])
            pre = [pm(n, 0) for n in (4,5,6)] if p == 1 else []
            for n, l in enumerate(V):
                A(l)
                if pre and n % 6 == 3: A(pre.pop(0))
            ms = [pm(n, p) for n in range(4)]
            for n, l in enumerate(T):
                A(l)
                if ms and n % 6 == 2: A(ms.pop(0))
        A(f"v_and_b32 v88, 15, v{vL}"); A(f"v_lshrrev_b32 v89, 4, v{vL}")
        for n in (4,5,6): A(pm(n, 1))
        A(f"s_mul_i32 s{sT}, s{sRH}, 6720"); A(f"s_mul_i32 s{sT2}, s{sCH}, {2*KVH}"); A(f"s_add_u32 s{sT}, s{sT}, s{sT2}")
        A(f"v_mul_u32_u24 v90, 80, v88")
        A(f"v_add_u32 v90, s{sT}, v90")
        A(f"v_lshl_add_u32 v91, v89, 4, v90")
        stamp(A, 5)
        A(f"ds_write_b128 v91, {v(vPp,4)}")
        A(f"ds_write_b128 v91, {v(vPp+4,4)} offset:{KVH}")
        A(f"v_and_b32 v92, 3, v88")
        A(f"v_add_u32 v92, 16, v92")
        A(f"v_cmp_eq_u32 vcc, 0, v88")
        A(f"v_mov_b32 v93, 20")
        A(f"v_mul_u32_u24 v94, {KVH}, v89")
        A(f"v_cndmask_b32 v92, v92, v93, vcc")
        A(f"v_mul_u32_u24 v92, 80, v92")
        A(f"v_add_u32 v92, s{sT}, v92")
        A(f"v_lshl_add_u32 v93, v89, 4, v92")
        A(f"v_add_u32 v94, v94, v92")
        A(f"v_lshlrev_b32 v2, 2, v0")
        A(f"s_mul_i32 s{sT}, s{sCG}, 6720")
        A(f"s_add_u32 s{sT}, s{sT}, {WS_KV}")
        A(f"v_add_u32 v3, s{sT}, v2")
        A(f"v_add_u32 v4, 4096, v3")
        A(f"v_cmp_gt_u32 vcc, {1680-1536}, v0")
        setexec(A, 0x0F010F010F010F01); A(f"ds_write_b128 v93, {v(vPp+8,4)}")
        setexec(A, 0xF001F001F001F001); A(f"ds_write_b128 v93, {v(vPp+12,4)} offset:{KVH}")
        setexec(A, 0xFFFF); A(f"ds_write_b128 v90, {v(vPp+16,4)} offset:64")
        A("s_mov_b32 exec_lo, 0xffff0000"); A(f"ds_write_b128 v90, {v(vPp+20,4)} offset:{KVH+64}")
        A("s_mov_b32 exec_lo, 0xf0010f01"); A(f"ds_write_b128 v94, {v(vPp+24,4)} offset:64")
        setexec(A, FULL)
        A("s_waitcnt lgkmcnt(0)")
        A("s_barrier")
        for k in range(7):
            A(f"ds_read_b32 v{12+2*k}, v2 offset:{1024*k}")
            A(f"ds_read_b32 v{13+2*k}, v2 offset:{1024*k+6720}")
        for k in range(7):
            A(f"s_waitcnt lgkmcnt({12-2*k})")
            A(f"v_add_f32 v{12+2*k}, v{12+2*k}, v{13+2*k}")
            if k == 6:
                A("s_and_saveexec_b64 s[58:59], vcc")
                A(f"s_cbranch_execz {L}_skip")
            A(f"global_atomic_add_f32 v{3 if k<4 else 4}, v{12+2*k}, {s(S_WS,2)} offset:{1024*(k%4)}")
        A.label(f"{L}_skip")
        A("s_mov_b64 exec, -1")
        stamp(A, 6)
        A("s_waitcnt vmcnt(0)")
        A("s_barrier")
        endpgm(A, kidx)
    else:
        vQ = 20; tmp = [4, 8]
        A(f"v_mul_f32 v4, {hex(f2u(-LOG2E))}, v{vGacc}")
        A(f"v_and_b32 v2, 15, v{vL}"); A(f"v_lshrrev_b32 v3, 4, v{vL}")
        A(f"v_exp_f32 v4, v4")
        A(f"s_lshl_b32 s{sT}, s{sRB}, 1"); A(f"s_add_u32 s{sT}, s{sT}, s{sRH}"); A(f"s_lshl_b32 s{sT}, s{sT}, 2")
        A(f"v_add_f32 v4, 1.0, v4")
        A(f"v_rcp_f32 v4, v4")
        A(f"s_add_u32 s{sT2}, s{sT}, s{sCG}")
        A(f"s_lshl_b32 s{sT2}, s{sT2}, 6")
        A(f"s_add_u32 s{sT2}, s{sT2}, {WS_G}")
        A(f"v_lshl_add_u32 v5, v2, 2, s{sT2}")
        A(f"global_store_dword v5, v4, {s(S_WS,2)} sc1")
        for nt in range(4):
            b = vQ + 12*nt
            for l in phi4(acc(nt,0), b, 12): A(l)
            for l in phi4(acc(nt,4), b+2, 16): A(l)
            for l in phi4(acc(nt,1), b+4, 12): A(l)
            for l in phi4(acc(nt,2), b+6, 16): A(l)
            A(f"v_pk_mov_b32 {v(b+8,2)}, {v(b+2,2)}, {v(b+2,2)} op_sel:[0,1]")
            for l in phi4(acc(nt,3), b+10, 12): A(l)
        A(f"s_lshl_b32 s{sT2}, s{sCG}, 1"); A(f"s_add_u32 s{sT2}, s{sT2}, s{sCH}"); A(f"s_mul_i32 s{sT2}, s{sT2}, {4*KVH}")
        A(f"s_add_u32 s{sT2}, s{sT2}, {WS_KV}")
        A(f"v_mul_u32_u24 v4, 80, v2")
        A(f"v_add_u32 v4, s{sT2}, v4")
        A(f"v_lshl_add_u32 v5, v3, 4, v4")
        A(f"v_add_u32 v10, {2*KVH}, v4")
        A(f"v_add_u32 v11, {2*KVH}, v5")
        A(f"v_lshrrev_b32 v6, 2, v2"); A(f"v_and_b32 v7, 3, v2")
        A(f"v_mul_u32_u24 v8, {KVH}, v6")
        A(f"v_mul_u32_u24 v9, 80, v7")
        A(f"v_add3_u32 v8, v8, v9, s{sT2}")
        A(f"v_lshl_add_u32 v9, v3, 4, v8")
        A(f"v_mul_u32_u24 v12, {KVH}, v7")
        A(f"v_add_u32 v12, s{sT2}, v12")
        A(f"v_lshl_add_u32 v13, v3, 4, v12")
        A(f"s_mul_i32 s63, s{sCG}, 5")
        A(f"s_lshl_b32 s64, s{sCH}, 1"); A(f"s_add_u32 s64, s64, s63"); A(f"s_lshl_b32 s64, s64, 10")
        A(f"s_add_u32 s64, s64, {WS_OF}")
        A(f"v_lshl_add_u32 v14, v{vL}, 4, s64")
        A(f"s_add_u32 s63, s63, 4"); A(f"s_lshl_b32 s63, s63, 10"); A(f"s_lshl_b32 s64, s{sCH}, 3"); A(f"s_add_u32 s63, s63, s64")
        A(f"s_add_u32 s63, s63, {WS_OF}")
        A(f"v_lshl_add_u32 v15, v{vL}, 4, s63")
        vAo = 68
        vK = 116
        A("v_mov_b32 v16, 0"); A("v_mov_b32 v17, 0")
        for i in range(0, 48, 2): A(f"v_pk_mov_b32 {v(vAo+i,2)}, v[16:17], v[16:17]")
        stamp(A, 5)
        A("s_barrier")
        stamp(A, 6)
        A(f"global_load_dwordx4 {v(vK+40,4)}, v13, {s(S_WS,2)} offset:1600 sc1")
        A(f"global_load_dwordx4 {v(vK+44,4)}, v12, {s(S_WS,2)} offset:{1600+64} sc1")
        A(f"global_load_dwordx4 {v(vK+32,4)}, v9, {s(S_WS,2)} offset:1280 sc1")
        A(f"global_load_dwordx4 {v(vK+36,4)}, v8, {s(S_WS,2)} offset:{1280+64} sc1")
        for h in range(4):
            A(f"global_load_dwordx4 {v(vK+8*h,4)}, v{5 if h<2 else 11}, {s(S_WS,2)} offset:{KVH*(h%2)} sc1")
            A(f"global_load_dwordx4 {v(vK+8*h+4,4)}, v{4 if h<2 else 10}, {s(S_WS,2)} offset:{KVH*(h%2)+64} sc1")
        rep = lambda m16: m16 | m16 << 16 | m16 << 32 | m16 << 48
        mo = lambda h: 0 if h % 2 == 0 else 2
        to = lambda h: 2 - mo(h)
        gm = lambda h: 0xFFFF << (16*h)
        bq = lambda nt, h: vQ + 12*nt + [0, 2, 6, 8][h]
        A("s_waitcnt vmcnt(10)")
        stamp(A, 7)
        for h in range(4):
            setexec(A, rep(0x1111 << h))
            for l in cvt4(vK+40, vAo+12*h+8+mo(h)): A(l)
            setexec(A, rep(0x1111 << h) & gm(h))
            for l in cvt4(vK+44, vAo+12*h+8+to(h)): A(l)
        A("s_waitcnt vmcnt(8)")
        for h in range(4):
            setexec(A, rep(0xF << (4*h)))
            for l in cvt4(vK+32, vAo+12*h+4+mo(h)): A(l)
            setexec(A, rep(0xF << (4*h)) & gm(h))
            for l in cvt4(vK+36, vAo+12*h+4+to(h)): A(l)
        setexec(A, FULL)
        vD = 148
        dm = [f"v_mfma_f32_16x16x32_bf16 {v(vD+4*nt,4)}, {v(vAo+12*h+8,4)}, {v(bq(nt,h),4)}, {'0' if h==0 else v(vD+4*nt,4)}" for h in range(4) for nt in range(4)]
        A("s_nop 1")
        for h in range(4):
            for l in dm[4*h:4*h+2]: A(l)
            A(f"s_waitcnt vmcnt({6-2*h})")
            for l in cvt4(vK+8*h, vAo+12*h+mo(h)): A(l)
            for l in dm[4*h+2:4*h+4]: A(l)
            setexec(A, gm(h))
            for l in cvt4(vK+8*h+4, vAo+12*h+to(h)): A(l)
            setexec(A, FULL)
        def Nreg(nt, h): return (116 + 4*h) if nt % 2 == 0 else [136, 140, 144, 4][h]
        def Mreg(nt): return 132 if nt % 2 == 0 else 8
        def mm(nt):
            r = [f"v_mfma_f32_16x16x32_bf16 {v(Mreg(nt),4)}, {v(vAo+12*h+4,4)}, {v(bq(nt,h),4)}, {'0' if h==0 else v(Mreg(nt),4)}" for h in range(4)]
            r += [f"v_mfma_f32_16x16x32_bf16 {v(Nreg(nt,h),4)}, {v(vAo+12*h,4)}, {v(bq(nt,h),4)}, 0" for h in range(4)]
            return r
        def rcps():
            V = []
            for nt in range(4):
                V += [f"v_pk_add_f32 {v(vD+4*nt+k,2)}, {v(vD+4*nt+k,2)}, s[62:63] op_sel_hi:[1,0]" for k in (0,2)]
            for i in range(16): V.append(f"v_rcp_f32 v{vD+i}, v{vD+i}")
            return V
        def post(nt):
            V = []
            d = vD + 4*nt
            V.append(f"v_cndmask_b32 v16, v{d}, v{d+1}, s[44:45]")
            V.append(f"v_cndmask_b32 v17, v{d+2}, v{d+3}, s[44:45]")
            V.append(f"v_cndmask_b32 v16, v16, v17, s[46:47]")
            o = vQ + 12*nt
            for h in range(4):
                sel = f"op_sel:[0,{h&1}] op_sel_hi:[1,{h&1}]"
                n = Nreg(nt,h)
                V.append(f"v_pk_mul_f32 {v(n,2)}, {v(n,2)}, {v(d+(h&2),2)} {sel}")
                V.append(f"v_pk_mul_f32 {v(n+2,2)}, {v(n+2,2)}, {v(d+(h&2),2)} {sel}")
                V += cvt4(n, o+2*h)
            m_ = Mreg(nt)
            V.append(f"v_pk_mul_f32 {v(m_,2)}, {v(m_,2)}, v[16:17] op_sel_hi:[1,0]")
            V.append(f"v_pk_mul_f32 {v(m_+2,2)}, {v(m_+2,2)}, v[16:17] op_sel_hi:[1,0]")
            V += cvt4(m_, o+8)
            V += [f"s_xor_b32 s48, s{sCG}, {nt}", f"s_add_u32 s48, s48, s{sT}", f"s_mul_i32 s48, s48, 20480",
                  f"s_add_u32 s64, s{S_WS}, s48", f"s_addc_u32 s65, s{S_WS+1}, 0",
                  f"global_store_dwordx4 v14, {v(o,4)}, s[64:65] sc1",
                  f"global_store_dwordx4 v14, {v(o+4,4)}, s[64:65] offset:1024 sc1",
                  f"global_store_dwordx2 v15, {v(o+8,2)}, s[64:65] sc1"]
            return V
        A("s_mov_b32 s44, 0xffff0000"); A("s_mov_b32 s45, 0xffff0000"); A("s_mov_b32 s46, 0"); A("s_mov_b32 s47, -1")
        def weave(ms, V, lead=0):
            ms = list(ms)
            for l in ms[:lead]: A(l)
            ms = ms[lead:]
            stepn = max(1, len(V)//max(1,len(ms)))
            for n, l in enumerate(V):
                if ms and n % stepn == 0: A(ms.pop(0))
                A(l)
            for l in ms: A(l)
        weave(mm(0), rcps(), lead=2)
        weave(mm(1)[:3], [])
        weave(mm(1)[3:], post(0)[:14])
        for l in post(0)[14:]: A(l)
        weave(mm(2), post(1)[:24]);
        for l in post(1)[24:]: A(l)
        weave(mm(3), post(2)[:24]);
        for l in post(2)[24:]: A(l)
        for l in post(3): A(l)
        stamp(A, 8)
        A("s_waitcnt vmcnt(0)")
        A("s_barrier")
        endpgm(A, kidx)

def role_G(A, q, sRB, sCG, sRot, L, sync=None, kidx=0):
    A(f"v_and_b32 v1, 63, v0")
    A(f"v_lshrrev_b32 v2, 6, v0")
    A(f"v_readfirstlane_b32 s40, v2")
    A(f"s_cmp_lt_u32 s40, 4")
    A(f"s_cbranch_scc1 {L}_comp")
    if q:
        A(f"s_lshl_b32 s56, s{sCG}, 4"); A(f"s_mul_i32 s57, s{sCG}, 320"); A("s_movk_i32 s58, 80"); A("s_movk_i32 s59, 160")
    else:
        A(f"s_mov_b32 s56, 0"); A(f"s_mul_i32 s57, s{sCG}, 160"); A("s_add_u32 s57, s57, 1280"); A("s_movk_i32 s58, 1280"); A("s_movk_i32 s59, 80")
    G_loader(A, sRB, 56, 57, 58, 59, sRot, L)
    if sync: sync["loader_tail"](A)
    else:
        A("s_barrier"); A("s_barrier")
    endpgm(A, kidx)
    A.label(f"{L}_comp")
    G_compute(A, q, sRB, sCG, sRot, 40, L, sync, kidx)
```

```python
import sys, gen, re
from gen import *
from genG import srd, setexec
from g2 import phi4, cvt4

FULL = (1<<64)-1
KVH = 1680
KVG = 6784
WS_CQ = WS_KV + 8*KVG
WS_CF = WS_CQ + 64*128
WS_CA = WS_CF + 160*128
WS_CT = WS_CA + 40*128
ZPW = (8*KVG + 272*128) // 8
WS_UT = 0x900000
WSZ = 0xC00000
LDS = 81920
SPIN = 300000
OPT = dict(codepf=False, rot=2, l2pf=False, tpf=0, nopk=1, fst=0, osc1=1, nt=4, noA=0, noT=0, spin=300000, tdelay=0, scalar=True, sleep=2)

_lab = [0]
def poll(A, vaddr, sbase, vexp, mask, vt=2, first_loaded=False, sleep=None):
    _lab[0] += 1; L = f"poll{_lab[0]}"
    A(f"s_mov_b32 s66, {OPT['spin']}")
    if first_loaded: A(f"s_branch {L}c")
    A.label(L)
    A(f"global_load_dword v{vt}, v{vaddr}, {s(sbase,2)} sc1")
    A.label(L + "c")
    A("s_waitcnt vmcnt(0)")
    A(f"v_cmp_le_u32 vcc, {vexp}, v{vt}")
    A(f"s_and_b32 vcc_lo, vcc_lo, {mask}")
    A(f"s_cmp_eq_u32 vcc_lo, {mask}")
    A(f"s_cbranch_scc1 {L}d")
    A(f"s_sleep {sleep or OPT['sleep']}")
    A("s_sub_u32 s66, s66, 1")
    A("s_cmp_lg_u32 s66, 0")
    A(f"s_cbranch_scc1 {L}")
    A.label(L + "d")

def signal(A, soff, base=S_WS, va=3, vd=2, val="1"):
    A("s_mov_b64 exec, 1")
    A(f"v_mov_b32 v{va}, s{soff}")
    A(f"v_mov_b32 v{vd}, {val}")
    A(f"global_atomic_add v{va}, v{vd}, {s(base,2)} sc1")
    A("s_mov_b64 exec, -1")

def msignal(A, vaddr, nl, vd=2):
    A(f"v_mov_b32 v{vd}, 1")
    A(f"s_mov_b64 exec, {(1<<nl)-1}")
    A(f"global_atomic_add v{vaddr}, v{vd}, {s(S_WS,2)} sc1")
    A("s_mov_b64 exec, -1")

def spread(A, ms, fl, lead=0, tail=0):
    n = len(ms) - lead - tail
    for k, m_ in enumerate(ms):
        A(m_)
        kk = k - lead
        if 0 <= kk < n:
            for g in fl[(kk*len(fl))//n : ((kk+1)*len(fl))//n]:
                for l in ([g] if isinstance(g, str) else g): A(l)

G_X = 0; G_W = 32768; G_WS = 10240; G_GW = G_W + 4*G_WS
sKx, sKw, sMx, sMw = 43, 44, 46, 47
SX, SWq = 48, 52
vXA, vWA = 8, 12
def dmaX(j, slot):
    return [f"s_add_u32 m0, s{sMx}, {G_X + 16384*slot + 4096*j}", f"buffer_load_dwordx4 v{vXA+j}, {s(SX,4)}, s{sKx} offen lds"]
def dmaW(m, slot):
    return [f"s_add_u32 m0, s{sMw}, {2*G_WS*slot + 4096*m}", f"buffer_load_dwordx4 v{vWA+m}, {s(SWq,4)}, s{sKw} offen lds"]
advK = [f"s_add_u32 s{sKx}, s{sKx}, 128", f"s_add_u32 s{sKw}, s{sKw}, {64*3840}", f"s_cmp_eq_u32 s{sKx}, 1280",
        f"s_cselect_b32 s{sKx}, 0, s{sKx}", f"s_cselect_b32 s{sKw}, 0, s{sKw}"]
def dma_even(slot): return [dmaX(0,slot), dmaW(0,slot), dmaX(1,slot), dmaW(1,slot), dmaX(2,slot)]
def dma_odd(slot): return [dmaW(2,slot), dmaX(3,slot), dmaW(3,slot), dmaW(4,slot) + advK]

def ntify(A, n0, n1=None):
    A.lines[n0:n1] = [(l.replace(" lds", " nt lds") if l.endswith(" lds") else l + " nt") if (l.startswith(("buffer_load", "global_load")) and "sc1" not in l) else l for l in A.lines[n0:n1]]

def G_start(A, sRB, sCG, sQ, sRot):
    n0 = len(A.lines)
    A("v_lshrrev_b32 v3, 3, v1")
    A("v_and_b32 v4, 7, v1")
    A("v_lshrrev_b32 v5, 4, v1")
    A("v_xor_b32 v4, v4, v5")
    A("v_mul_u32_u24 v3, 1280, v3")
    A("v_lshl_add_u32 v6, v4, 4, v3")
    A("s_and_b32 s57, s40, 1"); A("s_lshr_b32 s56, s40, 1")
    A("s_lshl_b32 s41, s57, 6"); A(f"s_mul_i32 s58, s57, {8*1280}")
    A("v_xor_b32 v6, s41, v6")
    A(f"s_mul_i32 s42, s{sCG}, s{sQ}")
    A("s_xor_b32 s42, s42, s56")
    A(f"s_mul_i32 s41, s{sRB}, {128*1280}"); A("s_add_u32 s41, s41, s58")
    for j in range(4):
        A(f"s_xor_b32 s58, s42, {2*j}")
        A(f"s_mul_i32 s58, s58, {16*1280}")
        A("s_add_u32 s58, s58, s41")
        A(f"v_add_u32 v{vXA+j}, s58, v6")
    A(f"s_lshl_b32 s{sMx}, s40, 10"); A(f"s_add_u32 s{sMw}, s{sMx}, {G_W}")
    A(f"s_lshl_b32 s{sKx}, s{sRot}, 7")
    A(f"s_mul_i32 s{sKw}, s{sRot}, {64*3840}")
    A("s_waitcnt lgkmcnt(0)")
    srd(A, SX, S_U, 2048*1280)
    for j in range(4):
        for l in dmaX(j, 0): A(l)
    srd(A, SWq, S_WQKV, 640*3840)
    A(f"s_cmp_eq_u32 s{sQ}, 1")
    A(f"s_cselect_b32 s59, 0, 1280"); A(f"s_cselect_b32 s60, 0, 1120"); A(f"s_lshl_b32 s58, 160, s{sQ}")
    A(f"s_mul_i32 s58, s58, s{sCG}"); A("s_add_u32 s58, s58, s59")
    A("v_mov_b32 v7, s60")
    for m in range(5):
        if m: A(f"v_add_u32 v3, {256*m}, v0")
        src = "v3" if m else "v0"
        A(f"v_mul_u32_u24 v4, 3277, {src}")
        A("v_lshrrev_b32 v4, 16, v4")
        A("v_mul_u32_u24 v5, 20, v4")
        A(f"v_sub_u32 v3, {src}, v5")
        A("v_lshrrev_b32 v5, 2, v4")
        A("v_and_b32 v5, 2, v5")
        A("v_xor_b32 v3, v3, v5")
        A("v_cmp_lt_u32 vcc, 9, v3")
        A("v_mul_u32_u24 v4, 3840, v4")
        A("v_lshl_add_u32 v4, v3, 4, v4")
        A("v_cndmask_b32 v5, 0, v7, vcc")
        A(f"v_add3_u32 v{vWA+m}, v4, v5, s58")
        for l in dmaW(m, 0): A(l)
    for l in advK: A(l)
    if OPT["nt"] & 1: ntify(A, n0)

def G_compute(A, q, sRB, sCG, sRot, L):
    sW, sT, sT2, sRH, sCH, sCnt = 40, 41, 42, 56, 57, 45
    vRA = 2; vRB = 17; vGA = 22; vGF = 24; vGacc = 32; vB = 36; vA = 76; vAcc = 140
    if q:
        A(f"v_cmp_gt_u32 vcc, 80, v0")
        A(f"v_subrev_u32 v40, 80, v0")
        A(f"v_cndmask_b32 v40, v40, v0, vcc")
        A(f"v_min_u32 v40, 79, v40")
        A(f"v_lshlrev_b32 v40, 4, v40")
        A(f"global_load_dwordx4 {v(vGF,4)}, v40, {s(S_GW,2)}")
    A(f"v_and_b32 v42, 15, v1")
    A(f"v_lshrrev_b32 v43, 4, v1")
    A(f"v_lshrrev_b32 v44, 1, v42")
    A(f"v_xor_b32 v44, v44, v43")
    A(f"v_lshlrev_b32 v45, 7, v42")
    A(f"s_lshl_b32 s{sT}, s{sRH}, 13")
    A(f"v_add_u32 v45, s{sT}, v45")
    A(f"v_lshl_add_u32 v{vRA}, v44, 4, v45")
    A(f"v_xor_b32 v{vRA+1}, 64, v{vRA}")
    A(f"v_lshrrev_b32 v44, 2, v42")
    A(f"v_and_b32 v45, 3, v42")
    A(f"v_lshl_add_u32 v44, v43, 3, v44")
    A(f"v_mul_u32_u24 v44, 320, v44")
    A(f"v_add_u32 v44, {G_W}, v44")
    A(f"v_and_b32 v46, 1, v43"); A(f"v_lshlrev_b32 v46, 5, v46")
    A(f"s_mul_i32 s{sT}, s{sCH}, {160 if q else 80}")
    toff = [0, 40, 80, 120] if q else [0, 40, 160, 200]
    for t in range(5):
        if t < 4:
            A(f"s_add_u32 s{sT2}, s{sT}, {toff[t]}")
            A(f"v_lshl_add_u32 v47, v45, 3, s{sT2}")
        else:
            A(f"s_add_u32 s{sT2}, s{sT}, 32")
            A(f"v_mul_u32_u24 v47, 40, v45")
            if not q:
                A(f"v_lshrrev_b32 v48, 1, v45"); A(f"v_mul_u32_u24 v48, 80, v48"); A(f"v_add_u32 v47, v47, v48")
            A(f"v_add_u32 v47, s{sT2}, v47")
        A(f"v_xor_b32 v47, v47, v46")
        A(f"v_add_u32 v{vRB+t}, v47, v44")
    A("v_mov_b32 v4, 0"); A("v_mov_b32 v5, 0")
    for i in range(0, 80, 2): A(f"v_pk_mov_b32 {v(vAcc+i,2)}, v[4:5], v[4:5]")
    if q:
        for i in range(0, 4, 2): A(f"v_pk_mov_b32 {v(vGacc+i,2)}, v[4:5], v[4:5]")
        A(f"s_lshl_b32 s{sT}, s{sRot}, 7")
        A(f"s_add_u32 s{sT}, s{sT}, {G_GW}")
        A(f"v_lshl_add_u32 v{vGA}, v43, 4, s{sT}")
        A(f"v_lshlrev_b32 v40, 4, v0")
        A(f"v_add_u32 v40, {G_GW}, v40")
        A(f"v_cmp_gt_u32 vcc, 160, v0")
    A(f"s_mov_b32 s60, {hex(f2u(LOG2E))}"); A(f"s_mov_b32 s61, {hex(f2u(LOG2E))}")
    A(f"s_mov_b32 s62, {hex(f2u(1e-6))}")
    order = [0, 1, 4, 2, 3]
    def reads(i):
        bs = vB + 20*(i % 2)
        R = [f"ds_read_b64_tr_b16 {v(bs+4*t+2*h,2)}, v{vRB+t} offset:{G_WS*(i%4)+1280*h}" for t in order for h in range(2)]
        RA = []
        if i % 2 == 0:
            j = (i//2) % 2
            RA = [f"ds_read_b128 {v(vA+32*j+16*ks+4*mt,4)}, v{vRA+ks} offset:{G_X+16384*j+2048*mt}" for ks in range(2) for mt in range(4)]
        RG = [f"ds_read_b128 {v(vGF+4*(i%2),4)}, v{vGA} offset:{64*i}"] if q else []
        return RA[:4] + R + RG + RA[4:]
    def mfmas(i):
        M = []
        bs = vB + 20*(i % 2); aa = vA + 32*((i//2) % 2) + 16*(i % 2)
        for t in order:
            for mt in range(4):
                d = v(vAcc + 20*mt + 4*t, 4)
                x, y = v(aa+4*mt,4), v(bs+4*t,4)
                M.append(f"v_mfma_f32_16x16x32_bf16 {d}, {y}, {x}, {d}" if q else f"v_mfma_f32_16x16x32_bf16 {d}, {x}, {y}, {d}")
        if q: M.append(f"v_mfma_f32_16x16x32_bf16 {v(vGacc,4)}, {v(vGF+4*(i%2),4)}, {v(aa,4)}, {v(vGacc,4)}")
        return M
    def step(i, dma, nwait, last=False):
        M = mfmas(i)
        A("s_waitcnt lgkmcnt(0)")
        A(M[0]); A(M[1])
        if not last:
            A(f"s_waitcnt vmcnt({nwait})")
            A("s_barrier")
        rd = [] if last else reads(i+1)
        dm = (dma_even((i//2) % 2) if i % 2 == 0 else dma_odd((i//2) % 2)) if dma else []
        n = len(M) - 2
        nr = n - 5
        for mi in range(n):
            if mi < nr:
                for l in rd[(mi*len(rd))//nr : ((mi+1)*len(rd))//nr]: A(l)
            g = None
            for k in range(len(dm)):
                if mi == (k*n)//len(dm) + 1: g = dm[k]
            if g: A(g[0])
            A(M[2+mi])
            if g:
                for l in g[1:]: A(l)
    for g in dma_even(1) + dma_odd(1):
        for l in g: A(l)
    stamp(A, 1)
    if q:
        A("s_waitcnt vmcnt(9)")
        A(f"s_and_saveexec_b64 s[58:59], vcc")
        A(f"ds_write_b128 v40, {v(vGF,4)}")
        A(f"s_mov_b64 exec, -1")
    A(f"s_waitcnt vmcnt(11) lgkmcnt(0)")
    A("s_barrier")
    stamp(A, 2)
    for l in reads(0): A(l)
    A(f"s_mov_b32 s{sCnt}, 4")
    A(".p2align 3")
    A.label(f"{L}_loop")
    for i in range(4): step(i, True, 9 if i % 2 == 0 else 7)
    if q: A(f"v_add_u32 v{vGA}, 256, v{vGA}")
    A(f"s_sub_u32 s{sCnt}, s{sCnt}, 1")
    A(f"s_cmp_lg_u32 s{sCnt}, 0")
    A(f"s_cbranch_scc1 {L}_loop")
    stamp(A, 3)
    step(0, False, 9); step(1, False, 2); step(2, False, 0)
    A("v_mov_b32 v6, 0")
    A(f"global_load_dword v7, v6, {s(S_DBG,2)} sc1")
    step(3, False, 0, last=True)
    stamp(A, 4)
    acc = lambda mt, t: vAcc + 20*mt + 4*t
    if not q:
        HS = 6912
        op = lambda nm, p: 36 + 8*["K0","K1","V0","V1","TA","TB"].index(nm) + 4*p
        vPp = 84; tmp = [112, 116]
        A(f"s_mov_b32 vcc_lo, 0x00ff00ff"); A(f"s_mov_b32 vcc_hi, 0x00ff00ff")
        A(f"v_mov_b32 v2, 0x3f803f80")
        prods = [("K0","V0"),("K1","V1"),("K0","TB"),("K1","TB"),("TA","V0"),("TA","V1"),("TA","TB")]
        pm = lambda n, p: f"v_mfma_f32_16x16x32_bf16 {v(vPp+4*n,4)}, {v(op(prods[n][0],p),4)}, {v(op(prods[n][1],p),4)}, {'0' if p==0 else v(vPp+4*n,4)}"
        for p in range(2):
            V = []
            for half in range(2):
                mt = 2*p + half
                V += phi4(acc(mt,0), op("K0",p)+2*half, tmp[0])
                V += phi4(acc(mt,1), op("K1",p)+2*half, tmp[1])
            for half in range(2):
                mt = 2*p + half
                V += cvt4(acc(mt,4), op("TB",p)+2*half)
                V += cvt4(acc(mt,2), op("V0",p)+2*half) + cvt4(acc(mt,3), op("V1",p)+2*half)
                V += [f"v_cndmask_b32 v{op('TB',p)+2*half+kk}, v{op('TB',p)+2*half+kk}, v2, vcc" for kk in range(2)]
            T = phi4(acc(2*p,4), op("TA",p), tmp[0]) + phi4(acc(2*p+1,4), op("TA",p)+2, tmp[1])
            pre = [pm(n, 0) for n in (4,5,6)] if p == 1 else []
            for n, l in enumerate(V):
                A(l)
                if pre and n % 6 == 3: A(pre.pop(0))
            ms = [pm(n, p) for n in range(4)]
            for n, l in enumerate(T):
                A(l)
                if ms and n % 6 == 2: A(ms.pop(0))
        A(f"v_and_b32 v8, 15, v1"); A(f"v_lshrrev_b32 v9, 4, v1")
        for n in (4,5,6): A(pm(n, 1))
        A(f"s_mul_i32 s{sT}, s{sRH}, {HS}"); A(f"s_mul_i32 s{sT2}, s{sCH}, {2*KVH}"); A(f"s_add_u32 s{sT}, s{sT}, s{sT2}")
        A(f"v_mul_u32_u24 v10, 80, v8")
        A(f"v_add_u32 v10, s{sT}, v10")
        A(f"v_lshl_add_u32 v11, v9, 4, v10")
        stamp(A, 5)
        A(f"ds_write_b128 v11, {v(vPp,4)}")
        A(f"ds_write_b128 v11, {v(vPp+4,4)} offset:{KVH}")
        A(f"v_and_b32 v12, 3, v8")
        A(f"v_add_u32 v12, 16, v12")
        A(f"v_cmp_eq_u32 vcc, 0, v8")
        A(f"v_mov_b32 v13, 20")
        A(f"v_mul_u32_u24 v14, {KVH}, v9")
        A(f"v_cndmask_b32 v12, v12, v13, vcc")
        A(f"v_mul_u32_u24 v12, 80, v12")
        A(f"v_add_u32 v12, s{sT}, v12")
        A(f"v_lshl_add_u32 v13, v9, 4, v12")
        A(f"v_add_u32 v14, v14, v12")
        A(f"v_lshlrev_b32 v2, 2, v0")
        A(f"s_mul_i32 s{sT}, s{sCG}, {KVG}")
        A(f"s_add_u32 s{sT}, s{sT}, {WS_KV}")
        A(f"v_add_u32 v3, s{sT}, v2")
        A(f"v_add_u32 v4, 4096, v3")
        setexec(A, 0x0F010F010F010F01); A(f"ds_write_b128 v13, {v(vPp+8,4)}")
        setexec(A, 0xF001F001F001F001); A(f"ds_write_b128 v13, {v(vPp+12,4)} offset:{KVH}")
        setexec(A, 0xFFFF); A(f"ds_write_b128 v10, {v(vPp+16,4)} offset:64")
        A("s_mov_b32 exec_lo, 0xffff0000"); A(f"ds_write_b128 v10, {v(vPp+20,4)} offset:{KVH+64}")
        A("s_mov_b32 exec_lo, 0xf0010f01"); A(f"ds_write_b128 v14, {v(vPp+24,4)} offset:64")
        setexec(A, FULL)
        poll(A, 6, S_DBG, 32, 1, vt=7, first_loaded=True)
        A(f"v_cmp_gt_u32 vcc, {1680-1536}, v0")
        A("s_waitcnt lgkmcnt(0)")
        A("s_barrier")
        for k in range(7):
            A(f"ds_read2st64_b32 {v(12+2*k,2)}, v2 offset0:{4*k} offset1:{4*k+HS//256}")
        for k in range(7):
            A(f"s_waitcnt lgkmcnt({6-k})")
            A(f"v_add_f32 v{12+2*k}, v{12+2*k}, v{13+2*k}")
            if k == 6:
                A("s_and_saveexec_b64 s[58:59], vcc")
                A(f"s_cbranch_execz {L}_skip")
            A(f"global_atomic_add_f32 v{3 if k<4 else 4}, v{12+2*k}, {s(S_WS,2)} offset:{1024*(k%4)}")
        A.label(f"{L}_skip")
        A("s_mov_b64 exec, -1")
        A(f"s_lshr_b32 s{sT}, s{sCG}, 1"); A(f"s_lshl_b32 s{sT}, s{sT}, 7"); A(f"s_add_u32 s{sT}, s{sT}, {WS_CQ}")
        A(f"v_lshl_add_u32 v5, v1, 9, s{sT}")
        A("s_waitcnt vmcnt(0)")
        A("s_barrier")
        A("s_cmp_lg_u32 s40, 0"); A("s_cbranch_scc1 KV_nosig")
        msignal(A, 5, 16)
        A.label("KV_nosig")
        stamp(A, 6)
        A("s_mov_b32 s7, s2")
        A("s_branch F_entry")
    else:
        vQ = 36
        A(f"v_mul_f32 v4, {hex(f2u(-LOG2E))}, v{vGacc}")
        A(f"v_and_b32 v2, 15, v1"); A(f"v_lshrrev_b32 v3, 4, v1")
        A(f"v_exp_f32 v4, v4")
        A(f"s_lshl_b32 s{sT}, s{sRB}, 1"); A(f"s_add_u32 s{sT}, s{sT}, s{sRH}"); A(f"s_lshl_b32 s{sT}, s{sT}, 2")
        A(f"v_add_f32 v4, 1.0, v4")
        A(f"v_rcp_f32 v4, v4")
        A(f"s_add_u32 s{sT2}, s{sT}, s{sCG}")
        A(f"s_lshl_b32 s{sT2}, s{sT2}, 6")
        A(f"s_add_u32 s{sT2}, s{sT2}, {WS_G}")
        A(f"v_lshl_add_u32 v5, v2, 2, s{sT2}")
        A(f"global_store_dword v5, v4, {s(S_WS,2)} sc1")
        for nt in range(4):
            b = vQ + 12*nt
            for l in phi4(acc(nt,0), b, 24): A(l)
            for l in phi4(acc(nt,4), b+2, 28): A(l)
            for l in phi4(acc(nt,1), b+4, 24): A(l)
            for l in phi4(acc(nt,2), b+6, 28): A(l)
            A(f"v_pk_mov_b32 {v(b+8,2)}, {v(b+2,2)}, {v(b+2,2)} op_sel:[0,1]")
            for l in phi4(acc(nt,3), b+10, 24): A(l)
        A(f"s_mul_i32 s{sT2}, s{sCH}, {KVG}")
        A(f"v_mul_u32_u24 v4, 80, v2")
        A(f"v_add_u32 v4, s{sT2}, v4")
        A(f"v_lshl_add_u32 v5, v3, 4, v4")
        A(f"v_lshrrev_b32 v10, 2, v2"); A(f"v_and_b32 v11, 3, v2")
        A(f"v_mul_u32_u24 v8, {KVH}, v10")
        A(f"v_mul_u32_u24 v9, 80, v11")
        A(f"v_add3_u32 v8, v8, v9, s{sT2}")
        A(f"v_lshl_add_u32 v9, v3, 4, v8")
        A(f"v_mul_u32_u24 v12, {KVH}, v11")
        A(f"v_add_u32 v12, s{sT2}, v12")
        A(f"v_lshl_add_u32 v13, v3, 4, v12")
        A(f"s_mul_i32 s63, s{sCG}, 10240"); A(f"s_add_u32 s63, s63, {WS_OF}")
        A(f"s_mul_i32 s64, s{sT}, 20480"); A("s_add_u32 s63, s63, s64")
        A(f"s_lshl_b32 s64, s{sCH}, 11"); A("s_add_u32 s64, s64, s63")
        A(f"v_lshl_add_u32 v14, v1, 4, s64")
        A(f"s_lshl_b32 s64, s{sCH}, 10"); A("s_add_u32 s64, s64, s63"); A("s_add_u32 s64, s64, 8192")
        A(f"v_lshl_add_u32 v15, v1, 4, s64")
        vSt = 236
        for nt in range(4):
            A(f"s_xor_b32 s58, s{sCG}, {nt}"); A("s_lshr_b32 s59, s58, 1"); A("s_mul_i32 s59, s59, 40960")
            if nt & 1: A(f"v_add_u32 v{vSt+4+nt//2}, s59, v15")
            A("s_and_b32 s58, s58, 1"); A("s_lshl_b32 s58, s58, 12"); A("s_add_u32 s58, s58, s59")
            A(f"v_add_u32 v{vSt+nt}, s58, v14")
        vAN = 84; vAD = 100; vAM = 112; vEps = 124; vK = 132; vD = 180; vN = 196; vMk = 242
        mk = [(3, h) for h in range(4)] + [(11, h) for h in range(4)] + [(10, h) for h in range(4)] + [(11, "v3"), (10, "v3")]
        for i, (r, c) in enumerate(mk):
            A(f"v_cmp_eq_u32 vcc, {c}, v{r}")
            A(f"v_cndmask_b32 v{vMk+i}, 0, -1, vcc")
        for r in (vAD+8, vAD+9, vAM+8, vAM+9): A(f"v_mov_b32 v{r}, 0")
        for i in range(4): A(f"v_mov_b32 v{vEps+i}, s62")
        A("s_mov_b32 s44, 0xffff0000"); A("s_mov_b32 s45, 0xffff0000"); A("s_mov_b32 s46, 0"); A("s_mov_b32 s47, -1")
        srd(A, SX, S_WS, WSZ)
        A(f"s_mul_i32 s43, s{sCG}, {2*KVG}"); A(f"s_add_u32 s43, s43, {WS_KV}")
        A("v_lshlrev_b32 v18, 4, v1")
        poll(A, 6, S_DBG, 32, 1, vt=7, first_loaded=True)
        A(f"s_lshl_b32 s58, s{sRB}, 2"); A(f"s_add_u32 s58, s58, s{sCG}"); A("s_lshl_b32 s58, s58, 7"); A(f"s_add_u32 s58, s58, {WS_CQ}")
        A("v_mov_b32 v6, s58")
        A(f"s_mul_i32 s41, s{sT}, 160"); A(f"s_add_u32 s41, s41, {WS_CF}")
        A("v_lshl_add_u32 v19, v1, 7, s41")
        stamp(A, 5)
        A("s_cmp_lg_u32 s40, 0"); A("s_cbranch_scc1 Q_nopoll")
        A("s_mov_b64 exec, 1")
        A("s_mov_b32 m0, 0")
        poll(A, 6, S_WS, 32, 1, vt=7, sleep=1)
        A("s_mov_b64 exec, -1")
        stamp(A, 6)
        for gq in range(2):
            for j in range(7):
                if j % 4 == 0 and (gq or j):
                    A(f"s_mov_b32 m0, {KVG*gq + 1024*j}")
                    A(f"s_add_u32 s58, s43, {KVG*gq + 1024*j}")
                A(f"buffer_load_dwordx4 v18, {s(SX,4)}, s{58 if (gq or j>=4) else 43} offen" + (f" offset:{1024*(j%4)}" if j%4 else "") + " sc1 lds")
        A("s_waitcnt vmcnt(0)")
        A.label("Q_nopoll")
        A("s_barrier")
        stamp(A, 7)
        A(f"ds_read_b128 {v(vK+40,4)}, v13 offset:1600")
        A(f"ds_read_b128 {v(vK+44,4)}, v12 offset:{1600+64}")
        for h in range(4):
            A(f"ds_read_b128 {v(vK+8*h,4)}, v5 offset:{KVH*h}")
            A(f"ds_read_b128 {v(vK+8*h+4,4)}, v4 offset:{KVH*h+64}")
        A(f"ds_read_b128 {v(vK+32,4)}, v9 offset:1280")
        A(f"ds_read_b128 {v(vK+36,4)}, v8 offset:{1280+64}")
        mo = lambda h: 0 if h % 2 == 0 else 2
        to = lambda h: 2 - mo(h)
        bq = lambda nt, h: vQ + 12*nt + [0, 2, 6, 8][h]
        def tri(raw, dst, mbase, mt):
            V = cvt4(raw, raw) + cvt4(raw+4, raw+4)
            for k in range(2): V.append(f"v_and_b32 v{dst+k}, v{raw+k}, v{mbase}")
            for k in range(2): V.append(f"v_and_b32 v{dst+2+k}, v{raw+4+k}, v{mt}")
            for h, o in ((1, 4), (2, 6), (3, 10)):
                for k in range(2): V.append(f"v_and_b32 v{dst+o+k}, v{raw+k}, v{mbase+h}")
            return V
        def trim(dreg, frag, nt, c0):
            return [f"v_mfma_f32_16x16x32_bf16 {v(dreg,4)}, {v(frag+4*k,4)}, {v(vQ+12*nt+4*k,4)}, {c0 if k==0 else v(dreg,4)}" for k in range(3)]
        def weave(ms, V, lead=0):
            ms = list(ms)
            for l in ms[:lead]: A(l)
            ms = ms[lead:]
            n = len(ms)
            pos = [(k*len(V))//max(1,n) for k in range(n)]
            for i_, l in enumerate(V):
                while pos and pos[0] == i_:
                    A(ms.pop(0)); pos.pop(0)
                A(l)
            for l in ms: A(l)
        A("s_waitcnt lgkmcnt(10)")
        for l in tri(vK+40, vAD, vMk+4, vMk+12): A(l)
        dm = [trim(vD+4*nt, vAD, nt, v(vEps,4)) for nt in range(4)]
        dm = [dm[nt][k] for k in range(3) for nt in range(4)]
        VA = []
        for h in range(4):
            VA.append(f"s_waitcnt lgkmcnt({8-2*h})")
            VA += cvt4(vK+8*h, vAN+4*h+mo(h)) + cvt4(vK+8*h+4, vK+8*h+4)
            VA += [f"v_and_b32 v{vAN+4*h+to(h)+k}, v{vK+8*h+4+k}, v{vMk+h}" for k in range(2)]
        weave(dm, VA)
        def Nreg(nt, h): return vN + 20*(nt % 2) + 4*h
        def Mreg(nt): return vN + 20*(nt % 2) + 16
        def mn(nt): return [f"v_mfma_f32_16x16x32_bf16 {v(Nreg(nt,h),4)}, {v(vAN+4*h,4)}, {v(bq(nt,h),4)}, 0" for h in range(4)]
        def mm(nt): return trim(Mreg(nt), vAM, nt, "0")
        def rcp(nt): return [f"v_rcp_f32 v{vD+4*nt+i}, v{vD+4*nt+i}" for i in range(4)]
        def post(nt):
            V = []
            d = vD + 4*nt
            o = vK + 8*nt
            for h in range(4):
                n = Nreg(nt,h)
                V += [f"v_mul_f32 v{n+k}, v{n+k}, v{d+h}" for k in range(4)]
                V += cvt4(n, o+2*h)
                if h & 1: V.append(f"global_store_dwordx4 v{vSt+nt}, {v(o+2*h-2,4)}, {s(S_WS,2)} offset:{512*(h-1)} sc1")
            V.append(f"v_cndmask_b32 v16, v{d}, v{d+1}, s[44:45]")
            V.append(f"v_cndmask_b32 v17, v{d+2}, v{d+3}, s[44:45]")
            V.append(f"v_cndmask_b32 v16, v16, v17, s[46:47]")
            m_ = Mreg(nt)
            V += [f"v_mul_f32 v{m_+k}, v{m_+k}, v16" for k in range(4)]
            t4 = 20 + 4*(nt >> 1)
            V += cvt4(m_, t4 + 2*(nt & 1))
            if nt & 1: V.append(f"global_store_dwordx4 v{vSt+4+nt//2}, {v(t4,4)}, {s(S_WS,2)} sc1")
            return V
        A("s_waitcnt lgkmcnt(0)")
        weave(mn(0) + mn(1), tri(vK+32, vAM, vMk+8, vMk+13) + rcp(0))
        weave(mm(0) + mm(1), post(0)[:20])
        for l in post(0)[20:] + rcp(1): A(l)
        weave(mn(2) + mm(2), post(1)[:28])
        for l in post(1)[28:] + rcp(2): A(l)
        weave(mn(3) + mm(3), post(2)[:28])
        for l in post(2)[28:] + rcp(3): A(l)
        for l in post(3): A(l)
        stamp(A, 8)
        A("s_waitcnt vmcnt(0)")
        msignal(A, 19, 5)
        endpgm(A)

A_CS = 4032
A_Z = 16240
A_U0 = A_Z + 16
A_CH = A_U0 + 4096
SROW = 272

def A_chan(A):
    sW, sD, sT, sBase, sCnt, sT2 = 40, 41, 42, 43, 44, 45
    vP = 88
    vDer = 14
    vG = 26
    vAA, vBA, vB0, vOA = 36, 37, 38, 39
    vFX, vTW1, vTW2, vTW3, vTW0, vDsk = 40, 41, 42, 43, 44, 45
    vZ, vW, vW2, vZZ = 46, 48, 50, 52
    vS = 54
    vP = 54
    vAcc = 80
    vFr = 96
    A(f"s_mul_i32 s{sT}, s{sD}, 384")
    A(f"v_lshl_add_u32 v2, v1, 2, s{sT}")
    A(f"v_lshl_add_u32 v3, v1, 1, s{sT}")
    A(f"s_lshl_b32 s{sT}, s{sD}, 1")
    A(f"v_mov_b32 v4, s{sT}")
    A("s_waitcnt lgkmcnt(0)")
    A(f"global_load_ushort v{vP+12}, v4, {s(S_LDT,2)}")
    A(f"global_load_ushort v{vP+13}, v4, {s(S_DSK,2)}")
    for i, sp in enumerate((S_ARE, S_AIM, S_BRE, S_BIM, S_CRE, S_CIM)):
        A(f"global_load_dword v{vP+i}, v2, {s(sp,2)}")
        A(f"global_load_ushort v{vP+6+i}, v3, {s(sp,2)} offset:256")
    if OPT["nt"] & 4: ntify(A, len(A.lines)-12)
    A(f"s_mul_i32 s{sBase}, s{sW}, {A_CH}")
    sMode, sMain, sAux, sTb = 60, 61, 62, 63
    A(f"s_cmp_eq_u32 s{sMode}, 2"); A(f"s_cselect_b32 s{sT}, {2*A_CH}, 0"); A(f"s_sub_u32 s{sMain}, s{sBase}, s{sT}")
    A(f"s_add_u32 s{sAux}, s{sMain}, {2*A_CH}")
    A(f"s_mul_i32 s{sTb}, s{sMode}, 3072"); A(f"s_add_u32 s{sTb}, s{sTb}, 1024"); A(f"s_add_u32 s{sTb}, s{sTb}, s{sAux}")
    A(f"s_cmp_eq_u32 s{sMode}, 0"); A(f"s_cselect_b32 s{sTb}, s{sBase}, s{sTb}")
    A(f"v_sub_u32 v2, 63, v1")
    A(f"v_lshlrev_b32 v2, 1, v2")
    A(f"v_lshl_add_u32 v{vG}, v2, 2, s{sTb}")
    for beta in (1, 2, 3):
        for e in range(3):
            r = vG + 1 + 3*(beta-1) + e
            A(f"v_add_u32 v3, {e}, v2")
            A(f"v_bfe_u32 v4, v3, {beta}, 1")
            A(f"v_add3_u32 v3, v3, v4, {(1<<(beta-1))-1}")
            A(f"v_lshrrev_b32 v3, {beta}, v3")
            A(f"v_lshl_add_u32 v{r}, v3, 2, s{sTb}")
    A(f"v_and_b32 v2, 15, v1")
    A(f"v_lshrrev_b32 v3, 4, v1")
    A(f"v_sub_u32 v4, 0, v2")
    A(f"v_and_b32 v4, 3, v4")
    A(f"v_mul_u32_u24 v5, {A_CS}, v4")
    A(f"v_add_u32 v6, v2, v4")
    A(f"v_sub_u32 v6, 16, v6")
    A(f"v_lshl_add_u32 v6, v3, 3, v6")
    A(f"v_lshl_add_u32 v5, v6, 1, v5")
    A(f"v_add3_u32 v{vAA}, v5, s{sMain}, 16")
    A(f"v_lshlrev_b32 v5, 5, v2")
    A(f"v_lshl_add_u32 v6, v3, 4, v5")
    A(f"s_add_u32 s{sT}, s{sMain}, {A_U0+32}")
    A(f"v_add_u32 v{vBA}, s{sT}, v6")
    A(f"v_and_b32 v6, 1, v3"); A(f"v_lshl_add_u32 v5, v6, 9, v5")
    A(f"v_lshrrev_b32 v6, 1, v3"); A(f"v_lshl_add_u32 v6, v6, 4, v5")
    A(f"s_lshl_b32 s{sT}, s{sD}, 12")
    A(f"v_add_u32 v{vOA}, s{sT}, v6")
    A(f"v_and_b32 v2, 31, v1")
    A(f"v_lshrrev_b32 v3, 5, v1")
    A(f"v_mul_u32_u24 v4, {SROW}, v2")
    A(f"v_lshl_add_u32 v4, v3, 4, v4")
    A(f"v_add_u32 v{vFX}, s{sBase}, v4")
    A(f"v_lshlrev_b32 v4, 5, v2")
    A(f"v_lshl_add_u32 v4, v3, 4, v4")
    A(f"v_add_u32 v{vTW0}, s{sTb}, v4")
    A(f"v_cmp_eq_u32 vcc, 0, v3")
    A(f"v_lshlrev_b32 v4, 4, v2")
    A(f"v_lshlrev_b32 v5, 3, v2")
    A(f"v_add_u32 v6, 1024, v4")
    A(f"v_add_u32 v7, 1536, v5")
    A(f"v_cndmask_b32 v6, v7, v6, vcc")
    A(f"v_add_u32 v{vTW1}, s{sTb}, v6")
    A(f"v_add_u32 v6, 1032, v4")
    A(f"v_add_u32 v7, 1792, v5")
    A(f"v_cndmask_b32 v6, v7, v6, vcc")
    A(f"v_add_u32 v{vTW2}, s{sTb}, v6")
    A(f"v_lshlrev_b32 v4, 2, v2")
    A(f"v_lshl_add_u32 v4, v3, 9, v4")
    A(f"s_add_u32 s{sT}, s{sTb}, 2048")
    A(f"v_add_u32 v{vTW3}, s{sT}, v4")
    A(f"v_mov_b32 v2, 0")
    A(f"v_mov_b32 v3, 0")
    A(f"s_mov_b32 m0, s{sMain}")
    A("s_mov_b64 exec, 15")
    A(f"ds_write_addtid_b32 v2 offset:{A_Z}")
    A("s_mov_b64 exec, -1")
    A(f"s_mov_b32 m0, s{sBase}")
    A(f"v_mov_b32 v5, 0x3f80")
    A(f"ds_write_addtid_b32 v5 offset:{21*SROW}")
    for i in range(0, 80, 2):
        A(f"v_pk_mov_b32 {v(vAcc+i,2)}, v[2:3], v[2:3]")
    stamp(A, 1)
    A("s_waitcnt vmcnt(0)")
    stamp(A, 2)
    A(f"v_lshlrev_b32 v2, 16, v{vP+12}")
    A(f"v_mul_f32 v2, {hex(f2u(LOG2E))}, v2")
    A(f"v_exp_f32 v2, v2")
    A(f"v_cmp_eq_u32 vcc, 0, v1")
    A(f"v_lshlrev_b32 v3, 16, v{vP+13}")
    A(f"v_cvt_pk_bf16_f32 v2, v2, v2")
    A(f"v_cndmask_b32 v{vDsk}, 0, v3, vcc")
    A(f"v_and_b32 v2, 0xffff0000, v2")
    for p in range(3):
        for i in range(6):
            src = vP + i if p < 2 else vP + 6 + i
            if p == 1: A(f"v_and_b32 v{4+i}, 0xffff0000, v{src}")
            else:      A(f"v_lshlrev_b32 v{4+i}, 16, v{src}")
        d = vDer + 4*p
        A(f"v_pk_mul_f32 v[4:5], v[4:5], v[2:3] op_sel_hi:[1,0]")
        A(f"v_pk_mul_f32 v[6:7], v[6:7], v[2:3] op_sel_hi:[1,0]")
        A(f"v_mul_f32 v{d}, {hex(f2u(LOG2E))}, v4")
        A(f"v_mul_f32 v{d+1}, 0.15915494, v5")
        A(f"v_pk_mul_f32 v[10:11], v[8:9], v[6:7] op_sel_hi:[1,0]")
        A(f"v_pk_fma_f32 {v(d+2,2)}, v[8:9], v[6:7], v[10:11] op_sel:[1,1,0] op_sel_hi:[0,1,1] neg_lo:[1,0,0]")
    A(f"s_sub_u32 s{sCnt}, 3, s{sMode}")
    A(f"s_cmp_eq_u32 s{sMode}, 2"); A("s_cbranch_scc0 A_p0")
    for i in range(4): A(f"v_mov_b32 v{vDer+i}, v{vDer+8+i}")
    A.label("A_p0")
    A("v_mov_b32 v160, 0")
    A(f"s_mov_b32 s{sT}, {hex(f2u(8.0))}")
    A(f"s_mov_b32 s{sT2}, {hex(f2u(256.0))}")
    stamp(A, 3)
    A(".p2align 3")
    A.label("A_pass")
    A(f"global_load_dword v161, v160, {s(S_DBG,2)} sc1")
    body = []
    def cexp(dst, t, scale):
        if scale is None:
            return [f"v_exp_f32 v{t}, v{vDer}", f"v_fract_f32 v{t+1}, v{vDer+1}",
                    f"v_cos_f32 v{dst}, v{t+1}", f"v_sin_f32 v{dst+1}, v{t+1}",
                    f"v_pk_mul_f32 {v(dst,2)}, {v(dst,2)}, {v(t,2)} op_sel_hi:[1,0]"]
        return [f"v_mul_f32 v{t}, s{scale}, v{vDer}", f"v_mul_f32 v{t+1}, s{scale}, v{vDer+1}",
                f"v_exp_f32 v{t}, v{t}", f"v_fract_f32 v{t+1}, v{t+1}",
                f"v_cos_f32 v{dst}, v{t+1}", f"v_sin_f32 v{dst+1}, v{t+1}",
                f"v_pk_mul_f32 {v(dst,2)}, {v(dst,2)}, {v(t,2)} op_sel_hi:[1,0]"]
    e1, e2, e3 = cexp(vW, 2, sT), cexp(vZ, 4, None), cexp(vZZ, 6, sT2)
    for i in range(6):
        for e in (e1, e2, e3):
            if i < len(e) - 1: body.append(e[i])
    body.append("s_waitcnt lgkmcnt(0)")
    body.append("s_nop 0")
    body += [e2[-1], e1[-1], e3[-1]]
    def P(k): return vS + 6*k
    C = vDer + 2
    X2, X4, X6 = 8, 10, 12
    s1 = [(vW2, vW, vW, 21+2, 0)] + [(P(0), vW2 if j == 4 else P(0), vW2, 21+j, 0) for j in range(4, 32, 2)]
    s2 = [(vW, None, None, 21+1, 0)] + [(P(1), vW if j == 3 else P(1), vW2, 21+j, 0) for j in range(3, 32, 2)]
    s3 = [(C, None, None, 0, 1), (P(2), C, vZ, 1, 1), (X2, P(2), vZ, 2, 1), (P(2), X2, vZ, 3, 1), (X4, P(2), vZ, 4, 1),
          (P(2), X4, vZ, 5, 1), (X6, P(2), vZ, 6, 1), (P(2), X6, vZ, 7, 1),
          (P(2), X4, vZZ, 10, 1), (P(2), P(2), vZZ, 13, 1), (P(2), P(2), vZZ, 15, 1)]
    s4 = [(P(3), C, vZZ, 8, 1), (P(3), P(3), vZZ, 12, 1), (P(3), P(3), vZZ, 14, 1), (P(3), P(3), vZZ, 16, 1),
          (P(3), P(3), vZZ, 17, 1), (P(3), P(3), vZZ, 18, 1), (P(3), P(3), vZZ, 19, 1), (P(3), P(3), vZZ, 20, 1),
          (P(3), X2, vZZ, 9, 1), (P(3), X6, vZZ, 11, 1)]
    streams = [s1, s2, s3, s4]
    mf = [f"v_mfma_f32_32x32x16_bf16 {v(vAcc,16)}, {v(vFr+8*q,4)}, {v(vFr+8*q+4,4)}, {v(vAcc,16)}" for q in range(8)]
    for l in body: A(l)
    pendw = []
    for i in range(16):
        ops = [(k, st[i]) for k, st in enumerate(streams) if i < len(st)]
        V = []
        if OPT["scalar"]:
            for k, (d, sr, m, row, ng) in ops:
                if sr is not None: V += [f"v_mul_f32 v{P(k)+2}, v{sr+1}, v{m+1}", f"v_mul_f32 v{P(k)+3}, v{sr}, v{m+1}"]
            for k, (d, sr, m, row, ng) in ops:
                if sr is not None: V += [f"v_fma_f32 v{d}, v{sr}, v{m}, -v{P(k)+2}", f"v_fma_f32 v{d+1}, v{sr+1}, v{m}, v{P(k)+3}"]
        else:
            for k, (d, sr, m, row, ng) in ops:
                if sr is not None: V.append(f"v_pk_mul_f32 {v(P(k)+2,2)}, {v(sr,2)}, {v(m,2)} op_sel_hi:[1,0]")
            for k, (d, sr, m, row, ng) in ops:
                if sr is not None: V.append(f"v_pk_fma_f32 {v(d,2)}, {v(sr,2)}, {v(m,2)}, {v(P(k)+2,2)} op_sel:[1,1,0] op_sel_hi:[0,1,1] neg_lo:[1,0,0]")
        for k, (d, sr, m, row, ng) in ops:
            V.append(f"v_cvt_pk_bf16_f32 v{P(k)+4+(i&1)}, v{d}, {'-' if ng else ''}v{d+1}")
        if i < 8: A(mf[i])
        stp = max(1, len(V)//max(1,len(pendw)))
        for n, l in enumerate(V):
            A(l)
            if pendw and n % stp == stp - 1: A(pendw.pop(0))
        for l in pendw: A(l)
        pendw = [f"ds_write_addtid_b32 v{P(k)+4+(i&1)} offset:{row*SROW}" for k, (d, sr, m, row, ng) in ops]
        if i >= 12:
            for q in (2*(i-12), 2*(i-12)+1): A(f"ds_read_b128 {v(vFr+8*q,4)}, v{vFX} offset:{32*q}")
    for l in pendw: A(l)
    for q in range(8):
        A(f"ds_read_b128 {v(vFr+8*q+4,4)}, v{vFX} offset:{32*q+21*SROW}")
        if q < 4: A(f"v_pk_mov_b32 {v(vDer+2*q,2)}, {v(vDer+4+2*q,2)}, {v(vDer+4+2*q,2)} op_sel:[0,1]")
    A(f"s_sub_u32 s{sCnt}, s{sCnt}, 1")
    A(f"s_cmp_lg_u32 s{sCnt}, 0")
    A("s_cbranch_scc1 A_pass")
    stamp(A, 4)
    for q in range(8):
        A(f"s_waitcnt lgkmcnt({7-q})")
        A(mf[q])
    A(f"s_cmp_eq_u32 s{sMode}, 1"); A("s_cbranch_scc1 A_nou")
    poll(A, 160, S_DBG, 32, 1, vt=161, first_loaded=True, sleep=24)
    A(f"s_mul_i32 s46, s{sD}, 820"); A("s_lshr_b32 s46, s46, 16")
    A("s_lshl_b32 s46, s46, 7"); A(f"s_add_u32 s46, s46, {WS_CT}")
    A("v_mov_b32 v4, s46")
    srd(A, 48, S_WS, WSZ)
    A(f"s_lshl_b32 s46, s{sD}, 12"); A(f"s_add_u32 s46, s46, {WS_UT}")
    A("v_lshlrev_b32 v7, 4, v1")
    A(f"s_add_u32 m0, s{sMain}, {A_U0}")
    poll(A, 4, S_WS, 32, 1, vt=6, sleep=24)
    for j in range(4):
        A(f"buffer_load_dwordx4 v7, s[48:51], s46 offen" + (f" offset:{1024*j}" if j else "") + " sc1 lds")
    A.label("A_nou")
    A("s_nop 9")
    A(f"s_cmp_eq_u32 s{sMode}, 0"); A("s_cbranch_scc1 A_nox")
    A(f"s_cmp_eq_u32 s{sMode}, 1"); A("s_cselect_b32 s46, 14464, 0"); A("s_sub_u32 s47, 14464, s46")
    A(f"s_add_u32 s46, s46, s{sAux}"); A(f"s_add_u32 s47, s47, s{sAux}")
    A("v_lshl_add_u32 v4, v1, 4, s46"); A("v_lshl_add_u32 v5, v1, 4, s47")
    for k in range(3): A(f"ds_write_b128 v4, {v(vAcc+4*k,4)} offset:{1024*k}")
    A("s_waitcnt lgkmcnt(0)")
    A("s_barrier")
    for k in range(3): A(f"ds_read_b128 {v(vFr+4*k,4)}, v5 offset:{1024*k}")
    for k in range(3):
        A(f"s_waitcnt lgkmcnt({2-k})")
        for i in range(4): A(f"v_add_f32 v{vAcc+4*k+i}, v{vAcc+4*k+i}, v{vFr+4*k+i}")
    A.label("A_nox")
    A(f"v_add_f32 v{vAcc}, v{vAcc}, v{vDsk}")
    A(f"ds_write_b128 v{vTW0}, {v(vAcc,4)}")
    A(f"ds_write_b64 v{vTW1}, {v(vAcc+4,2)}")
    A(f"ds_write_b64 v{vTW2}, {v(vAcc+6,2)}")
    for i in range(4):
        A(f"ds_write_b32 v{vTW3}, v{vAcc+8+i} offset:{128*i}")
    stamp(A, 5)
    vE, vO = 46, 62
    blkX = [15, 0, 14, 13, 12, 11, 10, 9]; blkY = [8, 7, 6, 5, 4, 3, 2, 1]
    def cv(r2):
        A(f"v_cvt_pk_bf16_f32 v{vE+r2}, v{vFr+3*r2+2}, v{vFr+3*r2+1}")
        A(f"v_cvt_pk_bf16_f32 v{vO+r2}, v{vFr+3*r2+1}, v{vFr+3*r2}")
    def gathers(order):
        for n, rp in enumerate(order):
            beta = 0 if rp < 2 else 1 if rp < 4 else 2 if rp < 8 else 3
            base = [0, 256, 384, 512][beta]; r0 = [0, 2, 4, 8][beta]
            off = 4 * (base + (128 >> beta) * (rp - r0))
            for e in range(3):
                if beta == 0: A(f"ds_read_b32 v{vFr+3*rp+e}, v{vG} offset:{off+4*e}")
                else: A(f"ds_read_b32 v{vFr+3*rp+e}, v{vG+1+3*(beta-1)+e} offset:{off}")
            if n >= 4:
                A("s_waitcnt lgkmcnt(12)"); cv(order[n-4])
        for n in range(4):
            A(f"s_waitcnt lgkmcnt({9-3*n})"); cv(order[4+n])
    vSp = 14
    def cw(rp):
        rho = 15 - rp
        A(f"ds_write_addtid_b32 v{vE+rp} offset:{4+256*rho}")
        A(f"ds_write_addtid_b32 v{vO+rp} offset:{4+A_CS+256*rho}")
        A(f"ds_write_addtid_b32 v{vE+rp} offset:{2*A_CS+256*rho}")
        A(f"ds_write_addtid_b32 v{vO+rp} offset:{3*A_CS+256*rho}")
    A(f"s_add_u32 m0, s{sMain}, 12")
    A(f"s_cmp_eq_u32 s{sMode}, 2"); A("s_cbranch_scc1 A_gx")
    gathers(blkY)
    A(f"s_cmp_eq_u32 s{sMode}, 1"); A("s_cbranch_scc1 A_wy")
    A.label("A_gx")
    gathers(blkX)
    A(f"v_cmp_eq_u32 vcc, 0, v1")
    A(f"v_cvt_pk_bf16_f32 v2, v{vAcc}, 0")
    A(f"v_mov_b32 v3, 0")
    A(f"v_cndmask_b32 v2, 0, v2, vcc")
    cw(15)
    for k, c_ in enumerate((62, 63)):
        A(f"ds_read_b64 {v(vSp+4*k,2)}, v{vAA} offset:{64*(63-c_)}")
        A(f"ds_read_b64 {v(vSp+4*k+2,2)}, v{vAA} offset:{64*(63-c_)+8}")
    for rp in blkX[1:]: cw(rp)
    A("s_mov_b64 exec, 0xff")
    A(f"ds_write_addtid_b32 v2 offset:{4+4096}")
    A(f"ds_write_addtid_b32 v3 offset:{4+A_CS+4096}")
    A(f"ds_write_addtid_b32 v2 offset:{2*A_CS+4096}")
    A(f"ds_write_addtid_b32 v3 offset:{3*A_CS+4096}")
    A("s_mov_b64 exec, -1")
    A(f"s_cmp_eq_u32 s{sMode}, 2"); A("s_cbranch_scc1 A_wd")
    A.label("A_wy")
    for rp in blkY: cw(rp)
    A.label("A_wd")
    A(f"s_add_u32 s{sT}, s{sMain}, {A_Z}")
    stamp(A, 6)
    A("s_waitcnt vmcnt(0) lgkmcnt(0)")
    A(f"s_cmp_eq_u32 s{sMode}, 0"); A("s_cbranch_scc1 A_nb2")
    A("s_barrier")
    A.label("A_nb2")
    stamp(A, 7)
    vY, vFa = 128, 96
    def Breg(b, r): return 44 + 4*(b-3) if b >= 3 else 64 + 12*(r % 2) + 4*b
    def Areg(a, r): return vSp + 4*(r-6) if (a == 7 and r >= 6) else vFa + 4*a
    def rdA(a, r):
        if a == 7 and r >= 6: return []
        c_ = 8*a + r
        return [f"ds_read_b64 {v(vFa+4*a,2)}, v{vAA} offset:{64*(63-c_)}", f"ds_read_b64 {v(vFa+4*a+2,2)}, v{vAA} offset:{64*(63-c_)+8}"]
    def rdB(b, r):
        if b == 0:
            return [f"v_subrev_u32 v{vB0}, {64*(r+1)}, v{vBA}", f"v_max_i32 v{vB0}, s{sT}, v{vB0}", f"ds_read_b128 {v(Breg(0,r),4)}, v{vB0}"]
        return [f"ds_read_b128 {v(Breg(b,r),4)}, v{vBA} offset:{512*(b-1)+64*(7-r)}"]
    issued = []
    def issue(l):
        A(l)
        if l.startswith("ds_read"): issued.append(Ins(l).w)
    done = [0]
    def need_regs(R):
        idx = max([i for i, w in enumerate(issued) if w & R] + [-1])
        if idx >= done[0]:
            n = min(len(issued) - 1 - idx, 15)
            A(f"s_waitcnt lgkmcnt({n})")
            done[0] = len(issued) - n
    def first_reads(r):
        return rdA(0, r) + [l for b in range(7, -1, -1) for l in rdB(b, r)] + [l for a in range(1, 8) for l in rdA(a, r)]
    A(f"s_cmp_eq_u32 s{sMode}, 2"); A("s_cbranch_scc0 A_c0")
    for l in first_reads(4): A(l)
    for i in range(32): A(f"v_mov_b32 v{vY+i}, 0")
    A("s_waitcnt lgkmcnt(0)")
    A("s_branch A_c4")
    A.label("A_c0")
    for l in first_reads(0): issue(l)
    for r in range(8):
        if r == 4:
            A(f"s_cmp_eq_u32 s{sMode}, 1"); A("s_cbranch_scc1 A_red0")
            A.label("A_c4")
        q_ = []
        if r < 7:
            for b in (2, 1, 0): q_ += rdB(b, r+1)
        for a in range(8):
            for b in range(7-a, -1, -1):
                t = a + b
                c_ = "0" if (r == 0 and a == 0) else v(vY+4*t,4)
                need_regs(regs(v(Areg(a,r),4)) | regs(v(Breg(b,r),4)))
                A(f"v_mfma_f32_16x16x32_bf16 {v(vY+4*t,4)}, {v(Areg(a,r),4)}, {v(Breg(b,r),4)}, {c_}")
                if r < 7 and b == 7-a and b >= 3: q_ += rdB(b, r+1)
                if r < 7 and b == 0: q_ = rdA(a, r+1) + q_ if a == 0 else q_ + rdA(a, r+1)
                for _ in range(1 if a < 5 else 2):
                    if q_: issue(q_.pop(0))
        for l in q_: issue(l)
    stamp(A, 8)
    def outp(t):
        o = 44 + 2*t
        for l in cvt4(vY+4*t, o) + cvt4(vY+4*t+4, o+2): A(l)
        A(f"v_permlane16_swap_b32 v{o}, v{o+2}")
        A(f"v_permlane16_swap_b32 v{o+1}, v{o+3}")
        A(f"global_store_dwordx4 v{vOA}, {v(o,4)}, {s(S_WS,2)} offset:{512*t} sc1")
    def red(give, keep, og, ok):
        A(f"v_lshl_add_u32 v4, v1, 4, s{sAux}")
        A("s_nop 7")
        for k in range(4): A(f"ds_write_b128 v4, {v(vY+give+4*k,4)} offset:{og+1024*k}")
        A("s_waitcnt lgkmcnt(0)")
        A("s_barrier")
        for k in range(4): A(f"ds_read_b128 {v(vFa+4*k,4)}, v4 offset:{ok+1024*k}")
        for k in range(4):
            A(f"s_waitcnt lgkmcnt({3-k})")
            for i in range(4): A(f"v_add_f32 v{vY+keep+4*k+i}, v{vY+keep+4*k+i}, v{vFa+4*k+i}")
    A(f"s_cmp_eq_u32 s{sMode}, 0"); A("s_cbranch_scc1 A_lo")
    red(0, 16, 4096, 0)
    A("s_branch A_hi")
    A.label("A_red0")
    stamp(A, 8)
    red(16, 0, 0, 4096)
    A.label("A_lo")
    outp(0); outp(2)
    A(f"s_cmp_eq_u32 s{sMode}, 1"); A("s_cbranch_scc1 A_sig")
    A.label("A_hi")
    outp(4); outp(6)
    A.label("A_sig")
    A(f"s_lshr_b32 s46, s{sD}, 4"); A("s_lshl_b32 s46, s46, 7"); A(f"s_add_u32 s46, s46, {WS_CA}")
    A(f"s_cmp_eq_u32 s{sMode}, 0"); A("s_cselect_b32 s47, 2, 1")
    A("s_waitcnt vmcnt(0)")
    signal(A, 46, val="s47")
    endpgm(A)

def T_role(A, sN):
    A("s_getpc_b64 s[44:45]")
    A.label("T_pc")
    A("s_sub_u32 s44, s44, T_pc-KERNEL"); A("s_subb_u32 s45, s45, 0")
    A("v_lshlrev_b32 v3, 7, v0")
    A(f"s_bitcmp1_b32 s{sN}, 3"); A("s_cselect_b32 s41, 0x8000, 0"); A("v_add_u32 v3, s41, v3")
    A("v_min_u32 v3, X_exit-KERNEL, v3")
    A(f"s_cmp_ge_u32 s{sN}, 16"); A("s_cbranch_scc0 T_cpf")
    A("s_mov_b64 exec, 1")
    A.label("T_cpf")
    A("global_load_dword v128, v3, s[44:45]")
    A("s_mov_b64 exec, -1")
    A("s_waitcnt lgkmcnt(0)")
    A(f"s_cmp_lt_u32 s{sN}, 56"); A("s_cbranch_scc1 T_nozero")
    A(f"s_mul_i32 s52, s6, {ZPW}"); A(f"s_add_u32 s52, s52, {WS_KV+4096}")
    A("v_lshl_add_u32 v8, v0, 4, s52")
    A(f"v_min_u32 v9, {ZPW//16-512-1}, v0")
    A("s_add_u32 s52, s52, 4096")
    A("v_lshl_add_u32 v9, v9, 4, s52")
    for i in range(4): A(f"v_mov_b32 v{12+i}, 0")
    A(f"global_store_dwordx4 v8, v[12:15], {s(S_WS,2)} offset:-4096 sc1")
    A(f"global_store_dwordx4 v8, v[12:15], {s(S_WS,2)} sc1")
    A(f"global_store_dwordx4 v9, v[12:15], {s(S_WS,2)} sc1")
    A("s_mov_b32 s52, 0")
    A("s_waitcnt vmcnt(0)")
    signal(A, 52, base=S_DBG, va=10, vd=11)
    A.label("T_nozero")
    A("v_lshrrev_b32 v2, 3, v1"); A("v_and_b32 v3, 7, v1")
    A("v_mul_u32_u24 v4, 10240, v2"); A("v_lshl_add_u32 v4, v3, 4, v4")
    A("v_add_u32 v5, 5120, v4")
    A("v_lshlrev_b32 v6, 15, v3"); A("v_lshl_add_u32 v6, v2, 4, v6")
    A("s_and_b32 s41, s6, 3"); A("s_lshl_b32 s41, s41, 3"); A(f"s_lshr_b32 s54, s{sN}, 3"); A("s_add_u32 s41, s41, s54"); A("s_lshr_b32 s42, s6, 2")
    A("s_mul_i32 s43, s42, 5"); A("s_add_u32 s43, s43, s40")
    A(f"s_mul_i32 s44, s41, {64*1280}"); A("s_lshl_b32 s45, s43, 7"); A("s_add_u32 s44, s44, s45")
    A("s_lshl_b32 s45, s43, 18"); A("s_lshl_b32 s46, s41, 7"); A("s_add_u32 s45, s45, s46"); A(f"s_add_u32 s45, s45, {WS_UT}")
    A("s_mov_b32 s46, 0x05040100"); A("s_mov_b32 s47, 0x07060302")
    A(f"s_add_u32 s48, s{S_U}, s44"); A(f"s_addc_u32 s49, s{S_U+1}, 0")
    A(f"s_add_u32 s50, s{S_WS}, s45"); A(f"s_addc_u32 s51, s{S_WS+1}, 0")
    A("v_min_u32 v9, 59, v1"); A("v_lshlrev_b32 v9, 7, v9")
    A("s_add_u32 s55, s40, 3"); A("s_and_b32 s55, s55, 3"); A("s_add_u32 s55, s55, 1"); A("s_lshl_b32 s55, s55, 6")
    A(f"s_add_u32 s55, s55, s{sN}"); A(f"s_mul_i32 s55, s55, {2*3840}"); A("v_add_u32 v9, s55, v9")
    if OPT["tdelay"]: A("s_waitcnt vmcnt(0)")
    stamp(A, 1)
    if OPT["tpf"] == 2:
        A("s_cmp_eq_u32 s40, 1"); A("s_cbranch_scc0 T_l1")
        A(f"global_load_dword v129, v9, {s(S_WQKV,2)}")
        A.label("T_l1")
    for i in range(8):
        A(f"global_load_dwordx4 {v(16+4*i,4)}, v{4 if i<4 else 5}, s[48:49] offset:{1280*(i%4)}")
    A("s_cmp_eq_u32 s40, 0"); A("s_cbranch_scc0 T_no2")
    A("s_add_u32 s48, s48, 512"); A("s_addc_u32 s49, s49, 0")
    for i in range(8):
        A(f"global_load_dwordx4 {v(80+4*i,4)}, v{4 if i<4 else 5}, s[48:49] offset:{1280*(i%4)}")
    if OPT["nt"] & 8: ntify(A, len(A.lines)-21)
    A.label("T_no2")
    if OPT["tpf"] == 2:
        A(f"global_load_dword v129, v9, {s(S_WQKV,2)}")
        A("s_waitcnt vmcnt(1)")
    else:
        A("s_waitcnt vmcnt(0)")
    stamp(A, 2)
    A("s_mov_b32 s53, s40")
    A.label("T_loop")
    for k in range(8):
        for i in range(4):
            A(f"v_perm_b32 v{48+4*k+i}, v{16+8*i+4+k//2}, v{16+8*i+k//2}, s{47 if k%2 else 46}")
        A(f"global_store_dwordx4 v6, {v(48+4*k,4)}, s[50:51] sc1")
        A("s_add_u32 s50, s50, 4096"); A("s_addc_u32 s51, s51, 0")
    A("s_cmp_lg_u32 s53, 0"); A("s_cbranch_scc1 T_done")
    A("s_mov_b32 s53, 1")
    for i in range(0, 32, 2): A(f"v_pk_mov_b32 {v(16+i,2)}, {v(80+i,2)}, {v(80+i,2)} op_sel:[0,1]")
    A(f"s_add_u32 s50, s50, {(4<<18) - 8*4096}"); A("s_addc_u32 s51, s51, 0")
    A("s_branch T_loop")
    A.label("T_done")
    A("v_mov_b32 v10, 0")
    A(f"global_load_dword v11, v10, {s(S_DBG,2)} sc1")
    stamp(A, 3)
    poll(A, 10, S_DBG, 32, 1, vt=11, first_loaded=True)
    A("s_barrier")
    A("s_cmp_lg_u32 s40, 0"); A("s_cbranch_scc1 T_nosig")
    A("s_lshl_b32 s42, s42, 9"); A(f"s_add_u32 s42, s42, {WS_CT}")
    A("v_lshl_add_u32 v10, v1, 7, s42")
    msignal(A, 10, 4, vd=11)
    A.label("T_nosig")
    stamp(A, 4)

def F_role(A):
    sRB, sCB = 3, 4
    SW, SS = 48, 52
    vWf = 96
    vAcc = 64
    vAt = 48
    vGt = 44
    vR1, vR2, vRo, vO = 2, 3, 4, 5
    A("s_and_b32 s6, s7, 7"); A("s_lshr_b32 s7, s7, 3")
    A("s_mul_i32 s41, s7, 52"); A("s_lshr_b32 s41, s41, 8")
    A(f"s_lshl_b32 s{sRB}, s6, 2"); A(f"s_add_u32 s{sRB}, s{sRB}, s41")
    A("s_mul_i32 s41, s41, 5"); A(f"s_sub_u32 s{sCB}, s7, s41")
    A(f"s_and_b32 s56, s{sCB}, 3")
    srd(A, SW, S_WO, 640*1280)
    srd(A, SS, S_WS, WSZ)
    A("v_lshrrev_b32 v6, 4, v0"); A("v_and_b32 v7, 15, v0")
    A("v_and_b32 v8, 7, v6"); A("v_lshlrev_b32 v8, 1, v8"); A("v_xor_b32 v7, v7, v8")
    A("v_mul_u32_u24 v6, 1280, v6"); A("v_lshl_add_u32 v6, v7, 4, v6")
    A(f"s_lshl_b32 s42, s{sCB}, 8"); A("v_add_u32 v6, s42, v6")
    A("s_lshl_b32 s45, s40, 10")
    A("v_and_b32 v8, 15, v1"); A("v_lshrrev_b32 v9, 4, v1")
    A("v_lshrrev_b32 v10, 2, v8"); A("v_and_b32 v11, 3, v8")
    A("v_lshl_add_u32 v12, v9, 2, v10")
    A("s_lshl_b32 s41, s40, 6")
    A("v_lshl_add_u32 v13, v11, 3, s41")
    A("v_and_b32 v14, 7, v12"); A("v_lshlrev_b32 v14, 5, v14"); A("v_xor_b32 v14, v14, v13")
    A(f"v_lshl_add_u32 v{vR1}, v12, 8, v14")
    A("v_mul_u32_u24 v15, 20, v9"); A("v_add3_u32 v15, v15, v10, 16")
    A(f"v_lshl_add_u32 v{vR2}, v15, 8, v14")
    A(f"v_xor_b32 v16, 32, v{vR1}"); A(f"v_xor_b32 v17, 128, v{vR1}"); A(f"v_xor_b32 v18, 160, v{vR1}")
    A(f"v_xor_b32 v19, 32, v{vR2}")
    A(f"v_lshlrev_b32 v{vRo}, 4, v1")
    def wo_dma(l):
        A(f"s_xor_b32 s41, s56, {l}"); A(f"s_mul_i32 s41, s41, {160*1280}")
        for k in range(10):
            A(f"s_add_u32 m0, s45, {40960*(l%2) + 4096*k}")
            if k: A(f"s_add_u32 s41, s41, {16*1280}")
            A(f"buffer_load_dwordx4 v6, {s(SW,4)}, s41 offen lds")
    def wo_read(l):
        for p5 in range(5):
            f = 5*l + p5
            for ct in range(2):
                for h in range(2):
                    d = v(vWf+8*f+4*ct+2*h, 2)
                    if p5 < 4: A(f"ds_read_b64_tr_b16 {d}, v{[[vR1,16],[17,18]][h][ct]} offset:{256*(40*p5+20*h)}")
                    else:      A(f"ds_read_b64_tr_b16 {d}, v{[vR2,19][ct]} offset:{256*80*h}")
        sg = "add" if l % 2 == 0 else "subrev"
        if l < 3:
            for r in (vR1, vR2, 16, 17, 18, 19): A(f"v_{sg}_u32 v{r}, 40960, v{r}")
    if OPT["fst"] == 2: stamp(A, 1)
    wo_dma(0); wo_dma(1)
    if OPT["fst"] == 2: stamp(A, 2)
    for l in range(2):
        A("s_waitcnt vmcnt(10)"); A("s_barrier")
        wo_read(l)
        A("s_waitcnt lgkmcnt(0)"); A("s_barrier")
        if OPT["fst"] == 2 and l == 0: stamp(A, 3)
        wo_dma(l+2)
        if OPT["fst"] == 2: stamp(A, 4+l)
    A(f"s_mul_i32 s41, s{sRB}, 5"); A(f"s_add_u32 s41, s41, s{sCB}"); A("s_lshl_b32 s41, s41, 7"); A(f"s_add_u32 s41, s41, {WS_CF}")
    A(f"s_lshl_b32 s42, s{sCB}, 2"); A("s_add_u32 s42, s42, s40"); A("s_lshl_b32 s42, s42, 8"); A(f"s_add_u32 s42, s42, {WS_CA}")
    A("v_min_u32 v20, 1, v1"); A("v_lshl_add_u32 v20, v20, 7, s42")
    A("v_mov_b32 v21, s41")
    A("v_lshrrev_b32 v22, 3, v1"); A("v_and_b32 v23, 7, v1")
    A("v_lshlrev_b32 v22, 12, v22"); A("v_lshl_add_u32 v22, v23, 4, v22")
    A(f"s_lshl_b32 s57, s{sCB}, 2"); A("s_add_u32 s57, s57, s40"); A("s_lshl_b32 s57, s57, 17")
    A(f"s_lshl_b32 s42, s{sRB}, 7"); A("s_add_u32 s57, s57, s42")
    A("s_lshl_b32 s58, s40, 12")
    A("v_lshlrev_b32 v23, 7, v12"); A("v_lshl_add_u32 v23, v11, 3, v23"); A("v_add_u32 v23, s58, v23")
    A(f"s_lshl_b32 s41, s{sRB}, 6"); A("v_add_u32 v24, s41, v8")
    A(f"v_lshlrev_b32 v25, 2, v24"); A(f"v_add_u32 v25, {WS_G}, v25")
    A("v_mul_u32_u24 v24, 1280, v24")
    A("v_and_b32 v26, 1, v9"); A("v_lshl_add_u32 v24, v26, 5, v24")
    A("v_lshrrev_b32 v26, 1, v9"); A("v_lshl_add_u32 v24, v26, 4, v24")
    A(f"s_lshl_b32 s41, s{sCB}, 8"); A("s_lshl_b32 s42, s40, 6"); A("s_add_u32 s41, s41, s42")
    A(f"v_add_u32 v{vO}, s41, v24")
    A("s_waitcnt vmcnt(10)"); A("s_barrier")
    wo_read(2)
    A("s_waitcnt vmcnt(0)"); A("s_barrier")
    wo_read(3)
    A("s_and_b32 s41, s56, 1"); A("s_lshl_b32 s41, s41, 3")
    A(f"v_add_u32 v24, s41, v{vRo}"); A("v_xor_b32 v26, 8, v24")
    A("s_waitcnt lgkmcnt(0)")
    stamp(A, 7)
    def at_dma():
        for j in range(4):
            A(f"s_add_u32 m0, s58, {1024*j}")
            A(f"s_add_u32 s42, s57, {8*4096*j}")
            A(f"buffer_load_dwordx4 v22, {s(SS,4)}, s42 offen sc1 lds")
    A.label("F_poll")
    A("s_cmp_lg_u32 s40, 0"); A("s_cbranch_scc1 F_go")
    A("s_mov_b64 exec, 1")
    poll(A, 21, S_WS, 8, 1, vt=27, sleep=1)
    A("s_mov_b64 exec, -1")
    A.label("F_go")
    A("s_barrier")
    stamp(A, 8)
    A(f"s_mul_i32 s47, s{sRB}, {2*40960}"); A(f"s_add_u32 s47, s47, {WS_OF}")
    def odma(gi):
        G = []
        for m in range(5):
            if m < 2:   pre = [f"s_add_u32 s42, s{60+2*(gi%2)}, {4096*m + 40960*(gi//2)}"]
            elif m > 2: pre = [f"s_add_u32 s42, s{61+2*(gi%2)}, {4096*m + 40960*(gi//2)}"]
            else:       pre = [f"s_add_u32 s42, s{64+(gi%2)}, {4096*m + 40960*(gi//2)}"]
            G.append([f"s_add_u32 m0, s45, {20480*gi + 4096*m}"] + pre + [f"buffer_load_dwordx4 v{vRo}, {s(SS,4)}, s42 offen {'sc1 ' if OPT['osc1'] else ''}lds"])
        return G
    return_setup = []
    for l in range(4):
        return_setup += [f"s_xor_b32 s41, s56, {l}", "s_mul_i32 s41, s41, 10240", "s_add_u32 s41, s41, s47", f"s_add_u32 s{60+l}, s41, s45"]
        if l & 1: return_setup += [f"s_sub_u32 s{60+l}, s{60+l}, 10240"]
    return_setup += ["s_cmp_lt_u32 s40, 2", "s_cselect_b32 s64, s60, s61", "s_cselect_b32 s65, s62, s63"]
    idx = A.lines.index("F_poll:")
    tail = A.lines[-2:]; del A.lines[-2:]
    A.lines[idx:idx] = tail + return_setup
    for g in odma(0) + odma(1)[:2]:
        for l in g: A(l)
    if OPT["fst"] == 1: stamp(A, 1)
    fr = [28, 32, 36, 40, 8, 12, 16]
    seq = [(n, k) for n in range(8) for k in range(10)]
    def rd(i):
        n, k = seq[i]; rt, ph = k % 2, k // 2; r = fr[i % 7]
        if ph < 4: return [f"ds_read_b128 {v(r,4)}, v{vRo if i < 40 else 7} offset:{10240*(n%4) + 4096*rt + 1024*ph}"]
        return [f"ds_read_b64 {v(r+2*c,2)}, v{[24,26][(n&1)^rt]} offset:{10240*(n%4) + 8192 + 1024*c}" for c in range(2)]
    issued = []; done = [0]
    def issue(i):
        if i == 40:
            A(f"v_add_u32 v7, 40960, v{vRo}"); A("v_add_u32 v24, 40960, v24"); A("v_add_u32 v26, 40960, v26")
        for l in rd(i):
            A(l); issued.append(i)
    def need_i(i):
        idx = max(j for j, x in enumerate(issued) if x == i)
        if idx >= done[0]:
            n = min(15, len(issued) - 1 - idx)
            A(f"s_waitcnt lgkmcnt({n})"); done[0] = len(issued) - n
    LOOK = 5
    late = [(g, p) for g, p in zip(odma(1)[2:] + odma(2) + odma(3), [0,2,4, 7,10,13,16,19, 22,25,28,31,34])]
    late += [([f"global_load_dword v27, v20, {s(S_WS,2)} sc1"], 37)]
    late += [([f"global_load_dword v{vGt+rt}, v25, {s(S_WS,2)} offset:{64*rt} sc1"], 39+2*rt) for rt in range(4)]
    needn = {0: 3, 10: 5, 20: 10, 40: 15, 60: 21}
    nvm = 7
    nxt = 0
    for i in range(80):
        while nxt < 80 and nxt <= i + LOOK:
            if nxt in needn:
                A(f"s_waitcnt vmcnt({nvm - needn[nxt]})"); A("s_barrier")
                if OPT["fst"] == 1: stamp(A, 2 + list(needn).index(nxt))
                if nxt == 60:
                    A("v_cmp_le_u32 vcc, 32, v27")
                    A("s_and_b32 s59, vcc_lo, 3")
                    A("s_cmp_eq_u32 s59, 3"); A("s_cbranch_scc0 F_noat")
                    at_dma()
                    A.label("F_noat")
            issue(nxt); nxt += 1
        n, k = seq[i]; rt, ph = k % 2, k // 2
        if i % 2 == 0: need_i(i+1)
        for ct in range(2):
            d = v(vAcc + 8*(2*(n//4)+rt) + 4*ct, 4)
            A(f"v_mfma_f32_16x16x32_bf16 {d}, {v(vWf+8*(5*(n%4)+ph)+4*ct,4)}, {v(fr[i%7],4)}, {'0' if (n%4==0 and ph==0) else d}")
            if ct == 0 and late and late[0][1] == i:
                for l in late.pop(0)[0]: A(l)
                nvm += 1
    stamp(A, 9)
    A("s_cmp_eq_u32 s59, 3"); A("s_cbranch_scc1 F_fin")
    A("s_mov_b64 exec, 3")
    poll(A, 20, S_WS, 32, 3, vt=27, sleep=8)
    A("s_mov_b64 exec, -1")
    at_dma()
    A.label("F_fin")
    A("s_waitcnt vmcnt(0)")
    for rt in range(4):
        for ct in range(2):
            A(f"ds_read_b64_tr_b16 {v(vAt+4*rt+2*ct,2)}, v23 offset:{2048*ct+32*rt}")
    for rt in range(4):
        o = 96 + 12*rt
        for ct in range(2):
            tm = o + 4 + 4*ct; ac = vAcc + 8*rt + 4*ct; a_ = vAt + 4*rt + 2*ct
            A(f"s_waitcnt lgkmcnt({7-2*rt-ct})")
            A(f"v_lshlrev_b32 v{tm}, 16, v{a_}"); A(f"v_and_b32 v{tm+1}, 0xffff0000, v{a_}")
            A(f"v_lshlrev_b32 v{tm+2}, 16, v{a_+1}"); A(f"v_and_b32 v{tm+3}, 0xffff0000, v{a_+1}")
            gsel = f"op_sel:[0,{rt&1},0] op_sel_hi:[1,{rt&1},1]"
            for k in (0, 2):
                A(f"v_pk_add_f32 {v(tm+k,2)}, {v(tm+k,2)}, {v(ac+k,2)} neg_lo:[0,1] neg_hi:[0,1]")
            for k in (0, 2):
                A(f"v_pk_fma_f32 {v(tm+k,2)}, {v(tm+k,2)}, {v(vGt+(rt&2),2)}, {v(ac+k,2)} {gsel}")
            for l in cvt4(tm, o+2*ct): A(l)
        A(f"s_add_u32 s44, s{S_OUT}, {16*1280*rt}"); A(f"s_addc_u32 s45, s{S_OUT+1}, 0")
        A(f"v_permlane16_swap_b32 v{o}, v{o+2}")
        A(f"v_permlane16_swap_b32 v{o+1}, v{o+3}")
        A(f"global_store_dwordx4 v{vO}, {v(o,4)}, s[44:45]")
    endpgm(A)

def unpack(lines):
    out = []
    def half(op, hi):
        m = re.match(r"([vs])\[(\d+):(\d+)\]", op)
        return f"{m.group(1)}{int(m.group(2))+hi}"
    for l in lines:
        if not l.startswith("v_pk_"):
            out.append(l); continue
        i = Ins(l); n = len(i.ops) - 1
        def mod(name, dflt):
            m = re.search(name + r":\[([01,]+)\]", i.mods)
            return [int(x) for x in m.group(1).split(",")] if m else [dflt]*n
        sel, selh, nl, nh = mod("op_sel", 0), mod("op_sel_hi", 1), mod("neg_lo", 0), mod("neg_hi", 0)
        if i.op == "v_pk_mov_b32":
            out += [f"v_mov_b32 {half(i.ops[0],0)}, {half(i.ops[1],sel[0])}", f"v_mov_b32 {half(i.ops[0],1)}, {half(i.ops[2],sel[1])}"]
            continue
        base = {"v_pk_mul_f32": "v_mul_f32", "v_pk_add_f32": "v_add_f32", "v_pk_fma_f32": "v_fma_f32"}[i.op]
        two = []
        for hi, (se, ng) in enumerate(((sel, nl), (selh, nh))):
            srcs = [half(i.ops[1+k], se[k]) for k in range(n)]
            if n == 2:
                if base == "v_add_f32" and ng[1] and not ng[0]:
                    two.append(f"v_sub_f32 {half(i.ops[0],hi)}, {srcs[0]}, {srcs[1]}"); continue
                assert not any(ng)
                if srcs[1].startswith("s"): srcs = srcs[::-1]
            else:
                srcs = [("-" if ng[k] else "") + srcs[k] for k in range(n)]
            two.append(f"{base} {half(i.ops[0],hi)}, " + ", ".join(srcs))
        assert not (Ins(two[0]).w & Ins(two[1]).r), l
        out += two
    return out

def build(path):
    _lab[0] = 0
    A = Asm(); prologue(A)
    A("v_and_b32 v1, 63, v0")
    A("v_lshrrev_b32 v2, 6, v0")
    A("v_readfirstlane_b32 s40, v2")
    A("s_and_b32 s6, s2, 7"); A("s_lshr_b32 s7, s2, 3")
    if OPT["codepf"]:
        A("s_cmp_lt_u32 s2, 448"); A("s_cbranch_scc1 nopf")
        A("s_getpc_b64 s[44:45]")
        A("v_lshlrev_b32 v3, 7, v0")
        A("s_and_b32 s44, s44, 0xffffff00")
        A("v_min_u32 v3, CODE_END_OFF, v3")
        A("global_load_dword v255, v3, s[44:45]")
        A.label("nopf")
    A("s_cmp_ge_u32 s2, 192"); A("s_cbranch_scc1 notG")
    A("s_cmp_ge_u32 s2, 128"); A("s_cselect_b32 s63, 1, 0")
    A("s_and_b32 s41, s7, 3"); A("s_and_b32 s3, s6, 3"); A("s_lshl_b32 s3, s3, 2"); A("s_add_u32 s3, s3, s41")
    A("s_lshr_b32 s42, s7, 2")
    A("s_lshr_b32 s43, s6, 2"); A("s_sub_u32 s44, 2, s63"); A("s_lshl_b32 s43, s43, s44")
    A("s_and_b32 s4, s42, 3"); A("s_add_u32 s4, s4, s43")
    A("s_mul_i32 s41, s41, 5"); A("s_add_u32 s41, s41, 1"); A("s_lshr_b32 s41, s41, 1")
    A("s_lshl_b32 s5, s42, 1"); A("s_add_u32 s5, s5, s41")
    if OPT["rot"] == 2:
        A("s_and_b32 s41, s6, 3"); A("s_add_u32 s5, s5, s41"); A("s_lshr_b32 s41, s6, 2"); A("s_add_u32 s5, s5, s41")
        A("s_cmp_ge_u32 s5, 20"); A("s_cselect_b32 s41, 10, 0"); A("s_sub_u32 s5, s5, s41")
    A("s_cmp_ge_u32 s5, 10"); A("s_cselect_b32 s41, 10, 0"); A("s_sub_u32 s5, s5, s41")
    if not OPT["rot"]: A("s_mov_b32 s5, 0")
    A("s_setprio 2")
    G_start(A, 3, 4, 63, 5)
    A("s_cmp_eq_u32 s63, 1"); A("s_cbranch_scc1 Q_comp")
    G_compute(A, False, 3, 4, 5, "KV")
    A.label("Q_comp")
    G_compute(A, True, 3, 4, 5, "Q")
    A.label("notG")
    A("s_cmp_ge_u32 s2, 256"); A("s_cbranch_scc1 isA")
    A("s_setprio 2")
    A("s_sub_u32 s5, s2, 192")
    if OPT["noT"]: A("s_branch X_exit")
    T_role(A, 5)
    A("s_cmp_ge_u32 s2, 224"); A("s_cbranch_scc1 T_exit")
    A("s_sub_u32 s7, s2, 64")
    A.label("F_entry")
    F_role(A)
    A.label("T_exit")
    A("s_sub_u32 s41, s7, 28"); A("s_mul_i32 s41, s41, 160")
    A("v_lshrrev_b32 v2, 1, v0"); A("v_and_b32 v3, 1, v0"); A("v_add_u32 v2, s41, v2")
    A("v_mul_u32_u24 v2, 1280, v2"); A("v_lshl_add_u32 v2, v3, 7, v2")
    A(f"global_load_dword v4, v2, {s(S_WO,2)}")
    A(f"v_add_u32 v2, {32*1280}, v2")
    A("s_cmp_lt_u32 s40, 3"); A("s_cbranch_scc1 T_exit2")
    A(f"global_load_dword v5, v2, {s(S_WO,2)}")
    A.label("T_exit2")
    endpgm(A)
    if OPT["l2pf"]:
        A.label("PF")
        A("s_sub_u32 s42, s7, 32")
        A("s_cmp_eq_u32 s42, 23"); A("s_cbranch_scc1 X_exit")
        A("s_cmp_lt_u32 s42, 8"); A("s_cbranch_scc1 PF_x")
        A("s_sub_u32 s42, s42, 8"); A("s_lshl_b32 s42, s42, 6"); A("v_add_u32 v2, s42, v1")
        A("v_mul_u32_u24 v3, 4370, v2"); A("v_lshrrev_b32 v3, 16, v3")
        A("v_mul_u32_u24 v4, 15, v3"); A("v_sub_u32 v2, v2, v4")
        A("v_mul_u32_u24 v4, 52, v2"); A("v_lshrrev_b32 v4, 8, v4")
        A("v_mul_u32_u24 v3, 3840, v3"); A("v_lshl_add_u32 v3, v2, 7, v3")
        A("v_mul_u32_u24 v4, 640, v4")
        A("s_lshr_b32 s43, s6, 2"); A("s_mul_i32 s43, s43, 640")
        A("v_add3_u32 v3, v3, v4, s43")
        A(f"s_mov_b32 s44, {64*3840}")
        A("s_waitcnt lgkmcnt(0)")
        A(f"s_mov_b32 s46, s{S_WQKV}"); A(f"s_mov_b32 s47, s{S_WQKV+1}")
        A("s_branch PF_go")
        A.label("PF_x")
        A("s_and_b32 s43, s6, 3"); A("s_lshl_b32 s43, s43, 3"); A("s_add_u32 s42, s42, s43"); A("s_lshl_b32 s42, s42, 6")
        A("v_add_u32 v2, s42, v1"); A("v_mul_u32_u24 v3, 1280, v2")
        A("s_movk_i32 s44, 128")
        A("s_waitcnt lgkmcnt(0)")
        A(f"s_mov_b32 s46, s{S_U}"); A(f"s_mov_b32 s47, s{S_U+1}")
        A.label("PF_go")
        A("s_mul_i32 s45, s44, s40"); A("v_add_u32 v3, s45, v3")
        A("s_lshl_b32 s44, s44, 1")
        for i in range(4):
            A(f"global_load_dword v{8+i}, v3, s[46:47]")
            if i < 3: A("v_add_u32 v3, s44, v3")
        A("s_endpgm")
    A.label("isA")
    A("s_cmp_ge_u32 s2, " + str({0: 512, 1: 0}.get(OPT["noA"], 512))); A("s_cbranch_scc1 X_exit")
    if OPT["noA"] == 2: A("s_cmp_lt_u32 s2, 448"); A("s_cbranch_scc1 X_exit")
    A("s_mul_i32 s41, s6, 80")
    A("s_cmp_ge_u32 s7, 56"); A("s_cbranch_scc1 isA4")
    A("s_lshr_b32 s60, s40, 1"); A("s_add_u32 s60, s60, 1"); A("s_and_b32 s43, s40, 1")
    A("s_lshl_b32 s42, s7, 1"); A("s_sub_u32 s42, s42, 64"); A("s_branch isA2")
    A.label("isA4")
    A("s_mov_b32 s60, 0"); A("s_mov_b32 s43, s40")
    A("s_lshl_b32 s42, s7, 2"); A(f"s_sub_u32 s42, s42, {224-48}")
    A.label("isA2")
    A("s_add_u32 s41, s41, s42"); A("s_add_u32 s41, s41, s43")
    A_chan(A)
    A.label("X_exit"); A("s_endpgm")
    kn = NAME + "_kernel"
    if OPT["nopk"]: A.lines = unpack(A.lines)
    A.lines = [l.replace("CODE_END_OFF", f"X_exit-{kn}").replace("KERNEL", kn) for l in A.lines]
    emit([kernel_text(kn, A, 256)], [(kn, 512, 256, LDS)], path)

if __name__ == "__main__":
    for a in sys.argv[1:]:
        k, val = a.split("="); OPT[k] = int(val)
    build("u.s"); gen.STAMPS = True; build("us.s")
```

```python
import sys, re, gen
from gen import *
def probe(sels):
    A = Asm()
    A("s_load_dwordx2 s[4:5], s[0:1], 120")
    A("s_cmp_ge_u32 s2, 1"); A("s_cbranch_scc1 PR_exit")
    A("s_waitcnt lgkmcnt(0)")
    A(f"s_add_u32 s4, s4, {WS_ST}"); A("s_addc_u32 s5, s5, 0")
    def red(first, n, wlo, whi, idx, op, dst):
        A(f"v_mov_b32 v10, {0 if op=='max' else -1}")
        for k in range((n+63)//64):
            for w in range(wlo, whi):
                A(f"v_add_u32 v1, {64*k}, v0"); A(f"v_min_u32 v1, {n-1}, v1"); A(f"v_add_u32 v1, {first}, v1")
                A("v_lshlrev_b32 v1, 9, v1")
                A(f"global_load_dword v2, v1, s[4:5] offset:{64*w+4*idx}")
                A("s_waitcnt vmcnt(0)")
                A(f"v_{op}_u32 v10, v10, v2")
        A(f"s_mov_b32 s{dst}, {0 if op=='max' else -1}")
        for l in range(64):
            A(f"v_readlane_b32 s20, v10, {l}"); A(f"s_{op}_u32 s{dst}, s{dst}, s20")
    red(0, 512, 0, 1, 11, "min", 10)
    red(*sels[0], 11); red(*sels[1], 12)
    for r in (11, 12):
        A(f"s_sub_u32 s{r}, s{r}, s10"); A(f"s_mul_i32 s{r}, s{r}, 3277"); A(f"s_lshr_b32 s{r}, s{r}, 16"); A(f"s_min_u32 s{r}, s{r}, 127")
    A("s_lshl_b32 s12, s12, 7"); A("s_add_u32 s11, s11, s12"); A("s_mul_i32 s11, s11, 150")
    A("s_add_u32 s11, s11, s10"); A("s_add_u32 s11, s11, 10000")
    A.label("PR_w")
    A("s_memrealtime s[14:15]"); A("s_waitcnt lgkmcnt(0)")
    A("s_sub_u32 s16, s14, s11"); A("s_cmp_lt_i32 s16, 0"); A("s_cbranch_scc1 PR_w")
    A.label("PR_exit"); A("s_endpgm")
    return kernel_text("probe_kernel", A, 32, 48)
def make(src, sels, path):
    t = open(src).read().replace("s_memtime", "s_memrealtime")
    L = [l for l in t.split("\n") if l.startswith("; @launch")][0]
    c, kd = probe(sels)
    t = t.replace(L, L + "\n; @launch kernel=probe_kernel grid=(1,1,1) block=(64,1,1) lds=0")
    t = t.replace('.section .rodata,"a"\n', c + '.section .rodata,"a"\n.p2align 6\n' + kd)
    open(path, "w").write(t)
if __name__ == "__main__":
    src = sys.argv[1]
    KV = (0,128,0,4); Q = (128,64,0,4); Q0=(128,64,0,1); T = (192,64,0,4); A2 = (256,192,0,4); AA = (256,256,0,4); ALL=(0,512,0,1)
    S = [[ALL+(11,"max"), KV+(10,"max")], [KV+(2,"max"), KV+(4,"max")], [KV+(6,"max"), Q0+(6,"max")], [Q+(5,"max"), Q+(10,"max")], [KV+(7,"max"), KV+(8,"max")], [T+(4,"max"), AA+(10,"max")]]
    for i, s_ in enumerate(S): make(src, s_, f"pr{i}.s")
```

```python
import sys, gen, re
from gen import *
from genG import srd, setexec
from g2 import phi4, cvt4

FULL = (1<<64)-1
KVH = 1680
KVG = 6784
CSH = int([a.split("=")[1] for a in sys.argv if a.startswith("csh=")][0]) if any(a.startswith("csh=") for a in sys.argv) else 8
WS_CQ = WS_KV + 8*KVG
WS_CF = WS_CQ + (64<<CSH)
WS_CA = WS_CF + (160<<CSH)
WS_FA = WS_CA
WS_CP = 0x680000
WS_UH = WS_CP + 200*256
WS_C2 = WS_FA + 324*128
ZPW = (8*KVG + (224<<CSH) + 328*128) // 8
WS_UT = 0 if 'al=1' in sys.argv else 0x900000
WSZ = 0xC00000
LDS = 81920
SPIN = 300000
OPT = dict(codepf=False, rot=2, l2pf=False, tpf=3, nopk=1, qd=2, gt=1, al=1, ex=0, mo=0, nq=0, pl=0, g3=0, pw=1, uh=448, oo=1, ov=1, tmg=1, kw=8, wd=1333, a4w=0, ep=0, pft=1, pfe=3, rm=0, xthr=0, finl=1, fchk=67, ks=1, kforce=0, t3=0, bal=0, tm=0, l2p=0, rev=1, wnt=0, tfix=1, a4d=0, sst=0, sig4=0, safe0=0, dith=0, sp=3, two=2, ls=10, w1=6, w1c=20, nb=4, cw=1, dofs=1, rc=1, peel=1, wb=3, kg=1, onlyA4=0, conv=0, ue=1, b0=2, a4t=1, noQ=0, fl0=0, py=0, la=2, spec=1, force=0, pre=0, ca=30, wsig=1, ast=0, lp=[0,1,2,3,5,7,9,11,13,15,17,19,21], aprio=1, epg=4, tb=76, fp=0, qs=2, e0=60, fs=1, gap=2, nq0=5, twait=0, wfirst=0, r1=5, pk=0, pq=0, full=1, endw=1, hold=0, tp=0, cadir=0, fx=0, alt=0, nr=7, ont=2, rs=4352, tw=0, gst=0, rtail=2, early=0, grp=1, thr=3, big=0, cut=0, dry=0, fst=0, osc1=1, nt=4, noA=0, noT=0, spin=300000, tdelay=0, scalar=True, sleep=2)

_lab = [0]
def poll(A, vaddr, sbase, vexp, mask, vt=2, first_loaded=False, sleep=None, cmp='le', spin=None):
    _lab[0] += 1; L = f"poll{_lab[0]}"
    A(f"s_mov_b32 s66, {spin or OPT['spin']}")
    if first_loaded: A(f"s_branch {L}c")
    A.label(L)
    A(f"global_load_dword v{vt}, v{vaddr}, {s(sbase,2)} sc1")
    A.label(L + "c")
    A("s_waitcnt vmcnt(0)")
    A(f"v_cmp_{cmp}_u32 vcc, {vexp}, v{vt}")
    A(f"s_and_b32 vcc_lo, vcc_lo, {mask}")
    A(f"s_cmp_eq_u32 vcc_lo, {mask}")
    A(f"s_cbranch_scc1 {L}d")
    A(f"s_sleep {sleep or OPT['sleep']}")
    A("s_sub_u32 s66, s66, 1")
    A("s_cmp_lg_u32 s66, 0")
    A(f"s_cbranch_scc1 {L}")
    A.label(L + "d")

def fpoll(A, vaddr, sbase, exp, vt, depth=3, gap=2):
    _lab[0] += 1; L = f"fp{_lab[0]}"
    A(f"s_mov_b32 s66, {OPT['spin']}")
    for k in range(depth-1):
        A(f"global_load_dword v{vt+k}, v{vaddr}, {s(sbase,2)} sc1"); A(f"s_sleep {gap}")
    A.label(L)
    for k in range(depth):
        A(f"global_load_dword v{vt+(k+depth-1)%depth}, v{vaddr}, {s(sbase,2)} sc1")
        A(f"s_waitcnt vmcnt({depth-1})")
        A(f"v_cmp_le_u32 vcc, {exp}, v{vt+k}")
        A(f"s_cbranch_vccnz {L}d")
        A(f"s_sleep {gap}")
    A("s_sub_u32 s66, s66, 1"); A("s_cmp_lg_u32 s66, 0"); A(f"s_cbranch_scc1 {L}")
    A.label(L + "d")

def signal(A, soff, base=S_WS, va=3, vd=2, val="1"):
    A("s_mov_b64 exec, 1")
    A(f"v_mov_b32 v{va}, s{soff}")
    A(f"v_mov_b32 v{vd}, {val}")
    A(f"global_atomic_add v{va}, v{vd}, {s(base,2)} sc1")
    A("s_mov_b64 exec, -1")

def lsignal(A, soff, base, val, total, flagoff, va=3, vd=2, fbase=None, hint=None):
    _lab[0] += 1; L = f"ls{_lab[0]}"
    A("s_mov_b64 exec, 1")
    A(f"v_mov_b32 v{va}, {soff}")
    A(f"v_mov_b32 v{vd}, {val}")
    A(f"global_atomic_add v{vd+2}, v{va}, v{vd}, {s(base,2)} sc0 sc1")
    A(f"v_add_u32 v{va}, {flagoff}, v{va}" if fbase is None else f"v_mov_b32 v{va}, {flagoff}")
    A("s_waitcnt vmcnt(0)")
    A(f"v_add_u32 v{vd+2}, v{vd+2}, v{vd}")
    A(f"v_cmp_eq_u32 vcc, {total}, v{vd+2}")
    A("s_and_b64 exec, exec, vcc")
    A(f"s_cbranch_execz {L}")
    A(f"global_store_dword v{va}, v{vd}, {s(base if fbase is None else fbase,2)} sc1")
    if hint:
        A(f"v_mov_b32 v{vd+2}, {hint}"); A("s_waitcnt vmcnt(0)")
        A(f"global_atomic_add v{vd+2}, v{vd}, {s(S_WS,2)} sc1")
    A.label(L)
    A("s_mov_b64 exec, -1")

def pflag(A, va, vd):
    A("s_lshl_b32 s58, s2, 8"); A(f"s_add_u32 s58, s58, {WS_CP}")
    A(f"v_mov_b32 v{va}, s58"); A(f"v_mov_b32 v{vd}, 1")
    A("s_mov_b64 exec, 1")
    A(f"global_atomic_add v{va}, v{vd}, {s(S_WS,2)} sc1")
    A("s_mov_b64 exec, -1")

def msignal(A, vaddr, nl, vd=2):
    A(f"v_mov_b32 v{vd}, 1")
    A(f"s_mov_b64 exec, {(1<<nl)-1}")
    A(f"global_atomic_add v{vaddr}, v{vd}, {s(S_WS,2)} sc1")
    A("s_mov_b64 exec, -1")

def spread(A, ms, fl, lead=0, tail=0):
    n = len(ms) - lead - tail
    for k, m_ in enumerate(ms):
        A(m_)
        kk = k - lead
        if 0 <= kk < n:
            for g in fl[(kk*len(fl))//n : ((kk+1)*len(fl))//n]:
                for l in ([g] if isinstance(g, str) else g): A(l)

G_X = 0; G_W = 32768; G_WS = 10240; G_GW = G_W + 4*G_WS
sKx, sKw, sMx, sMw = 43, 44, 46, 47
SX, SWq = 48, 52
vXA, vWA = 8, 12
def dmaX(j, slot):
    return [f"s_add_u32 m0, s{sMx}, {G_X + 16384*slot + 4096*j}", f"buffer_load_dwordx4 v{vXA+j}, {s(SX,4)}, s{sKx} offen lds"]
def dmaW(m, slot):
    return [f"s_add_u32 m0, s{sMw}, {2*G_WS*slot + 4096*m}", f"buffer_load_dwordx4 v{vWA+m}, {s(SWq,4)}, s{sKw} offen lds"]
sTab = 64
advK = [f"s_and_b32 s{sKw}, s{sTab}, 15", f"s_lshr_b64 s[{sTab}:{sTab+1}], s[{sTab}:{sTab+1}], 4",
        f"s_lshl_b32 s{sKx}, s{sKw}, 7", f"s_mul_i32 s{sKw}, s{sKw}, {64*3840}"]
def dma_even(slot): return [dmaX(0,slot), dmaW(0,slot), dmaX(1,slot), dmaW(1,slot), dmaX(2,slot)]
def dma_odd(slot): return [dmaW(2,slot), dmaX(3,slot), dmaW(3,slot), dmaW(4,slot) + advK]

def ntify(A, n0, n1=None):
    A.lines[n0:n1] = [(l.replace(" lds", " nt lds") if l.endswith(" lds") else l + " nt") if (l.startswith(("buffer_load", "global_load")) and "sc1" not in l) else l for l in A.lines[n0:n1]]

def G_start(A, sRB, sCG, sQ, sRot):
    n0 = len(A.lines)
    A("v_lshrrev_b32 v3, 3, v1")
    A("v_and_b32 v4, 7, v1")
    A("v_lshrrev_b32 v5, 4, v1")
    A("v_xor_b32 v4, v4, v5")
    A("v_mul_u32_u24 v3, 1280, v3")
    A("v_lshl_add_u32 v6, v4, 4, v3")
    A("s_and_b32 s57, s40, 1"); A("s_lshr_b32 s56, s40, 1")
    A("s_lshl_b32 s41, s57, 6"); A(f"s_mul_i32 s58, s57, {8*1280}")
    A("v_xor_b32 v6, s41, v6")
    A("s_mov_b32 s42, 0") if OPT["gt"] else A(f"s_and_b32 s42, s{sCG}, s{sQ}")
    A("s_xor_b32 s42, s42, s56")
    A(f"s_mul_i32 s41, s{sRB}, {128*1280}"); A("s_add_u32 s41, s41, s58")
    for j in range(4):
        A(f"s_xor_b32 s58, s42, {2*j}")
        A(f"s_mul_i32 s58, s58, {16*1280}")
        A("s_add_u32 s58, s58, s41")
        A(f"v_add_u32 v{vXA+j}, s58, v6")
    A(f"s_lshl_b32 s{sMx}, s40, 10"); A(f"s_add_u32 s{sMw}, s{sMx}, {G_W}")
    A(f"s_mov_b64 s[60:61], s[{sTab}:{sTab+1}]")
    for l in advK: A(l)
    wf = OPT["wfirst"]
    def xs():
        srd(A, SX, S_U, 2048*1280)
        if OPT["qd"]: A(f"s_cmp_eq_u32 s{sQ}, 1"); A("s_cbranch_scc1 G_nx")
        for j in range(4):
            for l in dmaX(j, 0): A(l)
        if OPT["qd"]: A.label("G_nx")
    if not wf:
        if OPT["sst"]: stamp(A, 7)
        A("s_waitcnt lgkmcnt(0)")
        if OPT["sst"]: stamp(A, 8)
        if not OPT['gt']:
            A(f"s_cmp_eq_u32 s{sQ}, 0"); A("s_cbranch_scc1 G_nogl")
            A("v_min_u32 v40, 79, v0")
            A("v_lshrrev_b32 v41, 3, v40"); A("v_lshlrev_b32 v41, 2, v41")
            A("v_lshrrev_b64 v[42:43], v41, s[60:61]")
            A("v_and_b32 v42, 15, v42"); A("v_and_b32 v40, 7, v40")
            A("v_lshlrev_b32 v40, 4, v40"); A("v_lshl_add_u32 v40, v42, 7, v40")
            A(f"global_load_dwordx4 v[24:27], v40, {s(S_GW,2)}")
            A.label("G_nogl")
        xs()
        srd(A, SWq, S_WQKV, 640*3840)
    A(f"s_cmp_eq_u32 s{sQ}, 1")
    A(f"s_cselect_b32 s59, 0, 1280"); A(f"s_cselect_b32 s62, 0, 1120"); A(f"s_lshl_b32 s58, 160, s{sQ}")
    A(f"s_mul_i32 s58, s58, s{sCG}"); A("s_add_u32 s58, s58, s59")
    A("v_mov_b32 v7, s62")
    for m in range(5):
        if m: A(f"v_add_u32 v3, {256*m}, v0")
        src = "v3" if m else "v0"
        A(f"v_mul_u32_u24 v4, 3277, {src}")
        A("v_lshrrev_b32 v4, 16, v4")
        A("v_mul_u32_u24 v5, 20, v4")
        A(f"v_sub_u32 v3, {src}, v5")
        A("v_lshrrev_b32 v5, 2, v4")
        A("v_and_b32 v5, 2, v5")
        A("v_xor_b32 v3, v3, v5")
        A("v_cmp_lt_u32 vcc, 9, v3")
        A("v_mul_u32_u24 v4, 3840, v4")
        A("v_lshl_add_u32 v4, v3, 4, v4")
        A("v_cndmask_b32 v5, 0, v7, vcc")
        A(f"v_add3_u32 v{vWA+m}, v4, v5, s58")
        if not wf:
            if OPT["qd"]: A(f"s_cmp_eq_u32 s{sQ}, 1"); A(f"s_cbranch_scc1 G_nw{m}")
            for l in dmaW(m, 0): A(l)
            if OPT["qd"]: A.label(f"G_nw{m}")
    if wf:
        A("s_waitcnt lgkmcnt(0)")
        if not OPT['gt']:
            A(f"s_cmp_eq_u32 s{sQ}, 0"); A("s_cbranch_scc1 G_nogl")
            A("v_min_u32 v40, 79, v0")
            A("v_lshrrev_b32 v41, 3, v40"); A("v_lshlrev_b32 v41, 2, v41")
            A("v_lshrrev_b64 v[42:43], v41, s[60:61]")
            A("v_and_b32 v42, 15, v42"); A("v_and_b32 v40, 7, v40")
            A("v_lshlrev_b32 v40, 4, v40"); A("v_lshl_add_u32 v40, v42, 7, v40")
            A(f"global_load_dwordx4 v[24:27], v40, {s(S_GW,2)}")
            A.label("G_nogl")
        srd(A, SWq, S_WQKV, 640*3840)
        for l in dmaW(2, 0): A(l)
        A(f"s_bitcmp1_b32 s{sRB}, {1 if OPT['g3'] else 0}"); A("s_cbranch_scc1 G_desc")
        for m in (0, 1):
            for l in dmaW(m, 0): A(l)
        A.label("G_desc")
        for m in (3, 4):
            for l in dmaW(m, 0): A(l)
        A(f"s_bitcmp1_b32 s{sRB}, {1 if OPT['g3'] else 0}"); A("s_cbranch_scc0 G_asc")
        for m in (0, 1):
            for l in dmaW(m, 0): A(l)
        A.label("G_asc")
        xs()
    if not OPT["qd"]:
        for l in advK: A(l)
    if OPT["sst"]: stamp(A, 9)

def G_compute(A, q, sRB, sCG, sRot, L):
    qg = q and not OPT['gt']
    sW, sT, sT2, sRH, sCH, sCnt = 40, 41, 42, 56, 57, 45
    vRA = 2; vRB = 17; vGA = 22; vGF = 24; vGacc = 32; vB = 36; vA = 76; vAcc = 140
    A(f"v_and_b32 v42, 15, v1")
    A(f"v_lshrrev_b32 v43, 4, v1")
    A(f"v_lshrrev_b32 v44, 1, v42")
    A(f"v_xor_b32 v44, v44, v43")
    A(f"v_lshlrev_b32 v45, 7, v42")
    A(f"s_lshl_b32 s{sT}, s{sRH}, 13")
    A(f"v_add_u32 v45, s{sT}, v45")
    A(f"v_lshl_add_u32 v{vRA}, v44, 4, v45")
    A(f"v_xor_b32 v{vRA+1}, 64, v{vRA}")
    A(f"v_lshrrev_b32 v44, 2, v42")
    A(f"v_and_b32 v45, 3, v42")
    A(f"v_lshl_add_u32 v44, v43, 3, v44")
    A(f"v_mul_u32_u24 v44, 320, v44")
    A(f"v_add_u32 v44, {G_W}, v44")
    A(f"v_and_b32 v46, 1, v43"); A(f"v_lshlrev_b32 v46, 5, v46")
    A(f"s_mul_i32 s{sT}, s{sCH}, {160 if q else 80}")
    toff = [0, 40, 80, 120] if q else [0, 40, 160, 200]
    for t in range(5):
        if t < 4:
            A(f"s_add_u32 s{sT2}, s{sT}, {toff[t]}")
            A(f"v_lshl_add_u32 v47, v45, 3, s{sT2}")
        else:
            A(f"s_add_u32 s{sT2}, s{sT}, 32")
            A(f"v_mul_u32_u24 v47, 40, v45")
            if not q:
                A(f"v_lshrrev_b32 v48, 1, v45"); A(f"v_mul_u32_u24 v48, 80, v48"); A(f"v_add_u32 v47, v47, v48")
            A(f"v_add_u32 v47, s{sT2}, v47")
        A(f"v_xor_b32 v47, v47, v46")
        A(f"v_add_u32 v{vRB+t}, v47, v44")
    A("v_mov_b32 v4, 0"); A("v_mov_b32 v5, 0")
    for i in range(0, 80, 2): A(f"v_pk_mov_b32 {v(vAcc+i,2)}, v[4:5], v[4:5]")
    if qg:
        for i in range(0, 4, 2):
            A(f"v_pk_mov_b32 {v(vGacc+i,2)}, v[4:5], v[4:5]"); A(f"v_pk_mov_b32 {v(230+i,2)}, v[4:5], v[4:5]")
        A(f"s_mov_b32 s{sT}, {G_GW}")
        A(f"v_lshl_add_u32 v{vGA}, v43, 4, s{sT}")
        A(f"v_lshlrev_b32 v40, 4, v0")
        A(f"v_add_u32 v40, {G_GW}, v40")
    HS = 6912
    vSt = 236; vMk = 242
    if q:
        A(f"s_lshl_b32 s{sT}, s{sRB}, 1"); A(f"s_add_u32 s{sT}, s{sT}, s{sRH}"); A(f"s_lshl_b32 s{sT}, s{sT}, 2")
        A(f"s_and_b32 s{sT2}, s{sCG}, 1"); A(f"s_add_u32 s{sT2}, s{sT2}, s{sT}"); A(f"s_lshl_b32 s{sT2}, s{sT2}, 6"); A(f"s_add_u32 s{sT2}, s{sT2}, {WS_G}")
        A(f"v_lshl_add_u32 v226, v42, 2, s{sT2}"); A("v_lshrrev_b32 v44, 5, v1"); A("v_lshl_add_u32 v226, v44, 7, v226")
        A(f"s_mul_i32 s{sT2}, s{sCH}, {KVG}")
        A("v_mul_u32_u24 v220, 80, v42"); A(f"v_add_u32 v220, s{sT2}, v220")
        A("v_lshl_add_u32 v221, v43, 4, v220")
        A("v_lshrrev_b32 v44, 2, v42"); A("v_and_b32 v45, 3, v42")
        A(f"v_mul_u32_u24 v222, {KVH}, v44"); A("v_mul_u32_u24 v223, 80, v45")
        A(f"v_add3_u32 v222, v222, v223, s{sT2}"); A("v_lshl_add_u32 v223, v43, 4, v222")
        A(f"v_mul_u32_u24 v224, {KVH}, v45"); A(f"v_add_u32 v224, s{sT2}, v224"); A("v_lshl_add_u32 v225, v43, 4, v224")
        A(f"s_mul_i32 s20, s{sCG}, 10240"); A(f"s_add_u32 s20, s20, {WS_OF}")
        A(f"s_mul_i32 s21, s{sT}, 20480"); A("s_add_u32 s20, s20, s21")
        A(f"s_lshl_b32 s21, s{sCH}, 11"); A("s_add_u32 s21, s21, s20")
        A("v_lshl_add_u32 v46, v1, 4, s21")
        A(f"s_lshl_b32 s21, s{sCH}, 10"); A("s_add_u32 s21, s21, s20"); A("s_add_u32 s21, s21, 8192")
        A("v_lshl_add_u32 v47, v1, 4, s21")
        A(f"s_and_b32 s20, s{sCG}, {0 if OPT['gt'] else 1}"); A("s_lshl_b32 s20, s20, 12"); A("s_sub_u32 s21, 4096, s20")
        for nt in range(4):
            if nt < 2: A(f"v_add_u32 v{vSt+nt}, s{20+nt}, v46")
            else: A(f"v_add_u32 v{vSt+nt}, 40960, v{vSt+nt-2}")
            if nt & 1: A(f"v_add_u32 v{vSt+4+nt//2}, {40960*(nt//2)}, v47")
        mk = [(43, h) for h in range(4)] + [(45, h) for h in range(4)] + [(44, h) for h in range(4)] + [(45, "v43"), (44, "v43")]
        for i, (r, c) in enumerate(mk):
            A(f"v_cmp_eq_u32 s[{20+2*(i%2)}:{21+2*(i%2)}], {c}, v{r}")
            if i: A(f"v_cndmask_b32 v{vMk+i-1}, 0, -1, s[{20+2*((i-1)%2)}:{21+2*((i-1)%2)}]")
        A(f"v_cndmask_b32 v{vMk+13}, 0, -1, s[22:23]")
        A(f"s_lshl_b32 s20, s{sRB}, 2"); A(f"s_add_u32 s20, s20, s{sCG}"); A(f"s_lshl_b32 s20, s20, {CSH}"); A(f"s_add_u32 s20, s20, {WS_CQ}")
        A("v_mov_b32 v227, s20")
        A(f"s_mul_i32 s20, s{sT}, {(5<<CSH)//4}"); A(f"s_add_u32 s20, s20, {WS_CF}")
        A(f"v_lshl_add_u32 v228, v1, {CSH}, s20")
        A("v_lshlrev_b32 v229, 4, v1")
    if not q:
        A("s_mov_b32 s24, s2"); A("s_mov_b32 s25, 0"); A("s_mov_b32 s10, 0")
        F_pre(A, 2)
        A(f"s_mul_i32 s{sT}, s{sRH}, {HS}"); A(f"s_mul_i32 s{sT2}, s{sCH}, {2*KVH}"); A(f"s_add_u32 s{sT}, s{sT}, s{sT2}"); A(f"s_add_u32 s{sT}, s{sT}, 61440")
        A("v_mul_u32_u24 v224, 80, v42"); A(f"v_add_u32 v224, s{sT}, v224")
        A("v_lshl_add_u32 v225, v43, 4, v224")
        A(f"v_mul_u32_u24 v228, {KVH}, v43")
        A("v_add_u32 v224, v224, v228")
        A("v_and_b32 v226, 3, v42"); A("v_add_u32 v226, 16, v226")
        A("v_cmp_eq_u32 vcc, 0, v42"); A("v_mov_b32 v227, 20"); A("v_cndmask_b32 v226, v226, v227, vcc")
        A("v_mul_u32_u24 v226, 80, v226"); A(f"v_add_u32 v226, s{sT}, v226")
        A("v_lshl_add_u32 v227, v43, 4, v226")
        A("v_add_u32 v228, v228, v226")
        A("v_lshlrev_b32 v229, 2, v0")
        A(f"s_mul_i32 s{sT}, s{sCG}, {KVG}"); A(f"s_add_u32 s{sT}, s{sT}, {WS_KV}")
        A(f"v_add_u32 v230, s{sT}, v229"); A("v_add_u32 v231, 4096, v230"); A("v_add_u32 v229, 61440, v229")
        A("v_mov_b32 v232, 0x3f803f80")
        A("s_mov_b32 s22, 0xffff0000"); A("s_mov_b32 s23, 0")
    A("s_lshl_b32 s60, s2, 8"); A(f"s_add_u32 s60, s60, {WS_CP}")
    if OPT["nq"] and not q:
        A("v_mov_b32 v233, s60"); A("s_cmp_lt_u32 s2, 64"); A("s_cselect_b32 s61, 0x10000, 0"); A("s_add_u32 s60, s60, s61")
    A("v_mov_b32 v4, s60"); A("v_mov_b32 v5, 1"); A("v_mov_b32 v6, 0")
    A(f"s_mov_b32 s60, {hex(f2u(LOG2E))}"); A(f"s_mov_b32 s61, {hex(f2u(LOG2E))}")
    A(f"s_mov_b32 s62, {hex(f2u(1e-6))}")
    order = [0, 1, 4, 2, 3] if q else [4, 2, 3, 0, 1]
    def reads(i):
        bs = vB + 20*(i % 2)
        R = [f"ds_read_b64_tr_b16 {v(bs+4*t+2*h,2)}, v{vRB+t} offset:{G_WS*(i%4)+1280*h}" for t in order for h in range(2)]
        RA = []
        if i % 2 == 0:
            j = (i//2) % 2
            RA = [f"ds_read_b128 {v(vA+32*j+16*ks+4*mt,4)}, v{vRA+ks} offset:{G_X+16384*j+2048*mt}" for ks in range(2) for mt in range(4)]
        RG = [f"ds_read_b128 {v(vGF+4*(i%2),4)}, v{vGA} offset:{64*i}"] if qg else []
        if OPT["big"] == 1: R = R + R[:2]
        if OPT["big"] == 2: R = R + R; RA = RA[:4]
        return RA[:4] + R + RG + RA[4:]
    def mfmas(i):
        M = []
        bs = vB + 20*(i % 2); aa = vA + 32*((i//2) % 2) + 16*(i % 2)
        seq_ = [(t, mt) for k, t in enumerate(order) for mt in (range(4) if (k % 2 == 0 or OPT["mo"] != 1) else range(3, -1, -1))]
        if OPT["mo"] == 2: seq_ = seq_[:4] + [(t, mt) for k, mt in enumerate((3, 2, 1, 0)) for t in (order[1:] if k % 2 == 0 else order[:0:-1])]
        for t, mt in seq_:
            if True:
                d = v(vAcc + 20*mt + 4*t, 4)
                x, y = v(aa+4*mt,4), v(bs+4*t,4)
                M.append(f"v_mfma_f32_16x16x32_bf16 {d}, {y}, {x}, {d}" if q else f"v_mfma_f32_16x16x32_bf16 {d}, {x}, {y}, {d}")
        if OPT["big"]:
            M = [f"v_mfma_f32_32x32x16_bf16 {v(vAcc+16*t,16)}, {v(aa+4*k,4)}, {v(bs+4*t,4)}, {v(vAcc+16*t,16)}" for k in range(2) for t in range(5)]
        if qg: M.append(f"v_mfma_f32_16x16x32_bf16 {v(230,4)}, {v(vGF+4*(i%2),4)}, {v(aa+8,4)}, {v(230,4)}")
        if qg: M.append(f"v_mfma_f32_16x16x32_bf16 {v(vGacc,4)}, {v(vGF+4*(i%2),4)}, {v(aa,4)}, {v(vGacc,4)}")
        return M
    def step(i, dma, nwait, last=False, dm=None, latebar=None, fill=None):
        M = mfmas(i)
        if OPT["ex"] == 2 and dma: M = ["s_nop 3"] * len(M)
        NB = OPT["nb"]
        if OPT["cw"]:
            nrd = len(reads(i)); first = (4 if i % 2 == 0 else 0) + 2*((NB+3)//4)
            A(f"s_waitcnt lgkmcnt({nrd - first})")
        else: A("s_waitcnt lgkmcnt(0)")
        for k in range(NB): A(M[k])
        M = [None, None] + M[NB:]
        if not last and latebar is None:
            if nwait is not None: A(f"s_waitcnt vmcnt({nwait})" + (" lgkmcnt(0)" if OPT["cw"] else ""))
            A("s_barrier")
        elif OPT["cw"]:
            A("s_waitcnt lgkmcnt(0)")
            if last and not q: A("s_barrier")
        rd = [] if (last or latebar is not None) else reads(i+1)
        if OPT["ex"] == 1 and dma: rd = ["s_nop 0"] * len(rd)
        if OPT["ex"] == 3 and dma: dm = [["s_nop 0", "s_nop 7"]] * 4
        if dm is None: dm = (dma_even((i//2) % 2) if i % 2 == 0 else dma_odd((i//2) % 2)) if dma else []
        n = len(M) - 2
        nr = n - OPT["rtail"]
        rc = OPT["rc"]
        grp_ = [rd[k:k+rc] for k in range(0, len(rd), rc)]
        for mi in range(n):
            if mi < nr:
                for g_ in grp_[-(-mi*len(grp_)//nr) : -(-(mi+1)*len(grp_)//nr)] if rc > 1 else [rd[(mi*len(rd))//nr : ((mi+1)*len(rd))//nr]]:
                    for l in g_: A(l)
            g = None
            for k in range(len(dm)):
                if mi == (k*n)//len(dm) + OPT['dofs']: g = dm[k]
            if g: A(g[0])
            A(M[2+mi])
            if g:
                for l in g[1:]: A(l)
            elif fill and mi >= 3:
                for _ in range(2): A(fill.pop(0))
        if latebar is not None:
            A(f"s_waitcnt vmcnt({nwait})")
            A("s_barrier")
            for l in reads(i+1): A(l)
            for g in latebar:
                for l in g: A(l)
    pl0 = [(vSt+nt, o_) for nt in range(4) for o_ in (0, 1024)] + [(vSt+4, 0), (vSt+5, 0)]
    if OPT["qd"]:
        if q:
            for i in range(4): A(f"v_mov_b32 v{36+i}, -1")
            for k in range(OPT["qd"] - 1):
                a_, o_ = pl0.pop()
                A(f"global_store_dwordx4 v{a_}, v[36:39], {s(S_WS,2)} offset:{o_} sc1")
            A("s_waitcnt vmcnt(0)")
            for g in [dmaX(j, 0) for j in range(4)] + [dmaW(m, 0) for m in range(5)]:
                for l in g: A(l)
        for l in advK: A(l)
    for g in dma_even(1) + ([] if OPT["early"] else dma_odd(1)):
        for l in g: A(l)
    stamp(A, 1)
    nb = 5 if OPT["early"] else 9
    if qg:
        A(f"v_cmp_gt_u32 vcc, 80, v0")
        A(f"s_waitcnt vmcnt(18)")
        A(f"s_and_saveexec_b64 s[58:59], vcc")
        A(f"ds_write_b128 v40, {v(vGF,4)}")
        A(f"s_mov_b64 exec, -1")
    A(f"s_waitcnt vmcnt({5 if OPT['early'] else 9 if OPT['wfirst'] else 11}) lgkmcnt(0)")
    A("s_barrier")
    stamp(A, 2)
    if OPT["sst"]: endpgm(A)
    for l in reads(0): A(l)
    A(f"s_mov_b32 s{sCnt}, 4")
    if OPT["early"]:
        step(0, True, None, dm=dma_odd(1))
        step(1, True, 7, dm=dma_even(0), latebar=dma_odd(0))
        A(f"s_branch {L}_mid")
    A(".p2align 3")
    A.label(f"{L}_loop")
    for i in range(4):
        if i == 2: A.label(f"{L}_mid")
        if OPT["gst"] and gen.STAMPS and i % 2 == 0:
            for k in range(1, 9): A(f"s_mov_b32 s{70+2*k}, s{72+2*k}")
            A("s_memtime s[88:89]")
        step(i, True, 9 if i % 2 == 0 else 7)
    if qg: A(f"v_add_u32 v{vGA}, 256, v{vGA}")
    A(f"s_sub_u32 s{sCnt}, s{sCnt}, 1")
    A(f"s_cmp_lg_u32 s{sCnt}, 0")
    A(f"s_cbranch_scc1 {L}_loop")
    if OPT["gst"]:
        A("s_waitcnt vmcnt(0) lgkmcnt(0)"); endpgm(A)
    stamp(A, 3)
    def pf():
        A("s_mov_b64 exec, 1")
        A(f"global_atomic_add v4, v5, {s(S_WS,2)} sc1")
        A("s_mov_b64 exec, -1")
    pp = max(0, OPT["pq"]) if q else OPT["pk"]
    pl = pl0
    k_ = OPT["pft"] if q else 0
    wl = [wo_piece(*x) for x in ((0,0),(0,1),(0,2),(0,3),(1,3),(1,4),(2,0),(2,1),(2,2),(0,4),(1,0),(1,1),(1,2),(2,3),(2,4))]
    wd = [int(c) for c in ("%04d" % OPT["wd"])]
    assert wd[0] <= 6 and wd[0] + wd[1] <= 9
    cum = [k_, 2*k_] if q else [wd[0], wd[0]+wd[1]]
    def pst():
        if not q:
            n = wd.pop(0); G = wl[:n]; del wl[:n]
            return G
        G = [["s_nop 0", f"global_store_dwordx4 v{a}, v[8:11], {s(S_WS,2)} offset:{o_} sc1"] for a, o_ in pl[:k_]]
        del pl[:k_]
        return G
    if k_ and q:
        for i in range(4): A(f"v_mov_b32 v{8+i}, -1")
    if pp == 0: pf()
    step(0, False, 9 + (pp < 1), dm=pst())
    if pp == 1: pf()
    step(1, False, 2 + (pp < 2) + cum[0], dm=pst())
    if pp == 2: pf()
    A(f"global_load_dword v7, v6, {s(S_DBG,2)} sc1")
    step(2, False, 1 + (pp < 3) + cum[1], dm=pst())
    if pp == 3: pf()
    acc = lambda mt, t: vAcc + 20*mt + 4*t
    V0 = None
    if not q:
        op = lambda nm, p: 36 + 8*["K0","K1","V0","V1","TA","TB"].index(nm) + 4*p
        tmp = [112, 116]
        def ph(nm, t_, p): return phi4(acc(2*p,t_), op(nm,p), tmp[0]) + phi4(acc(2*p+1,t_), op(nm,p)+2, tmp[1])
        def vs(p):
            V = []
            for half in range(2):
                mt = 2*p + half
                V += cvt4(acc(mt,4), op("TB",p)+2*half)
                V += [f"v_cndmask_b32 v{op('TB',p)+2*half+kk}, v{op('TB',p)+2*half+kk}, v232, vcc" for kk in range(2)]
            return V
        def vv(p): return [l for half in range(2) for l in cvt4(acc(2*p+half,2), op("V0",p)+2*half) + cvt4(acc(2*p+half,3), op("V1",p)+2*half)]
        if OPT["tmg"]:
            mg = [f"v_mov_b32_dpp v{acc(h,4)+k}, v{acc(h+2,4)+k} row_shr:8 row_mask:0xf bank_mask:0xc" for h in range(2) for k in range(4)]
            um = [f"v_mov_b32_dpp v{op('TA',1)+k}, v{op('TA',0)+k} row_ror:8 row_mask:0xf bank_mask:0xf" for k in range(4)]
            V0 = vs(0) + vs(1) + mg + ph("TA",4,0) + vv(0) + um + vv(1)
        else:
            V0 = vs(0) + vs(1) + ph("TA",4,0) + vv(0) + ph("TA",4,1) + vv(1)
        V0 = unpack(V0)
        A(f"s_mov_b32 vcc_lo, 0x00ff00ff"); A(f"s_mov_b32 vcc_hi, 0x00ff00ff")
    step(3, False, 0, last=True, dm=pst(), fill=V0 if OPT["ov"] else None)
    stamp(A, 4)
    acc = lambda mt, t: vAcc + 20*mt + 4*t
    if not q:
        op = lambda nm, p: 36 + 8*["K0","K1","V0","V1","TA","TB"].index(nm) + 4*p
        vPp = 84; tmp = [112, 116]
        prods = [("K0","V0"),("K1","V1"),("K0","TB"),("K1","TB"),("TA","V0"),("TA","V1"),("TA","TB")]
        pm = lambda n, p: f"v_mfma_f32_16x16x32_bf16 {v(vPp+4*n,4)}, {v(op(prods[n][0],p),4)}, {v(op(prods[n][1],p),4)}, {'0' if p==0 else v(vPp+4*n,4)}"
        def wv(V, ms):
            ms = list(ms); st = max(1, len(V)//(len(ms)+1))
            for n, l in enumerate(V):
                A(l)
                if ms and n % st == st-1:
                    g = ms.pop(0)
                    for x in ([g] if isinstance(g, str) else g): A(x)
            for g in ms:
                for x in ([g] if isinstance(g, str) else g): A(x)
        def ph(nm, t_, p): return phi4(acc(2*p,t_), op(nm,p), tmp[0]) + phi4(acc(2*p+1,t_), op(nm,p)+2, tmp[1])
        def vs(p):
            V = []
            for half in range(2):
                mt = 2*p + half
                V += cvt4(acc(mt,4), op("TB",p)+2*half)
                V += [f"v_cndmask_b32 v{op('TB',p)+2*half+kk}, v{op('TB',p)+2*half+kk}, v232, vcc" for kk in range(2)]
            return V
        def vv(p): return [l for half in range(2) for l in cvt4(acc(2*p+half,2), op("V0",p)+2*half) + cvt4(acc(2*p+half,3), op("V1",p)+2*half)]
        mrg = lambda d, s_, m: [f"v_cndmask_b32 v{vPp+4*d+k}, v{vPp+4*d+k}, v{vPp+4*s_+k}, s[{m}:{m+1}]" for k in range(4)]
        def wr(a, n, lo, hi, off=0):
            return [f"s_mov_b32 exec_lo, {lo}", f"s_mov_b32 exec_hi, {hi}", f"ds_write_b128 v{a}, {v(vPp+4*n,4)} offset:{off}", "s_mov_b64 exec, -1"]
        lb = [[l for g in wl[k:k+3] for l in g] for k in range(0, len(wl), 3)]
        def late():
            A("s_cmp_ge_u32 s2, 64"); A("s_cbranch_scc1 KV_nl"); A("s_cmp_lg_u32 s40, 0"); A("s_cbranch_scc1 KV_nl")
            A("s_mov_b64 exec, 1"); A(f"global_atomic_add v233, v5, {s(S_WS,2)} sc1"); A("s_mov_b64 exec, -1")
            A.label("KV_nl")
        if OPT["nq"] and OPT["pl"] == 0: late()
        wv(V0, lb)
        if OPT["nq"] and OPT["pl"] == 1: late()
        wv(ph("K0",0,0), [pm(4,0), pm(5,0), pm(6,0), pm(4,1), pm(5,1), pm(6,1)])
        wv(ph("K0",0,1), [pm(0,0), pm(2,0), mrg(4,5,22), wr(228,6,"0xf0010f01",0,64)])
        wv(ph("K1",1,0), [pm(0,1), pm(2,1), wr(224,4,-1,0,64)])
        wv(ph("K1",1,1), [pm(1,0), pm(3,0), f"ds_write_b128 v225, {v(vPp,4)}", wr(227,2,"0x0f010f01","0x0f010f01")])
        A(pm(1,1)); A(pm(3,1))
        stamp(A, 5)
        poll(A, 6, S_DBG, 64, 1, vt=7, first_loaded=True)
        A(f"ds_write_b128 v225, {v(vPp+4,4)} offset:{KVH}")
        for l in wr(227,3,"0xf001f001","0xf001f001",KVH): A(l)
        A(f"v_cmp_gt_u32 vcc, {1680-1536}, v0")
        A("s_waitcnt lgkmcnt(0)")
        A("s_barrier")
        if OPT["kforce"]:
            A(f"s_lshr_b32 s{sT}, s{sCG}, 1"); A(f"s_lshl_b32 s{sT}, s{sT}, {CSH}"); A(f"s_add_u32 s{sT}, s{sT}, {WS_CQ}")
            A(f"v_lshl_add_u32 v5, v1, {CSH+2}, s{sT}")
            A("s_cmp_lg_u32 s40, 0"); A("s_cbranch_scc1 KV_nf"); msignal(A, 5, 16); A.label("KV_nf")
            A("s_sleep 40")
        for k in range(7):
            A(f"ds_read2st64_b32 {v(12+2*k,2)}, v229 offset0:{4*k} offset1:{4*k+HS//256}")
        for k in range(7):
            A(f"s_waitcnt lgkmcnt({6-k})")
            A(f"v_add_f32 v{12+2*k}, v{12+2*k}, v{13+2*k}")
            if k == 6:
                A("s_and_saveexec_b64 s[58:59], vcc")
                A(f"s_cbranch_execz {L}_skip")
            A(f"global_atomic_add_f32 v{230 if k<4 else 231}, v{12+2*k}, {s(S_WS,2)} offset:{1024*(k%4)}")
        A.label(f"{L}_skip")
        A("s_mov_b64 exec, -1")
        A(f"s_lshr_b32 s{sT}, s{sCG}, 1"); A(f"s_lshl_b32 s{sT}, s{sT}, {CSH}"); A(f"s_add_u32 s{sT}, s{sT}, {WS_CQ}")
        if OPT["sig4"]:
            A(f"s_lshl_b32 s{sT2}, s40, {CSH+4}"); A(f"s_add_u32 s{sT}, s{sT}, s{sT2}")
        A(f"v_lshl_add_u32 v5, v1, {CSH+2}, s{sT}")
        rd3 = [l for j in range(3) for l in wo_read(j, [234, 235, 236, 237])]
        if OPT["ks"]:
            if OPT["kw"] < 9:
                for l in rd3: A(l)
                A(f"s_waitcnt vmcnt({OPT['kw']}) lgkmcnt(0)")
            A("s_barrier")
            A("s_cmp_lg_u32 s40, 3"); A("s_cbranch_scc1 KV_nosig")
            if not OPT["kforce"]: msignal(A, 5, 16)
            A("s_mov_b32 s10, 1")
            A("v_add_u32 v63, 128, v5")
            A.label("KV_nosig")
            stamp(A, 6)
            for g in wo_dma(3):
                for l in g: A(l)
            if OPT["kw"] == 9:
                for l in rd3: A(l)
                A("s_waitcnt lgkmcnt(0)"); A("s_barrier")
        else:
            for l in rd3: A(l)
            A("s_waitcnt lgkmcnt(0)"); A("s_barrier")
            for g in wo_dma(3):
                for l in g: A(l)
            A("s_waitcnt vmcnt(5)")
            A("s_barrier")
            A("s_cmp_lg_u32 s40, 0"); A("s_cbranch_scc1 KV_nosig")
            msignal(A, 5, 16)
            A.label("KV_nosig")
            stamp(A, 6)
        A("s_branch F_entry")
    else:
        vQ = 36
        vAN = 84; vAD = 100; vAM = 112; vEps = 124; vK = 132; vD = 180; vN = 196
        for i in range(4): A(f"v_mov_b32 v{20+i}, -1")
        srd(A, SX, S_WS, WSZ)
        A("s_mov_b32 s44, 0xffff0000"); A("s_mov_b32 s45, 0xffff0000"); A("s_mov_b32 s46, 0"); A("s_mov_b32 s47, -1")
        if qg:
            A(f"v_cndmask_b32 v4, v{vGacc}, v230, s[46:47]")
            A(f"v_mul_f32 v4, {hex(f2u(-LOG2E))}, v4")
            A("v_exp_f32 v4, v4"); A("v_add_f32 v4, 1.0, v4"); A("v_rcp_f32 v4, v4")
            A(f"global_store_dword v226, v4, {s(S_WS,2)} sc1")
        A(f"s_mul_i32 s43, s{sCG}, {2*KVG}"); A(f"s_add_u32 s43, s43, {WS_KV}")
        pf_ = lambda a, o_: A(f"global_store_dwordx4 v{a}, v[20:23], {s(S_WS,2)} offset:{o_} sc1" + (" nt" if OPT["wnt"] & 2 else "")) if OPT["spec"] else None
        if OPT['pfe']:
            def pfs(n):
                for _ in range(n):
                    if pl: pf_(*pl.pop(0))
            for nt in range(4):
                b = vQ + 12*nt
                for t_, o_, tm in ((0, 0, 24), (4, 2, 28), (1, 4, 24), (2, 6, 28), (3, 10, 24)):
                    if OPT["pfe"] < 3 or t_ in (0, 1): pfs(OPT["pfe"] % 3 or 1) if OPT["pfe"] < 3 else pfs(1)
                    for l in phi4(acc(nt,t_), b+o_, tm): A(l)
                A(f"v_pk_mov_b32 {v(b+8,2)}, {v(b+2,2)}, {v(b+2,2)} op_sel:[0,1]")
        else:
            for nt in range(4):
                b = vQ + 12*nt
                pf_(vSt+nt, 0)
                for l in phi4(acc(nt,0), b, 24): A(l)
                for l in phi4(acc(nt,4), b+2, 28): A(l)
                pf_(vSt+nt, 1024)
                for l in phi4(acc(nt,1), b+4, 24): A(l)
                if nt % 2 == 0: pf_(vSt+4+nt//2, 0)
                for l in phi4(acc(nt,2), b+6, 28): A(l)
                A(f"v_pk_mov_b32 {v(b+8,2)}, {v(b+2,2)}, {v(b+2,2)} op_sel:[0,1]")
                for l in phi4(acc(nt,3), b+10, 24): A(l)
        for r in (vAD+8, vAD+9, vAM+8, vAM+9): A(f"v_mov_b32 v{r}, 0")
        for i in range(4): A(f"v_mov_b32 v{vEps+i}, s62")
        A("v_mov_b32 v19, v228")
        for i in range(6): A(f"v_mov_b32 v{8+i}, v{220+i}")
        A("v_add_u32 v14, 128, v227"); A("v_mov_b32 v15, v229"); A("s_mov_b32 s41, 0")
        poll(A, 6, S_DBG, 64, 1, vt=7, first_loaded=True)
        stamp(A, 5)
        A("s_cmp_lg_u32 s40, 0"); A("s_cbranch_scc1 Q_nopoll")
        A("s_mov_b64 exec, 1")
        A("s_mov_b32 m0, 0")
        if OPT["fp"]: fpoll(A, 227, S_WS, 32, 128, OPT["fp"], OPT["gap"])
        else: poll(A, 227, S_WS, 32, 1, vt=7, sleep=OPT["qs"])
        A("s_mov_b64 exec, -1")
        stamp(A, 6)
        for gq in range(2):
            for j in range(7):
                if j % 4 == 0 and (gq or j):
                    A(f"s_mov_b32 m0, {KVG*gq + 1024*j}")
                    A(f"s_add_u32 s58, s43, {KVG*gq + 1024*j}")
                A(f"buffer_load_dwordx4 v229, {s(SX,4)}, s{58 if (gq or j>=4) else 43} offen" + (f" offset:{1024*(j%4)}" if j%4 else "") + " sc1 lds")
        A("s_waitcnt vmcnt(0)")
        A.label("Q_nopoll")
        A("s_barrier")
        stamp(A, 7)
        A.label("Q_o")
        A(f"ds_read_b128 {v(vK+40,4)}, v13 offset:1600")
        A(f"ds_read_b128 {v(vK+44,4)}, v12 offset:{1600+64}")
        for h in range(4):
            A(f"ds_read_b128 {v(vK+8*h,4)}, v9 offset:{KVH*h}")
            A(f"ds_read_b128 {v(vK+8*h+4,4)}, v8 offset:{KVH*h+64}")
        A(f"ds_read_b128 {v(vK+32,4)}, v11 offset:1280")
        A(f"ds_read_b128 {v(vK+36,4)}, v10 offset:{1280+64}")
        mo = lambda h: 0 if h % 2 == 0 else 2
        to = lambda h: 2 - mo(h)
        bq = lambda nt, h: vQ + 12*nt + [0, 2, 6, 8][h]
        def tri(raw, dst, mbase, mt):
            V = cvt4(raw, raw) + cvt4(raw+4, raw+4)
            for k in range(2): V.append(f"v_and_b32 v{dst+k}, v{raw+k}, v{mbase}")
            for k in range(2): V.append(f"v_and_b32 v{dst+2+k}, v{raw+4+k}, v{mt}")
            for h, o in ((1, 4), (2, 6), (3, 10)):
                for k in range(2): V.append(f"v_and_b32 v{dst+o+k}, v{raw+k}, v{mbase+h}")
            return V
        def trim(dreg, frag, nt, c0):
            return [f"v_mfma_f32_16x16x32_bf16 {v(dreg,4)}, {v(frag+4*k,4)}, {v(vQ+12*nt+4*k,4)}, {c0 if k==0 else v(dreg,4)}" for k in range(3)]
        def weave(ms, V, lead=0):
            ms = list(ms)
            for l in ms[:lead]: A(l)
            ms = ms[lead:]
            n = len(ms)
            pos = [(k*len(V))//max(1,n) for k in range(n)]
            for i_, l in enumerate(V):
                while pos and pos[0] == i_:
                    A(ms.pop(0)); pos.pop(0)
                A(l)
            for l in ms: A(l)
        if OPT["force"]: msignal(A, 19, 5)
        A("s_waitcnt lgkmcnt(10)")
        for l in tri(vK+40, vAD, vMk+4, vMk+12): A(l)
        dm = [trim(vD+4*nt, vAD, nt, v(vEps,4)) for nt in range(4)]
        dl = [dm[nt][k] for k in range(3) for nt in (2, 3)] if OPT["oo"] else []
        dm = [dm[nt][k] for k in range(3) for nt in ((0, 1) if OPT["oo"] else range(4))]
        VA = []
        for h in range(4):
            VA.append(f"s_waitcnt lgkmcnt({8-2*h})")
            VA += cvt4(vK+8*h, vAN+4*h+mo(h)) + cvt4(vK+8*h+4, vK+8*h+4)
            VA += [f"v_and_b32 v{vAN+4*h+to(h)+k}, v{vK+8*h+4+k}, v{vMk+h}" for k in range(2)]
        weave(dm, VA)
        def Nreg(nt, h): return vN + 20*(nt % 2) + 4*h
        def Mreg(nt): return vN + 20*(nt % 2) + 16
        def mn(nt): return [f"v_mfma_f32_16x16x32_bf16 {v(Nreg(nt,h),4)}, {v(vAN+4*h,4)}, {v(bq(nt,h),4)}, 0" for h in range(4)]
        def mm(nt): return trim(Mreg(nt), vAM, nt, "0")
        def rcp(nt): return [f"v_rcp_f32 v{vD+4*nt+i}, v{vD+4*nt+i}" for i in range(4)]
        def post(nt):
            V = []
            d = vD + 4*nt
            o = vK + 8*nt
            for h in range(4):
                n = Nreg(nt,h)
                V += [f"v_mul_f32 v{n+k}, v{n+k}, v{d+h}" for k in range(4)]
                V += cvt4(n, o+2*h)
                if h & 1: V.append(f"global_store_dwordx4 v{vSt+nt}, {v(o+2*h-2,4)}, {s(S_WS,2)} offset:{512*(h-1)} sc1")
            V.append(f"v_cndmask_b32 v16, v{d}, v{d+1}, s[44:45]")
            V.append(f"v_cndmask_b32 v17, v{d+2}, v{d+3}, s[44:45]")
            V.append(f"v_cndmask_b32 v16, v16, v17, s[46:47]")
            m_ = Mreg(nt)
            V += [f"v_mul_f32 v{m_+k}, v{m_+k}, v16" for k in range(4)]
            t4 = 20 + 4*(nt >> 1)
            V += cvt4(m_, t4 + 2*(nt & 1))
            if nt & 1: V.append(f"global_store_dwordx4 v{vSt+4+nt//2}, {v(t4,4)}, {s(S_WS,2)} sc1")
            return V
        A("s_waitcnt lgkmcnt(0)")
        weave(mn(0) + mn(1), tri(vK+32, vAM, vMk+8, vMk+13) + rcp(0))
        if OPT["two"] and OPT["sp"] == 0: msignal(A, 19, 5)
        weave(mm(0) + mm(1), post(0)[:20])
        if OPT["two"] and OPT["sp"] == 1: msignal(A, 19, 5)
        for l in post(0)[20:] + rcp(1): A(l)
        if OPT["two"] and OPT["sp"] == 2: msignal(A, 19, 5)
        if OPT['oo']:
            p1 = post(1)
            for l in p1[:-9]: A(l)
            weave(dl[:4], p1[-9:])
            msignal(A, 19, 5)
            for l in dl[4:] + mn(2) + mm(2) + mn(3)[:2]: A(l)
            for l in rcp(2): A(l)
            weave(mn(3)[2:] + mm(3), post(2)[:28])
        else:
            weave(mn(2) + mm(2), post(1)[:28])
            for l in post(1)[28:]: A(l)
            if OPT["two"] and OPT["sp"] == 3: msignal(A, 19, 5)
            for l in rcp(2): A(l)
            weave(mn(3) + mm(3), post(2)[:28])
        for l in post(2)[28:] + rcp(3): A(l)
        if OPT["two"] and OPT["sp"] == 4:
            A("s_waitcnt vmcnt(2)"); msignal(A, 19, 5)
        for l in post(3): A(l)
        if OPT['ks']:
            stamp(A, 8)
            A("s_cmp_lg_u32 s41, 0"); A("s_cbranch_scc1 Q_fin")
            A("s_cmp_lg_u32 s40, 0"); A("s_cbranch_scc1 Q_nopoll2")
            A("s_mov_b64 exec, 1")
            poll(A, 14, S_WS, 32, 1, vt=7, sleep=4)
            A("s_mov_b64 exec, -1")
            for gq in range(2):
                for j in range(7):
                    if j % 4 == 0:
                        A(f"s_mov_b32 m0, {16384 + KVG*gq + 1024*j}")
                        A(f"s_add_u32 s58, s43, {KVG*gq + 1024*j}")
                    A(f"buffer_load_dwordx4 v15, {s(SX,4)}, s58 offen" + (f" offset:{1024*(j%4)}" if j%4 else "") + " sc1 lds")
            A.label("Q_nopoll2")
            A("v_add_u32 v3, 768, v0"); A(f"v_min_u32 v3, {(KVG+6720)//16-1}, v3"); A("v_lshlrev_b32 v3, 4, v3"); A("v_lshlrev_b32 v4, 4, v0")
            A("s_lshl_b32 s42, s40, 2"); A("v_mov_b32 v5, s42"); A("v_mov_b32 v6, 0")
            A("s_waitcnt vmcnt(0)")
            A("s_barrier")
            for k in range(4):
                for c in range(2):
                    A(f"ds_read_b128 {v(vN+8*k+4*c,4)}, v{4 if k<3 else 3} offset:{(4096*k if k<3 else 0) + 16384*c}")
            for k in range(4):
                A(f"s_waitcnt lgkmcnt({6-2*k})")
                for i in range(4): A(f"v_xor_b32 v{vN+8*k+i}, v{vN+8*k+i}, v{vN+8*k+4+i}")
                A(f"v_or3_b32 v6, v6, v{vN+8*k}, v{vN+8*k+1}"); A(f"v_or3_b32 v6, v6, v{vN+8*k+2}, v{vN+8*k+3}")
            A("v_cmp_ne_u32 vcc, 0, v6")
            A("s_or_b32 s42, vcc_lo, vcc_hi")
            A("v_mov_b32 v6, s42"); A("v_mov_b32 v7, 0")
            A("ds_write_b32 v5, v6 offset:32000")
            A("s_waitcnt lgkmcnt(0)"); A("s_barrier")
            A(f"ds_read_b128 {v(vN,4)}, v7 offset:32000")
            A("s_waitcnt lgkmcnt(0)")
            A(f"v_or3_b32 v6, v{vN}, v{vN+1}, v{vN+2}"); A(f"v_or_b32 v6, v6, v{vN+3}")
            A("v_readfirstlane_b32 s41, v6")
            A("s_cmp_eq_u32 s41, 0"); A("s_cbranch_scc1 Q_fin")
            for i in range(6): A(f"v_add_u32 v{8+i}, 16384, v{8+i}")
            A("v_add_u32 v3, 12, v19")
            msignal(A, 3, 5)
            A("s_branch Q_o")
            A.label("Q_fin")
            A("v_add_u32 v19, 8, v19")
            A("s_waitcnt vmcnt(0)")
            msignal(A, 19, 5)
        else:
            stamp(A, 8)
            if OPT["spec"]:
                if OPT["two"] and OPT["sp"] == 5:
                    A("s_waitcnt vmcnt(5)"); msignal(A, 19, 5)
                if not OPT["two"]: msignal(A, 19, 5)
                A("v_add_u32 v19, 4, v19")
                A(f"s_waitcnt vmcnt({0 if OPT['two'] else 1})")
            else: A("s_waitcnt vmcnt(0)")
            msignal(A, 19, 5)
        endpgm(A)

A_CS = 2368
A_Z = 16240
A_U0 = A_Z + 16
A_CH = A_U0 + 4096
SROW = 272

def A_head(A):
    sD, sT, vP = 41, 42, 162
    A(f"s_mul_i32 s{sT}, s{sD}, 384")
    A(f"v_lshl_add_u32 v2, v1, 2, s{sT}")
    A(f"v_lshl_add_u32 v3, v1, 1, s{sT}")
    A(f"s_lshl_b32 s{sT}, s{sD}, 1"); A(f"s_and_b32 s{sT}, s{sT}, 0xfffffffc")
    nt = " nt" if OPT["nt"] & 4 else ""
    if OPT["nq"]:
        A("s_and_b32 s43, s2, 127"); A("s_cmp_lt_u32 s2, 384")
        A("s_cselect_b32 s44, 64, 0"); A("s_add_u32 s43, s43, s44"); A("s_add_u32 s43, s43, 256")
    elif OPT["rm"]: A("s_and_b32 s43, s2, 127"); A("s_add_u32 s43, s43, 256")
    else: A("s_cmp_ge_u32 s2, 448"); A(f"s_cselect_b32 s43, {64 if OPT['a4w'] else 192}, 0"); A("s_sub_u32 s43, s2, s43")
    A("s_lshl_b32 s43, s43, 8"); A(f"s_add_u32 s43, s43, {WS_CP - 256*256}")
    if OPT["uh"] < 448: A("s_cmp_eq_u32 s40, 3"); A(f"s_cselect_b32 s43, {WS_UH}, s43")
    A("v_mov_b32 v175, s43")
    A("s_waitcnt lgkmcnt(0)")
    if OPT["a4d"]:
        A("s_cmp_lg_u32 s60, 0"); A("s_cbranch_scc1 A_h1")
        for k in range(OPT["a4d"]):
            A(f"global_load_dword v174, v175, {s(S_WS,2)} offset:{128*k} sc1"); A("s_waitcnt vmcnt(0)")
        A.label("A_h1")
    if not OPT["bal"]: A("s_cmp_eq_u32 s60, 2"); A("s_cbranch_scc1 A_h2")
    for i, sp in enumerate((S_ARE, S_AIM, S_BRE, S_BIM, S_CRE, S_CIM)):
        A(f"global_load_dword v{vP+i}, v2, {s(sp,2)}{nt}")
    if not OPT["bal"]: A("s_cmp_eq_u32 s60, 1"); A("s_cbranch_scc1 A_h3")
    A.label("A_h2")
    for i, sp in enumerate((S_ARE, S_AIM, S_BRE, S_BIM, S_CRE, S_CIM)):
        A(f"global_load_ushort v{vP+6+i}, v3, {s(sp,2)} offset:256{nt}")
    A(f"global_load_dword v174, v175, {s(S_WS,2)} sc1")
    A.label("A_h3")
    A(f"s_load_dword s64, {s(S_LDT,2)}, s{sT}")
    A(f"s_load_dword s65, {s(S_DSK,2)}, s{sT}")
    A("s_setprio 0")
    A("s_branch A_body")

def A_chan(A):
    sW, sD, sT, sBase, sCnt, sT2 = 40, 41, 42, 43, 44, 45
    vP = 88
    vDer = 14
    vG = 26
    vAA, vBA, vB0, vOA = 36, 37, 38, 39
    vFX, vTW1, vTW2, vTW3, vTW0, vDsk = 40, 41, 42, 43, 44, 45
    vZ, vW, vW2, vZZ = 46, 48, 50, 52
    vS = 54
    vP = 162
    vAcc = 80
    vFr = 96
    A.label("A_body")
    A(f"s_mul_i32 s{sBase}, s{sW}, {A_CH}")
    sMode, sMain, sAux, sTb = 60, 61, 62, 63
    if OPT["dry"]:
        A("s_mov_b32 s59, 0")
        A(f"s_cmp_eq_u32 s{sMode}, 2"); A("s_cbranch_scc0 A_setup")
        A("s_mov_b32 s59, 1"); A(f"s_mov_b32 s{sCnt}, 1"); A(f"s_mov_b32 m0, s{sBase}"); A(f"v_mov_b32 v{vFX}, s{sBase}")
        A(f"v_mov_b32 v{vOA}, 0"); A("v_mov_b32 v160, 128")
        A("s_branch A_pass")
        A.label("A_setup")
        A("s_mov_b32 s59, 0")
        A("s_waitcnt lgkmcnt(0)")
    A(f"s_cmp_eq_u32 s{sMode}, 2"); A(f"s_cselect_b32 s{sT}, {2*A_CH}, 0"); A(f"s_sub_u32 s{sMain}, s{sBase}, s{sT}")
    A(f"s_add_u32 s{sAux}, s{sMain}, {2*A_CH}")
    A(f"s_mul_i32 s{sTb}, s{sMode}, 3328"); A(f"s_add_u32 s{sTb}, s{sTb}, s{sAux}"); A(f"s_add_u32 s{sT}, s{sBase}, 9600")
    A(f"s_cmp_eq_u32 s{sMode}, 0"); A(f"s_cselect_b32 s{sTb}, s{sT}, s{sTb}")
    A(f"v_sub_u32 v2, 63, v1")
    A(f"v_lshlrev_b32 v2, 1, v2")
    A(f"v_lshl_add_u32 v{vG}, v2, 2, s{sTb}")
    for beta in (1, 2, 3):
        for e in range(3):
            r = vG + 1 + 3*(beta-1) + e
            A(f"v_add_u32 v3, {e}, v2")
            A(f"v_bfe_u32 v4, v3, {beta}, 1")
            A(f"v_add3_u32 v3, v3, v4, {(1<<(beta-1))-1}")
            A(f"v_lshrrev_b32 v3, {beta}, v3")
            A(f"v_lshl_add_u32 v{r}, v3, 2, s{sTb}")
    A(f"v_and_b32 v2, 15, v1")
    A(f"v_lshrrev_b32 v3, 4, v1")
    A(f"v_sub_u32 v4, 0, v2")
    A(f"v_and_b32 v4, 3, v4")
    A(f"v_mul_u32_u24 v5, {A_CS}, v4")
    A(f"v_add_u32 v6, v2, v4")
    A(f"v_sub_u32 v6, 112, v6")
    A(f"v_lshl_add_u32 v6, v3, 3, v6")
    A(f"v_lshl_add_u32 v5, v6, 1, v5")
    A(f"v_add3_u32 v{vAA}, v5, s{sMain}, 16")
    A("v_lshlrev_b32 v5, 2, v3"); A("v_sub_u32 v5, v2, v5")
    A(f"s_add_u32 s{sT}, s{sTb}, {4*(544-6)}")
    A(f"v_lshl_add_u32 v176, v5, 3, s{sT}")
    A(f"v_lshlrev_b32 v5, 5, v2")
    A(f"v_lshl_add_u32 v6, v3, 4, v5")
    A(f"s_add_u32 s{sT}, s{sMain}, {A_U0+32}")
    A(f"v_add_u32 v{vBA}, s{sT}, v6")
    A(f"v_and_b32 v6, 1, v3"); A(f"v_lshl_add_u32 v5, v6, {10 if OPT['conv'] else 9}, v5")
    A(f"v_lshrrev_b32 v6, 1, v3"); A(f"v_lshl_add_u32 v6, v6, 4, v5")
    A(f"s_mul_i32 s{sT}, s{sD}, {OPT['rs']}")
    A(f"v_add_u32 v{vOA}, s{sT}, v6")
    A(f"v_and_b32 v2, 31, v1")
    A(f"v_lshrrev_b32 v3, 5, v1")
    A(f"v_mul_u32_u24 v4, {SROW}, v2")
    A(f"v_lshl_add_u32 v4, v3, 4, v4")
    A(f"v_add_u32 v{vFX}, s{sBase}, v4")
    A(f"v_lshlrev_b32 v4, 5, v2")
    A(f"v_lshl_add_u32 v4, v3, 4, v4")
    A(f"v_add_u32 v{vTW0}, s{sTb}, v4")
    A(f"v_cmp_eq_u32 vcc, 0, v3")
    A(f"v_lshlrev_b32 v4, 4, v2")
    A(f"v_lshlrev_b32 v5, 3, v2")
    A(f"v_add_u32 v6, 1024, v4")
    A(f"v_add_u32 v7, 1536, v5")
    A(f"v_cndmask_b32 v6, v7, v6, vcc")
    A(f"v_add_u32 v{vTW1}, s{sTb}, v6")
    A(f"v_add_u32 v6, 1032, v4")
    A(f"v_add_u32 v7, 1792, v5")
    A(f"v_cndmask_b32 v6, v7, v6, vcc")
    A(f"v_add_u32 v{vTW2}, s{sTb}, v6")
    A(f"v_lshlrev_b32 v4, 2, v2")
    A(f"v_lshl_add_u32 v4, v3, 9, v4")
    A(f"s_add_u32 s{sT}, s{sTb}, {2048+124}")
    A(f"v_add_u32 v{vTW3}, s{sT}, v4")
    A(f"v_mov_b32 v2, 0")
    A(f"v_mov_b32 v3, 0")
    A(f"s_mov_b32 m0, s{sMain}")
    A("s_mov_b64 exec, 15")
    A(f"ds_write_addtid_b32 v2 offset:{A_Z}")
    A("s_mov_b64 exec, -1")
    A(f"s_mov_b32 m0, s{sBase}")
    A(f"v_mov_b32 v5, 0x3f80")
    A(f"ds_write_addtid_b32 v5 offset:{21*SROW}")
    for i in range(0, 16 if OPT["peel"] else 80, 2):
        A(f"v_pk_mov_b32 {v(vAcc+i,2)}, v[2:3], v[2:3]")
    stamp(A, 1)
    A("s_waitcnt lgkmcnt(0)")
    A(f"s_bitcmp1_b32 s{sD}, 0"); A("s_cselect_b32 s46, 0, 16")
    A("s_lshl_b32 s64, s64, s46"); A("s_lshl_b32 s65, s65, s46")
    A("s_and_b32 s64, s64, 0xffff0000"); A("s_and_b32 s65, s65, 0xffff0000")
    A(f"v_mov_b32 v2, {hex(f2u(LOG2E))}")
    A(f"v_mul_f32 v2, s64, v2")
    A(f"v_exp_f32 v2, v2")
    A(f"v_cmp_eq_u32 vcc, 0, v1")
    A(f"v_mov_b32 v3, s65")
    A(f"v_cvt_pk_bf16_f32 v2, v2, v2")
    A(f"v_cndmask_b32 v{vDsk}, 0, v3, vcc")
    A(f"v_and_b32 v2, 0xffff0000, v2")
    A("s_waitcnt vmcnt(0)")
    stamp(A, 2)
    for p in range(3):
        for i in range(6):
            src = vP + i if p < 2 else vP + 6 + i
            if p == 1: A(f"v_and_b32 v{4+i}, 0xffff0000, v{src}")
            else:      A(f"v_lshlrev_b32 v{4+i}, 16, v{src}")
        d = vDer + 4*p
        A(f"v_pk_mul_f32 v[4:5], v[4:5], v[2:3] op_sel_hi:[1,0]")
        A(f"v_pk_mul_f32 v[6:7], v[6:7], v[2:3] op_sel_hi:[1,0]")
        A(f"v_mul_f32 v{d}, {hex(f2u(LOG2E))}, v4")
        A(f"v_mul_f32 v{d+1}, 0.15915494, v5")
        A(f"v_pk_mul_f32 v[10:11], v[8:9], v[6:7] op_sel_hi:[1,0]")
        A(f"v_pk_fma_f32 {v(d+2,2)}, v[8:9], v[6:7], v[10:11] op_sel:[1,1,0] op_sel_hi:[0,1,1] neg_lo:[1,0,0]")
    if OPT["bal"]:
        A(f"s_mov_b32 s{sCnt}, 3"); A("s_mov_b32 s56, 0")
        A(f"s_cmp_eq_u32 s{sMode}, 0"); A("s_cbranch_scc1 A_p0")
        A(f"s_mov_b32 s{sCnt}, 2")
        A(f"s_cmp_eq_u32 s{sMode}, 1"); A("s_cbranch_scc1 A_p1")
        for i in range(4): A(f"v_mov_b32 v{vDer+i}, v{vDer+4+i}")
        A.label("A_p1")
        for i in range(4): A(f"v_mov_b32 v{vDer+4+i}, v{vDer+8+i}")
    else:
        A(f"s_sub_u32 s{sCnt}, 3, s{sMode}")
        A(f"s_cmp_eq_u32 s{sMode}, 2"); A("s_cbranch_scc0 A_p0")
        for i in range(4): A(f"v_mov_b32 v{vDer+i}, v{vDer+8+i}")
    A.label("A_p0")
    A(f"s_cmp_eq_u32 s{sMode}, 0"); A("s_cselect_b32 s57, 1, 0")
    if OPT["tm"]: A("s_movk_i32 s46, 128"); A("s_mov_b32 s58, 1")
    else: A(f"s_cmp_eq_u32 s{sMode}, 0"); A("s_cselect_b32 s46, 0, 128"); A("s_cselect_b32 s58, 64, 1")
    A("v_mov_b32 v160, s46")
    A(f"s_mov_b32 s{sT}, {hex(f2u(8.0))}")
    A(f"s_mov_b32 s{sT2}, {hex(f2u(256.0))}")
    stamp(A, 3)
    if OPT["cut"] == 3: A("s_nop 3"); A("s_branch A_postpass")
    if OPT["cut"] == 4: A("s_endpgm")
    A(".p2align 3")
    A.label("A_pass")
    body = []
    def cexp(dst, t, scale):
        if scale is None:
            return [f"v_exp_f32 v{t}, v{vDer}", f"v_fract_f32 v{t+1}, v{vDer+1}",
                    f"v_cos_f32 v{dst}, v{t+1}", f"v_sin_f32 v{dst+1}, v{t+1}",
                    f"v_pk_mul_f32 {v(dst,2)}, {v(dst,2)}, {v(t,2)} op_sel_hi:[1,0]"]
        return [f"v_mul_f32 v{t}, s{scale}, v{vDer}", f"v_mul_f32 v{t+1}, s{scale}, v{vDer+1}",
                f"v_exp_f32 v{t}, v{t}", f"v_fract_f32 v{t+1}, v{t+1}",
                f"v_cos_f32 v{dst}, v{t+1}", f"v_sin_f32 v{dst+1}, v{t+1}",
                f"v_pk_mul_f32 {v(dst,2)}, {v(dst,2)}, {v(t,2)} op_sel_hi:[1,0]"]
    e1, e2, e3 = cexp(vW, 2, sT), cexp(vZ, 4, None), cexp(vZZ, 6, sT2)
    for i in range(6):
        for e in (e1, e2, e3):
            if i < len(e) - 1: body.append(e[i])
    body.append("s_waitcnt lgkmcnt(0)")
    body.append("s_nop 0")
    body += [e2[-1], e1[-1], e3[-1]]
    def P(k): return vS + 6*k
    C = vDer + 2
    X2, X4, X6 = 8, 10, 12
    s1 = [(vW2, vW, vW, 21+2, 0)] + [(P(0), vW2 if j == 4 else P(0), vW2, 21+j, 0) for j in range(4, 32, 2)]
    s2 = [(vW, None, None, 21+1, 0)] + [(P(1), vW if j == 3 else P(1), vW2, 21+j, 0) for j in range(3, 32, 2)]
    s3 = [(C, None, None, 0, 1), (P(2), C, vZ, 1, 1), (X2, P(2), vZ, 2, 1), (P(2), X2, vZ, 3, 1), (X4, P(2), vZ, 4, 1),
          (P(2), X4, vZ, 5, 1), (X6, P(2), vZ, 6, 1), (P(2), X6, vZ, 7, 1),
          (P(2), X4, vZZ, 10, 1), (P(2), P(2), vZZ, 13, 1), (P(2), P(2), vZZ, 15, 1)]
    s4 = [(P(3), C, vZZ, 8, 1), (P(3), P(3), vZZ, 12, 1), (P(3), P(3), vZZ, 14, 1), (P(3), P(3), vZZ, 16, 1),
          (P(3), P(3), vZZ, 17, 1), (P(3), P(3), vZZ, 18, 1), (P(3), P(3), vZZ, 19, 1), (P(3), P(3), vZZ, 20, 1),
          (P(3), X2, vZZ, 9, 1), (P(3), X6, vZZ, 11, 1)]
    streams = [s1, s2, s3, s4]
    mf = [f"v_mfma_f32_32x32x16_bf16 {v(vAcc,16)}, {v(vFr+8*q,4)}, {v(vFr+8*q+4,4)}, {v(vAcc,16)}" for q in range(8)]
    if OPT["kg"] & 1:
        body = [l for l in body if not l.startswith(("s_waitcnt", "s_nop"))]
        if OPT["peel"]:
            k = A.lines.index("A_pass:") - 1
            A.lines[k:k] = body[:-3] + ["s_branch A_pass2"]
        for n, l in enumerate(body):
            if n == len(body) - 3:
                A(".p2align 3"); A.label("A_pass2")
            A(l)
            if n % 2 == 1 and n//2 < 8:
                q = n//2
                A(f"s_waitcnt lgkmcnt({7-q})"); A(mf[q])
    else:
        for l in body: A(l)
    if OPT['bal']:
        def section(streams):
            pend = []; n = max(len(st) for st in streams)
            for i in range(n):
                ops = [(k, st[i]) for k, st in enumerate(streams) if i < len(st) and st[i] is not None]
                V = []
                for k, (d, sr, m, row, ng) in ops:
                    if sr is not None: V += [f"v_mul_f32 v{P(k)+2}, v{sr+1}, v{m+1}", f"v_mul_f32 v{P(k)+3}, v{sr}, v{m+1}"]
                for k, (d, sr, m, row, ng) in ops:
                    if sr is not None: V += [f"v_fma_f32 v{d}, v{sr}, v{m}, -v{P(k)+2}", f"v_fma_f32 v{d+1}, v{sr+1}, v{m}, v{P(k)+3}"]
                for k, (d, sr, m, row, ng) in ops:
                    V.append(f"v_cvt_pk_bf16_f32 v{P(k)+4+(i&1)}, v{d}, {'-' if ng else ''}v{d+1}")
                for l in V: A(l)
                pend += [f"ds_write_addtid_b32 v{P(k)+4+(i&1)} offset:{row*SROW}" for k, (d, sr, m, row, ng) in ops]
                if i & 1 or i == n-1:
                    for l in pend: A(l)
                    pend = []
        W4 = 78
        r1 = [(P(0), C, vZ, 1, 1), (X2, P(0), vZ, 2, 1), (P(0), X2, vZ, 3, 1), (X4, P(0), vZ, 4, 1), (P(0), X4, vZ, 5, 1), (X6, P(0), vZ, 6, 1), (P(0), X6, vZ, 7, 1)]
        r2 = [(P(1), C, vZZ, 8, 1)] + [(P(1), P(1), vZZ, row, 1) for row in (12, 14, 16, 17, 18, 19, 20)]
        r3 = [(C, None, None, 0, 1), None, (P(2), X2, vZZ, 9, 1), None, (P(2), X4, vZZ, 10, 1), (P(2), P(2), vZZ, 13, 1), (P(2), P(2), vZZ, 15, 1), (P(2), X6, vZZ, 11, 1)]
        c1 = [(vW, None, None, 21+1, 0), None] + [(P(0), vW if j == 5 else P(0), W4, 21+j, 0) for j in range(5, 32, 4)]
        c2 = [(vW2, vW, vW, 21+2, 0), None] + [(P(1), vW2 if j == 6 else P(1), W4, 21+j, 0) for j in range(6, 32, 4)]
        c3 = [None, (P(2), vW2, vW, 21+3, 0)] + [(P(2), P(2), W4, 21+j, 0) for j in range(7, 32, 4)]
        c4 = [None, (W4, vW2, vW2, 21+4, 0)] + [(P(3), W4 if j == 8 else P(3), W4, 21+j, 0) for j in range(8, 32, 4)]
        A("s_cmp_eq_u32 s56, 1"); A("s_cbranch_scc1 A_cols")
        section([r1, r2, r3])
        A("s_cmp_eq_u32 s56, 2"); A("s_cbranch_scc1 A_postpass")
        for q in range(8): A(f"ds_read_b128 {v(vFr+8*q,4)}, v{vFX} offset:{32*q}")
        A.label("A_cols")
        section([c1, c2, c3, c4])
        A("s_cmp_eq_u32 s56, 1"); A("s_cbranch_scc1 A_postpass")
        for q in range(8): A(f"ds_read_b128 {v(vFr+8*q+4,4)}, v{vFX} offset:{32*q+21*SROW}")
        for q in range(8): A(f"v_mov_b32 v{vDer+q}, v{vDer+4+q}")
        A(f"s_mov_b32 s56, s{sMode}")
    else:
        pendw = []
        for i in range(16):
            ops = [(k, st[i]) for k, st in enumerate(streams) if i < len(st)]
            V = []
            if OPT["scalar"]:
                for k, (d, sr, m, row, ng) in ops:
                    if sr is not None: V += [f"v_mul_f32 v{P(k)+2}, v{sr+1}, v{m+1}", f"v_mul_f32 v{P(k)+3}, v{sr}, v{m+1}"]
                for k, (d, sr, m, row, ng) in ops:
                    if sr is not None: V += [f"v_fma_f32 v{d}, v{sr}, v{m}, -v{P(k)+2}", f"v_fma_f32 v{d+1}, v{sr+1}, v{m}, v{P(k)+3}"]
            else:
                for k, (d, sr, m, row, ng) in ops:
                    if sr is not None: V.append(f"v_pk_mul_f32 {v(P(k)+2,2)}, {v(sr,2)}, {v(m,2)} op_sel_hi:[1,0]")
                for k, (d, sr, m, row, ng) in ops:
                    if sr is not None: V.append(f"v_pk_fma_f32 {v(d,2)}, {v(sr,2)}, {v(m,2)}, {v(P(k)+2,2)} op_sel:[1,1,0] op_sel_hi:[0,1,1] neg_lo:[1,0,0]")
            for k, (d, sr, m, row, ng) in ops:
                V.append(f"v_cvt_pk_bf16_f32 v{P(k)+4+(i&1)}, v{d}, {'-' if ng else ''}v{d+1}")
            if i < 8 and not OPT['kg'] & 5: A(mf[i])
            if OPT["l2p"] and i == OPT["l2p"] - 1:
                A(f"s_cmp_eq_u32 s{sCnt}, s57"); A("s_cbranch_scc1 A_pf"); A.label("A_pfr")
            neww = [] if OPT["kg"] & 2 else [f"ds_write_addtid_b32 v{P(k)+4+(i&1)} offset:{row*SROW}" for k, (d, sr, m, row, ng) in ops]
            if OPT["wb"] == 0:
                stp = max(1, len(V)//max(1,len(pendw)))
                for n, l in enumerate(V):
                    A(l)
                    if pendw and n % stp == stp - 1: A(pendw.pop(0))
                for l in pendw: A(l)
                pendw = neww
            elif OPT["wb"] == 1:
                for l in V + neww: A(l)
            elif OPT["wb"] == 2:
                h = len(V)//3
                for l in V[:h] + pendw + V[h:]: A(l)
                pendw = neww
            elif OPT["wb"] == 3:
                for l in V: A(l)
                pendw += neww
                if i & 1:
                    for l in pendw: A(l)
                    pendw = []
            if i >= 12:
                for q in (2*(i-12), 2*(i-12)+1): A(f"ds_read_b128 {v(vFr+8*q,4)}, v{vFX} offset:{32*q}")
        for l in pendw: A(l)
        for q in range(8):
            A(f"ds_read_b128 {v(vFr+8*q+4,4)}, v{vFX} offset:{32*q+21*SROW}")
            if q < 4: A(f"v_pk_mov_b32 {v(vDer+2*q,2)}, {v(vDer+4+2*q,2)}, {v(vDer+4+2*q,2)} op_sel:[0,1]")
    A(f"s_sub_u32 s{sCnt}, s{sCnt}, 1")
    A(f"s_cmp_lg_u32 s{sCnt}, 0")
    A("s_cbranch_scc1 A_pass")
    if OPT["dry"]:
        A("s_cmp_eq_u32 s59, 1"); A("s_cbranch_scc1 A_setup")
    A.label("A_postpass")
    stamp(A, 4)
    if OPT["cut"] == 1: endpgm(A)
    lateu = OPT["tm"] or OPT["t3"]
    if not lateu:
        A("s_cmp_ge_u32 s2, 448"); A("s_cbranch_scc0 A_nofl")
        A(f"global_load_dword v161, v160, {s(S_DBG,2)} sc1")
    A.label("A_nofl")
    A("v_and_b32 v2, 15, v1"); A("v_lshrrev_b32 v3, 4, v1"); A("v_lshlrev_b32 v3, 3, v3")
    A("s_mov_b32 s46, 0x8001"); A("s_movk_i32 s47, 0x3f80")
    for k, m_ in enumerate((0xfe0, 0x1ff0)):
        A(f"v_mov_b32 v4, {m_}"); A("v_lshlrev_b32 v4, v2, v4"); A("v_lshrrev_b32 v4, v3, v4")
        for j in range(4):
            r = 180 + 4*k + j
            A(f"v_bfe_u32 v{r}, v4, {2*j}, 2"); A(f"v_mul_u32_u24 v{r}, s46, v{r}"); A(f"v_and_b32 v{r}, 0x10001, v{r}"); A(f"v_mul_u32_u24 v{r}, s47, v{r}")
    def thr(tag):
        A("s_cmp_eq_u32 s40, 2"); A(f"s_cbranch_scc0 A_nothr{tag}")
        A("s_mov_b64 exec, 1")
        poll(A, 175, S_WS, "v174", 1, vt=6, sleep=4, cmp="ne", spin=48)
        A("s_mov_b64 exec, -1")
        A.label(f"A_nothr{tag}")
    if OPT['bal']:
        A(f"s_cmp_eq_u32 s{sMode}, 0"); A("s_cbranch_scc1 A_m8")
        if OPT["b0"] == 2: A("s_cmp_ge_u32 s2, 384"); A("s_cbranch_scc1 A_nothrb")
        thr("b")
        A(f"s_sub_u32 s46, s{sMain}, s{sBase}"); A(f"s_lshl_b32 s47, s{sMode}, 7"); A("s_add_u32 s46, s46, s47")
        A(f"v_add_u32 v4, s46, v{vFX}")
        A("s_waitcnt lgkmcnt(0)")
        A("s_barrier")
        for q in range(4, 8):
            A(f"ds_read_b128 {v(vFr+8*q,4)}, v4 offset:{32*q-256+2*A_CH}")
        for q in range(4, 8):
            A(f"ds_read_b128 {v(vFr+8*q+4,4)}, v4 offset:{32*q-256+21*SROW}")
        A("s_branch A_m4")
        A.label("A_m8")
        for q in range(8):
            if q == 4: A.label("A_m4")
            A(f"s_waitcnt lgkmcnt({7-q})")
            A(mf[q])
    else:
        if OPT["b0"]:
            if OPT["b0"] == 2: A("s_cmp_ge_u32 s2, 384"); A("s_cbranch_scc1 A_nb0")
            A(f"s_cmp_eq_u32 s{sMode}, 1"); A("s_cbranch_scc0 A_nb0"); A("s_barrier"); A.label("A_nb0")
        for q in range(8):
            A(f"s_waitcnt lgkmcnt({7-q})")
            A(mf[q])
    srd(A, 48, S_WS, WSZ)
    A("v_lshlrev_b32 v7, 4, v1")
    A(f"s_mul_i32 s59, s{sD}, {OPT['rs']}"); A(f"s_add_u32 s59, s59, {WS_UT}")
    A("s_nop 3")
    A(f"s_cmp_eq_u32 s{sMode}, 0"); A("s_cbranch_scc1 A_nox")
    A(f"s_cmp_eq_u32 s{sMode}, 1"); A("s_cselect_b32 s46, 3072, 0"); A("s_sub_u32 s47, 3072, s46"); A("s_add_u32 s46, s46, 11392"); A("s_add_u32 s47, s47, 11392")
    A(f"s_add_u32 s46, s46, s{sAux}"); A(f"s_add_u32 s47, s47, s{sAux}")
    A("v_lshl_add_u32 v4, v1, 4, s46"); A("v_lshl_add_u32 v5, v1, 4, s47")
    for k in range(3): A(f"ds_write_b128 v4, {v(vAcc+4*k,4)} offset:{1024*k}")
    if OPT["uh"] < 448:
        A("s_cmp_eq_u32 s40, 3"); A("s_cbranch_scc0 A_nuh")
        A(f"s_cmp_ge_u32 s2, {OPT['uh']}"); A("s_cbranch_scc0 A_nuh")
        A("s_mov_b64 exec, 1")
        poll(A, 175, S_WS, "v174", 1, vt=6, sleep=8, cmp="ne", spin=32)
        A("s_mov_b64 exec, -1")
        poll(A, 160, S_DBG, 1, 1, vt=161, sleep=8)
        for c in range(2):
            A(f"s_mov_b32 m0, {A_U0 + c*A_CH}")
            A(f"s_sub_u32 s47, s59, {OPT['rs'] * (1-c)}")
            for j in range(4):
                A(f"buffer_load_dwordx4 v7, s[48:51], s47 offen" + (f" offset:{1024*j}" if j else "") + " sc1 lds")
        A.label("A_nuh")
    if not OPT["b0"]: thr("a")
    if OPT["bal"]:
        if OPT["b0"] == 2:
            A("s_cmp_lt_u32 s2, 384"); A("s_cbranch_scc1 A_nothrd"); thr("d")
    elif OPT["b0"]:
        A(f"s_cmp_eq_u32 s{sMode}, 2"); A("s_cbranch_scc0 A_nb00")
        if OPT["rm"] and not OPT["xthr"]: A("s_cmp_ge_u32 s2, 384"); A("s_cbranch_scc1 A_nb00")
        thr("b")
        if OPT["b0"] == 2: A("s_cmp_ge_u32 s2, 384"); A("s_cbranch_scc1 A_nb00")
        A("s_barrier"); A.label("A_nb00")
    A("s_waitcnt lgkmcnt(0)")
    A("s_barrier")
    if OPT["aprio"] and not OPT["rm"]:
        A(f"s_cmp_lt_u32 s2, {384 if OPT['aprio'] == 1 else 0}"); A("s_cbranch_scc1 A_nopr"); A("s_setprio 3"); A.label("A_nopr")
    stamp(A, 9)
    if OPT["ue"]:
        if OPT["uh"] < 448: A(f"s_cmp_ge_u32 s2, {OPT['uh']}"); A("s_cbranch_scc1 A_ue")
        A(f"s_cmp_eq_u32 s{sMode}, 2"); A("s_cbranch_scc0 A_ue")
        A(f"global_load_dword v161, v160, {s(S_DBG,2)} sc1")
        A.label("A_ue")
    else:
        A(f"global_load_dword v161, v160, {s(S_DBG,2)} sc1")
    for k in range(3): A(f"ds_read_b128 {v(vFr+4*k,4)}, v5 offset:{1024*k}")
    for k in range(3):
        A(f"s_waitcnt lgkmcnt({2-k})")
        for i in range(4): A(f"v_add_f32 v{vAcc+4*k+i}, v{vAcc+4*k+i}, v{vFr+4*k+i}")
    A.label("A_nox")
    A(f"v_add_f32 v{vAcc}, v{vAcc}, v{vDsk}")
    A(f"ds_write_b128 v{vTW0}, {v(vAcc,4)}")
    A(f"ds_write_b64 v{vTW1}, {v(vAcc+4,2)}")
    A(f"ds_write_b64 v{vTW2}, {v(vAcc+6,2)}")
    for i in range(4):
        A(f"ds_write_b32 v{vTW3}, v{vAcc+8+i} offset:{128*i}")
    A("v_cmp_eq_u32 vcc, 0, v1"); A(f"s_add_u32 m0, s{sTb}, 2048")
    A(f"v_cndmask_b32 v2, 0, v{vAcc+8}, vcc")
    A("s_mov_b32 exec_hi, 0")
    A("ds_write_addtid_b32 v2")
    A("s_mov_b32 exec_hi, -1")
    if OPT["ue"]:
        if OPT["uh"] < 448: A(f"s_cmp_ge_u32 s2, {OPT['uh']}"); A("s_cbranch_scc1 A_ue2")
        A(f"s_cmp_eq_u32 s{sMode}, 2"); A("s_cbranch_scc0 A_ue2")
        A("s_waitcnt vmcnt(0)")
        A("v_readfirstlane_b32 s46, v161")
        A("s_cmp_ge_u32 s46, 1"); A("s_cbranch_scc1 A_ue1")
        poll(A, 160, S_DBG, "s58", 1, vt=161, sleep=8)
        A.label("A_ue1")
        A(f"s_add_u32 m0, s{sMain}, {A_U0}")
        A("s_nop 0")
        for j in range(4):
            A(f"buffer_load_dwordx4 v7, s[48:51], s59 offen" + (f" offset:{1024*j}" if j else "") + (" sc1 nt lds" if OPT["wnt"] & 4 else " sc1 lds"))
        A.label("A_ue2")
    stamp(A, 5)
    vE, vO = 46, 62
    blkX = [0, 1, 2, 3]; blkY = [4, 5, 6, 7, 8]
    def cv(r2):
        A(f"v_cvt_pk_bf16_f32 v{vE+r2}, v{vFr+3*r2+2}, v{vFr+3*r2+1}")
        A(f"v_cvt_pk_bf16_f32 v{vO+r2}, v{vFr+3*r2+1}, v{vFr+3*r2}")
    def gathers(order):
        for n, rp in enumerate(order):
            beta = 0 if rp < 2 else 1 if rp < 4 else 2 if rp < 8 else 3
            base = [0, 256, 384, 512][beta]; r0 = [0, 2, 4, 8][beta]
            off = 4 * (base + (128 >> beta) * (rp - r0))
            for e in range(3):
                if beta == 0: A(f"ds_read_b32 v{vFr+3*rp+e}, v{vG} offset:{off+4*e}")
                else: A(f"ds_read_b32 v{vFr+3*rp+e}, v{vG+1+3*(beta-1)+e} offset:{off}")
        for n in range(len(order)):
            A(f"s_waitcnt lgkmcnt({3*(len(order)-1-n)})"); cv(order[n])
    vSp = 14
    def cw(rp):
        rho = 8 - rp
        A(f"ds_write_addtid_b32 v{vE+rp} offset:{4+256*rho}")
        A(f"ds_write_addtid_b32 v{vO+rp} offset:{4+A_CS+256*rho}")
        A(f"ds_write_addtid_b32 v{vE+rp} offset:{2*A_CS+256*rho}")
        A(f"ds_write_addtid_b32 v{vO+rp} offset:{3*A_CS+256*rho}")
    def uf(j0):
        poll(A, 160, S_DBG, "s58", 1, vt=161, first_loaded=True, sleep=16)
        A(f"s_add_u32 m0, s{sMain}, {A_U0}")
        A("s_nop 0")
        for j in range(j0, j0+2):
            A(f"buffer_load_dwordx4 v7, s[48:51], s59 offen" + (f" offset:{1024*j}" if j else "") + (" sc1 nt lds" if OPT["wnt"] & 4 else " sc1 lds"))
        A(f"s_add_u32 m0, s{sMain}, 12")
    if OPT["ue"]:
        A(f"s_add_u32 m0, s{sMain}, 12")
    A(f"s_cmp_eq_u32 s{sMode}, 2"); A("s_cbranch_scc1 A_gx")
    gathers(blkY)
    if OPT["ue"]: A(f"s_cmp_eq_u32 s{sMode}, 1"); A("s_cbranch_scc1 A_wy")
    if not lateu:
        A("s_cmp_ge_u32 s2, 448"); A("s_cbranch_scc0 A_gx")
        uf(0)
    A(f"s_cmp_eq_u32 s{sMode}, 1"); A("s_cbranch_scc1 A_wy")
    A.label("A_gx")
    gathers(blkX)
    if lateu: pass
    elif OPT["ue"]:
        A("s_cmp_ge_u32 s2, 448"); A("s_cbranch_scc0 A_uf3")
        n0 = len(A.lines)
        uf(2)
        k = [i for i in range(n0, len(A.lines)) if A.lines[i].startswith("s_add_u32 m0")][0]
        del A.lines[n0:k]
        A.label("A_uf3")
    else:
        A(f"s_cmp_eq_u32 s{sMode}, 0"); A("s_cbranch_scc1 A_uf2")
        n0 = len(A.lines)
        uf(2)
        k = [i for i in range(n0, len(A.lines)) if A.lines[i].startswith("s_add_u32 m0")][0]
        A.lines[k:k] = ["A_uf2:"]
    A(f"v_cmp_eq_u32 vcc, 0, v1")
    A(f"v_cvt_pk_bf16_f32 v2, v{vAcc}, 0")
    A(f"v_mov_b32 v3, 0")
    A(f"v_cndmask_b32 v2, 0, v2, vcc")
    for rp in blkX: cw(rp)
    A("s_mov_b64 exec, 0xff")
    A(f"ds_write_addtid_b32 v2 offset:{4+2304}")
    A(f"ds_write_addtid_b32 v3 offset:{4+A_CS+2304}")
    A(f"ds_write_addtid_b32 v2 offset:{2*A_CS+2304}")
    A(f"ds_write_addtid_b32 v3 offset:{3*A_CS+2304}")
    A("s_mov_b64 exec, -1")
    A(f"s_cmp_eq_u32 s{sMode}, 2"); A("s_cbranch_scc1 A_wd")
    A.label("A_wy")
    for rp in blkY: cw(rp)
    A.label("A_wd")
    if lateu:
        A("s_cmp_ge_u32 s2, 448"); A("s_cbranch_scc0 A_uf4")
        poll(A, 160, S_DBG, "s58", 1, vt=161, sleep=16)
        A(f"s_add_u32 m0, s{sMain}, {A_U0}")
        A("s_nop 0")
        for j in range(4):
            A(f"buffer_load_dwordx4 v7, s[48:51], s59 offen" + (f" offset:{1024*j}" if j else "") + " sc1 lds")
        A.label("A_uf4")
    for tau in range(4):
        for jj in range(4):
            A(f"ds_read_b64 {v(vFr+8*tau+2*jj,2)}, v176 offset:{128*tau+8*(3-jj)}")
    for tau in range(4):
        A(f"s_waitcnt lgkmcnt({12-4*tau})")
        for st in range(2):
            for h in range(2):
                A(f"v_cvt_pk_bf16_f32 v{188+4*tau+2*st+h}, v{vFr+8*tau+4*h+st}, v{vFr+8*tau+4*h+2+st}")
    A(f"s_add_u32 s{sT}, s{sMain}, {A_Z}")
    if OPT["nq"]:
        A("s_cmp_eq_u32 s40, 3"); A("s_cbranch_scc0 A_nk")
        A("s_lshr_b32 s46, s2, 6"); A("s_cmp_eq_u32 s46, 6"); A("s_cbranch_scc0 A_nk")
        A("s_mov_b64 exec, 1")
        poll(A, 175, S_WS, "v174", 1, vt=6, sleep=8, cmp="ne", spin=32)
        A("s_mov_b64 exec, -1")
        A("v_mov_b32 v160, 128")
        poll(A, 160, S_DBG, 1, 1, vt=161, sleep=8)
        for c in range(4):
            A(f"s_mov_b32 m0, {A_U0 + c*A_CH}")
            A(f"s_sub_u32 s47, s59, {OPT['rs'] * (3-c)}")
            for j in range(4):
                A(f"buffer_load_dwordx4 v7, s[48:51], s47 offen" + (f" offset:{1024*j}" if j else "") + " sc1 lds")
        A.label("A_nk")
    stamp(A, 6)
    A("s_waitcnt vmcnt(0) lgkmcnt(0)")
    if OPT["a4t"]:
        A(f"s_cmp_eq_u32 s{sMode}, 0"); A("s_cbranch_scc0 A_nb3"); thr("c"); A.label("A_nb3")
    else:
        A(f"s_cmp_eq_u32 s{sMode}, 0"); A("s_cbranch_scc1 A_nb2")
    A("s_setprio 0")
    A("s_barrier")
    A.label("A_nb2")
    stamp(A, 7)
    if OPT["cut"] == 2: A("s_endpgm")
    if True:
        vY = 128
        def Areg(a, r): return 14 if a == 4 else 96 + 16*(r % 2) + 4*a
        def Breg(b, r): return 44 + 4*(b-5) if b >= 5 else 56 + 20*(r % 2) + 4*b
        def rdA(a, r):
            c_ = 8*a + r
            return [f"ds_read_b64 {v(Areg(a,r),2)}, v{vAA} offset:{64*(32-c_)}", f"ds_read_b64 {v(Areg(a,r)+2,2)}, v{vAA} offset:{64*(32-c_)+8}"]
        def rdB(b, r):
            if b == 0:
                return [f"v_subrev_u32 v{vB0}, {64*(r+1)}, v{vBA}", f"v_max_i32 v{vB0}, s{sT}, v{vB0}", f"ds_read_b128 {v(Breg(0,r),4)}, v{vB0}"]
            return [f"ds_read_b128 {v(Breg(b,r),4)}, v{vBA} offset:{512*(b-1)+64*(7-r)}"]
        issued = []
        def issue(l):
            A(l)
            if l.startswith("ds_read"): issued.append(Ins(l).w)
        done = [0]
        def need_regs(R):
            idx = max([i for i, w in enumerate(issued) if w & R] + [-1])
            if idx >= done[0]:
                n = min(len(issued) - 1 - idx, 15)
                A(f"s_waitcnt lgkmcnt({n})")
                done[0] = len(issued) - n
        def first_reads(r):
            return rdA(0, r) + [l for b in range(7, -1, -1) for l in rdB(b, r)] + [l for a in range(1, 4) for l in rdA(a, r)]
        def far_reads(bbs):
            L = []
            for k, bb in enumerate(bbs):
                for st in range(2):
                    d = v(204+8*k+4*st, 4)
                    if bb == 0: L += [f"v_subrev_u32 v40, {64+16*st}, v{vBA}", f"v_max_i32 v40, s{sT}, v40", f"ds_read_b128 {d}, v40"]
                    else: L.append(f"ds_read_b128 {d}, v{vBA} offset:{512*(bb-1)+448-16*st}")
            return L
        def far1(): return [(204+4*k, f"v_mfma_f32_16x16x32_bf16 {v(220+4*k,4)}, {v(204+4*k,4)}, {v(180+4*(k%2),4)}, 0") for k in range(4)]
        def farc(): return [l for k in range(4) for l in cvt4(220+4*k, 236+2*k)]
        def far2(bbs): return [f"v_mfma_f32_16x16x32_bf16 {v(vY+4*t,4)}, {v(236+4*k,4)}, {v(188+4*(t-bb-4),4)}, {v(vY+4*t,4)}" for k, bb in enumerate(bbs) for t in range(bb+4, 8)]
        A(f"s_cmp_eq_u32 s{sMode}, 2"); A("s_cbranch_scc0 A_c0")
        for l in first_reads(4): A(l)
        for i in range(32): A(f"v_mov_b32 v{vY+i}, 0")
        A("s_waitcnt lgkmcnt(0)")
        A("s_branch A_c4")
        A.label("A_c0")
        for l in first_reads(0) + rdA(4, 0): issue(l)
        for r in range(8):
            if r == 4:
                A(f"s_cmp_eq_u32 s{sMode}, 1"); A("s_cbranch_scc1 A_red0")
                A.label("A_c4")
            bbs = (1, 3) if r < 4 else (0, 2)
            q_ = []
            if r < 7:
                q_ = rdA(0, r+1) + [l for b in (4, 3, 2, 1, 0) for l in rdB(b, r+1)] + [l for a in range(1, 4) for l in rdA(a, r+1)]
            if r % 4 == 0: q_ += far_reads(bbs)
            if r % 4 == 2: q_ += farc()
            if r % 4 == 1:
                for rg, m_ in far1():
                    need_regs(regs(v(rg,4))); A(m_)
                    if q_: issue(q_.pop(0))
            ml = [(a, b) for a in range(4) for b in range(7-a, -1, -1)] + ([(4, b) for b in range(3, -1, -1)] if r == 0 else [])
            for a, b in ml:
                t = a + b
                c_ = "0" if (r == 0 and a == 0) else v(vY+4*t,4)
                need_regs(regs(v(Areg(a,r),4)) | regs(v(Breg(b,r),4)))
                A(f"v_mfma_f32_16x16x32_bf16 {v(vY+4*t,4)}, {v(Areg(a,r),4)}, {v(Breg(b,r),4)}, {c_}")
                if r < 7 and b == 7-a and b >= 5: q_ = rdB(b, r+1) + q_
                if q_: issue(q_.pop(0))
            for l in q_: issue(l)
            if r % 4 == 3:
                for m_ in far2(bbs): A(m_)
        stamp(A, 8)
        def outp(t):
            o = 44 + 2*t
            for l in cvt4(vY+4*t, o) + cvt4(vY+4*t+4, o+2): A(l)
            A(f"v_permlane16_swap_b32 v{o}, v{o+2}")
            A(f"v_permlane16_swap_b32 v{o+1}, v{o+3}")
            A(f"global_store_dwordx4 v{vOA}, {v(o,4)}, {s(S_WS,2)} offset:{512*t} sc1")
        def red(give, keep, og, ok):
            A("s_setprio 3")
            A(f"v_lshl_add_u32 v4, v1, 4, s{sAux}")
            A("s_nop 7")
            for k in range(4): A(f"ds_write_b128 v4, {v(vY+give+4*k,4)} offset:{og+1024*k}")
            A("s_waitcnt lgkmcnt(0)")
            A("s_barrier")
            if OPT["ast"]: stamp(A, 1)
            for k in range(4): A(f"ds_read_b128 {v(96+4*k,4)}, v4 offset:{ok+1024*k}")
            for k in range(4):
                A(f"s_waitcnt lgkmcnt({3-k})")
                for i in range(4): A(f"v_add_f32 v{vY+keep+4*k+i}, v{vY+keep+4*k+i}, v{96+4*k+i}")
        A(f"s_cmp_eq_u32 s{sMode}, 0"); A("s_cbranch_scc1 A_lo")
        red(0, 16, 4096, 0)
        A("s_branch A_hi")
        A.label("A_red0")
        stamp(A, 8)
        red(16, 0, 0, 4096)
        A.label("A_lo")
        outp(0); outp(2)
        A(f"s_cmp_eq_u32 s{sMode}, 1"); A("s_cbranch_scc1 A_sig")
        A.label("A_hi")
        outp(4); outp(6)
    A.label("A_sig")
    A(f"s_lshr_b32 s46, s{sD}, 1"); A("s_lshl_b32 s46, s46, 7"); A(f"s_add_u32 s46, s46, {WS_FA}")
    A("v_lshl_add_u32 v4, v1, 7, s46"); A("v_mov_b32 v5, 1")
    if OPT["ast"]: stamp(A, 2)
    A("s_waitcnt vmcnt(0)")
    if OPT["ast"]: stamp(A, 3)
    A("s_barrier")
    A("s_cmp_lg_u32 s40, 0"); A("s_cbranch_scc1 A_end")
    A(f"s_cmp_eq_u32 s{sMode}, 1"); A("s_cselect_b64 exec, 1, 3")
    A(f"global_store_dword v4, v5, {s(S_WS,2)} sc1")
    A.label("A_end")
    endpgm(A)
    if OPT["l2p"]:
        A.label("A_pf")
        A("s_sub_u32 s46, s7, 56"); A("s_lshl_b32 s46, s46, 2"); A("s_add_u32 s46, s46, s40")
        A("s_lshr_b32 s47, s6, 2")
        A(f"s_mul_i32 s50, s46, {10*3840}"); A("s_mul_i32 s51, s47, 640"); A("s_add_u32 s50, s50, s51"); A(f"s_add_u32 s50, s50, {320*3840}")
        for k in range(3):
            A(f"v_add_u32 v176, {64*k}, v1"); A("v_min_u32 v176, 149, v176")
            A("v_mul_u32_u24 v177, 4370, v176"); A("v_lshrrev_b32 v177, 16, v177")
            A("v_mul_u32_u24 v178, 15, v177"); A("v_sub_u32 v176, v176, v178")
            A("v_mul_u32_u24 v178, 52, v176"); A("v_lshrrev_b32 v178, 8, v178")
            A("v_mul_u32_u24 v177, 3840, v177"); A("v_lshl_add_u32 v177, v176, 7, v177")
            A("v_mul_u32_u24 v178, 640, v178"); A("v_add3_u32 v177, v177, v178, s50")
            A(f"global_load_dword v{180+k}, v177, {s(S_WQKV,2)}")
        A("s_and_b32 s50, s6, 3"); A("s_lshl_b32 s50, s50, 5"); A("s_add_u32 s50, s50, s46"); A(f"s_mul_i32 s50, s50, {16*1280}")
        A("s_lshl_b32 s47, s47, 7"); A("s_add_u32 s50, s50, s47"); A("s_add_u32 s50, s50, 640")
        A("v_and_b32 v176, 15, v1"); A("v_bfe_u32 v177, v1, 4, 1"); A("v_mul_u32_u24 v176, 1280, v176")
        A("v_lshl_add_u32 v176, v177, 8, v176"); A("v_add_u32 v176, s50, v176")
        A(f"global_load_dword v183, v176, {s(S_U,2)}")
        A("s_branch A_pfr")

def T_head(A, sN):
    A("v_lshrrev_b32 v2, 3, v1"); A("v_and_b32 v3, 7, v1")
    A("v_mul_u32_u24 v4, 10240, v2"); A("v_lshl_add_u32 v4, v3, 4, v4")
    A("v_add_u32 v5, 5120, v4")
    A("s_and_b32 s41, s6, 3"); A("s_lshl_b32 s41, s41, 3"); A(f"s_lshr_b32 s54, s{sN}, 3"); A("s_add_u32 s41, s41, s54"); A("s_lshr_b32 s42, s6, 2")
    A("s_lshl_b32 s43, s40, 1"); A("s_add_u32 s53, s43, 6"); A("s_add_u32 s43, s43, s42"); A("s_sub_u32 s53, s53, s42")
    A(f"s_mul_i32 s44, s41, {64*1280}")
    if OPT["tfix"]: A("s_min_u32 s45, s43, 4"); A("s_lshl_b32 s45, s45, 7")
    else: A("s_lshl_b32 s45, s43, 7")
    A("s_add_u32 s45, s44, s45")
    A("s_waitcnt lgkmcnt(0)")
    A(f"s_add_u32 s48, s{S_U}, s45"); A(f"s_addc_u32 s49, s{S_U+1}, 0")
    if OPT["g3"]:
        A("s_cmp_eq_u32 s40, 0"); A("s_cbranch_scc1 T_h0")
        A("v_subrev_u32 v9, 64, v0"); A("v_min_u32 v9, 89, v9"); A("v_lshlrev_b32 v9, 7, v9")
        A(f"s_mul_i32 s54, s{sN}, {3*3840}"); A(f"s_add_u32 s54, s54, {128*3840}"); A("v_add_u32 v9, s54, v9")
        A("s_barrier")
        A(f"global_load_dword v130, v9, {s(S_WQKV,2)}")
        A.label("T_h0")
    for i in range(8):
        A(f"global_load_dwordx4 {v(16+4*i,4)}, v{4 if i<4 else 5}, s[48:49] offset:{1280*(i%4)}")
    A("s_branch T_tr2")

def T_role(A, sN):
    ZW = ZPW * 8 // 64
    A(f"s_mul_i32 s52, s{sN}, {ZW}"); A(f"s_add_u32 s52, s52, {WS_KV}")
    A("v_lshl_add_u32 v8, v1, 4, s52")
    nfull = (ZW//16 - 1)//64
    A(f"v_min_u32 v9, {ZW//16-64*nfull-1}, v1")
    A("v_lshl_add_u32 v9, v9, 4, s52")
    for i in range(4): A(f"v_mov_b32 v{12+i}, 0")
    A("s_waitcnt lgkmcnt(0)")
    for k in range(nfull): A(f"global_store_dwordx4 v8, v[12:15], {s(S_WS,2)} offset:{1024*k} sc1")
    A(f"global_store_dwordx4 v9, v[12:15], {s(S_WS,2)} offset:{1024*nfull} sc1")
    if OPT["g3"]: A("s_barrier"); A("s_barrier")
    A("s_waitcnt vmcnt(0)")
    if OPT["twait"] == 2:
        A(f"s_add_u32 s52, s{sN}, 128"); A("s_lshl_b32 s52, s52, 8"); A(f"s_add_u32 s52, s52, {WS_CP}"); A("v_mov_b32 v16, s52")
        A(f"global_load_dword v17, v16, {s(S_WS,2)} sc1")
    A("v_mov_b32 v10, 0"); A("v_mov_b32 v11, 1")
    A("s_mov_b64 exec, 1")
    if OPT['tm']:
        A(f"global_atomic_add v10, v11, {s(S_DBG,2)} sc1")
        A("s_mov_b64 exec, -1")
        A("s_barrier")
        A(f"global_load_dword v11, v10, {s(S_DBG,2)} sc1")
        A(f"s_mul_i32 s52, s{sN}, 12800"); A("v_min_u32 v8, 49, v1"); A("v_lshl_add_u32 v8, v8, 8, s52")
        A(f"global_load_dword v14, v8, {s(S_WO,2)}")
        A(f"global_load_dword v15, v8, {s(S_WO,2)} offset:128")
        poll(A, 10, S_DBG, 64, 1, vt=11, sleep=16, first_loaded=True)
        A("s_barrier")
        lsignal(A, WS_C2, S_WS, 1, 64, 128, va=10, vd=11, fbase=S_DBG, hint=WS_UH if OPT['uh'] < 448 else None)
    else:
        A("s_barrier")
        A(f"global_atomic_add v10, v11, {s(S_DBG,2)} sc1")
        A("s_mov_b64 exec, -1")
        A(f"s_mul_i32 s52, s{sN}, 12800"); A("v_min_u32 v8, 49, v1"); A("v_lshl_add_u32 v8, v8, 8, s52")
        A(f"global_load_dword v12, v8, {s(S_WO,2)}")
        A(f"global_load_dword v13, v8, {s(S_WO,2)} offset:128")
        A("s_barrier")
        poll(A, 10, S_DBG, 64, 1, vt=11, sleep=16)
        lsignal(A, WS_C2, S_WS, 1, 64, 128, va=10, vd=11, fbase=S_DBG, hint=WS_UH if OPT['uh'] < 448 else None)
    if OPT["twait"] == 2:
        poll(A, 16, S_WS, "v17", 1, vt=18, sleep=4, cmp="ne", spin=48)
    elif OPT["twait"]:
        A("v_mov_b32 v10, 128")
        poll(A, 10, S_DBG, 1, 1, vt=11, sleep=16)
    A("s_branch T_done")
    A.label("T_tr2")
    A("s_min_u32 s45, s53, 9"); A("s_lshl_b32 s45, s45, 7"); A("s_add_u32 s45, s44, s45")
    A(f"s_add_u32 s48, s{S_U}, s45"); A(f"s_addc_u32 s49, s{S_U+1}, 0")
    A(f"v_mul_u32_u24 v6, {8*OPT['rs']}, v3"); A("v_lshl_add_u32 v6, v2, 4, v6")
    A("s_lshl_b32 s46, s41, 7"); A(f"s_add_u32 s55, s46, {WS_UT}")
    A("s_mov_b32 s46, 0x05040100"); A("s_mov_b32 s47, 0x07060302")
    R2 = 10 - OPT["r1"]
    A(f"v_min_u32 v9, {30*R2-1}, v0"); A("v_lshlrev_b32 v9, 7, v9")
    A(f"s_mul_i32 s54, s{sN}, {R2*3840}"); A(f"s_add_u32 s54, s54, {64*OPT['r1']*3840}"); A("v_add_u32 v9, s54, v9")
    if OPT["gt"]:
        A("s_min_u32 s57, s43, 9"); A("s_lshl_b32 s57, s57, 7"); A("v_lshl_add_u32 v10, v3, 4, s57")
        A(f"global_load_dwordx4 v[132:135], v10, {s(S_GW,2)}")
        A("s_min_u32 s57, s53, 9"); A("s_lshl_b32 s57, s57, 7"); A("v_lshl_add_u32 v10, v3, 4, s57")
        A(f"global_load_dwordx4 v[136:139], v10, {s(S_GW,2)}")
        for i in range(8): A(f"v_mov_b32 v{140+i}, 0")
    stamp(A, 1)
    if OPT["g3"]:
        A("s_cmp_lg_u32 s40, 0"); A("s_cbranch_scc1 T_h1")
        A(f"s_waitcnt vmcnt({OPT['tw']})"); A("s_barrier")
        A.label("T_h1")
    if OPT["g3"] != 2: A("s_waitcnt vmcnt(0)")
    if OPT["g3"]: A("s_barrier")
    stamp(A, 2)
    if OPT['tm']:
        for i in range(8):
            A(f"global_load_dwordx4 {v(80+4*i,4)}, v{4 if i<4 else 5}, s[48:49] offset:{1280*(i%4)}")
        A(f"global_load_dword v129, v9, {s(S_WQKV,2)}")
        A(f"s_waitcnt vmcnt({OPT['tm']-1})")
        A("s_barrier")
        stamp(A, 3)
        A("s_mov_b32 s56, 5")
        A.label("T_loop")
        A("s_cmp_ge_u32 s43, s56"); A("s_cbranch_scc1 T_skip")
        A(f"s_mul_i32 s45, s43, {64*OPT['rs']}"); A("s_add_u32 s45, s45, s55")
        A(f"s_add_u32 s50, s{S_WS}, s45"); A(f"s_addc_u32 s51, s{S_WS+1}, 0")
        for k in range(8):
            for i in range(4):
                A(f"v_perm_b32 v{48+4*k+i}, v{16+8*i+4+k//2}, v{16+8*i+k//2}, s{47 if k%2 else 46}")
            A(f"global_store_dwordx4 v6, {v(48+4*k,4)}, s[50:51] sc1")
            A(f"s_add_u32 s50, s50, {OPT['rs']}"); A("s_addc_u32 s51, s51, 0")
        A.label("T_skip")
        A("s_cmp_eq_u32 s56, 10"); A("s_cbranch_scc1 T_fin")
        A("s_mov_b32 s43, s53"); A("s_mov_b32 s56, 10")
        for i in range(32): A(f"v_mov_b32 v{16+i}, v{80+i}")
        A("s_branch T_loop")
    else:
        A("s_mov_b32 s56, 5")
        if OPT["t3"]:
            for i in range(8):
                A(f"global_load_dwordx4 {v(80+4*i,4)}, v{4 if i<4 else 5}, s[48:49] offset:{1280*(i%4)}")
            A(f"global_load_dword v129, v9, {s(S_WQKV,2)}")
            A("s_waitcnt vmcnt(9)")
        A.label("T_loop")
        A("s_cmp_ge_u32 s43, s56"); A("s_cbranch_scc1 T_skip")
        A(f"s_mul_i32 s45, s43, {64*OPT['rs']}"); A("s_add_u32 s45, s45, s55")
        A(f"s_add_u32 s50, s{S_WS}, s45"); A(f"s_addc_u32 s51, s{S_WS+1}, 0")
        for k in range(8):
            for i in range(4):
                A(f"v_perm_b32 v{48+4*k+i}, v{16+8*i+4+k//2}, v{16+8*i+k//2}, s{47 if k%2 else 46}")
            A(f"global_store_dwordx4 v6, {v(48+4*k,4)}, s[50:51] sc1" + (" nt" if OPT["wnt"] & 1 else ""))
            A(f"s_add_u32 s50, s50, {OPT['rs']}"); A("s_addc_u32 s51, s51, 0")
        if OPT["gt"]:
            for c in range(4):
                for i in range(8): A(f"v_dot2_f32_bf16 v{140+i}, v{16+4*i+c}, v{132+c}, v{140+i}")
        A.label("T_skip")
        if OPT["gt"]:
            for c in range(4): A(f"v_mov_b32 v{132+c}, v{136+c}")
        A("s_cmp_eq_u32 s56, 10"); A("s_cbranch_scc1 T_fin")
        if OPT["t3"]:
            A("s_mov_b32 s43, s53"); A("s_mov_b32 s56, 10")
            A("s_waitcnt vmcnt(0)")
            A("s_barrier")
            stamp(A, 3)
            for i in range(32): A(f"v_mov_b32 v{16+i}, v{80+i}")
            A("s_branch T_loop")
        else:
            for i in range(8):
                A(f"global_load_dwordx4 {v(16+4*i,4)}, v{4 if i<4 else 5}, s[48:49] offset:{1280*(i%4)}")
            A(f"global_load_dword v129, v9, {s(S_WQKV,2)}")
            A("s_mov_b32 s43, s53"); A("s_mov_b32 s56, 10")
            A("s_waitcnt vmcnt(9)")
            A("s_barrier")
            stamp(A, 3)
            A("s_waitcnt vmcnt(1)")
            A("s_branch T_loop")
    A.label("T_fin")
    if OPT["gt"]:
        A("s_nop 3")
        for ctl in ("quad_perm:[1,0,3,2]", "quad_perm:[2,3,0,1]", "row_half_mirror"):
            for i in range(8): A(f"v_add_f32_dpp v{140+i}, v{140+i}, v{140+i} {ctl} row_mask:0xf bank_mask:0xf")
        for i in range(1, 8):
            A(f"v_cmp_eq_u32 vcc, {i}, v3"); A(f"v_cndmask_b32 v140, v140, v{140+i}, vcc")
        A("s_lshl_b32 s57, s41, 11"); A("s_lshl_b32 s58, s42, 2"); A("s_add_u32 s58, s58, s40"); A("s_lshl_b32 s58, s58, 2")
        A("s_add_u32 s57, s57, s58"); A(f"s_add_u32 s57, s57, {WS_G}")
        A("v_lshl_add_u32 v10, v1, 5, s57")
        A(f"global_store_dword v10, v140, {s(S_WS,2)} sc1")
    A("s_waitcnt vmcnt(0)")
    A("s_barrier")
    stamp(A, 4)
    A.label("T_done")
    A("s_barrier")
    stamp(A, 5)

F_RB, F_CB, F_X, F_LB, F_SW, F_VA = 16, 17, 18, 19, 12, 220
def F_pre(A, sN):
    A(f"s_and_b32 s20, s{sN}, 7"); A(f"s_lshr_b32 s21, s{sN}, 3")
    A("s_mul_i32 s22, s21, 52"); A("s_lshr_b32 s22, s22, 8")
    A(f"s_lshl_b32 s{F_RB}, s20, 2"); A(f"s_add_u32 s{F_RB}, s{F_RB}, s22")
    A("s_mul_i32 s22, s22, 5"); A(f"s_sub_u32 s{F_CB}, s21, s22")
    if OPT["py"]:
        A(f"s_lshl_b32 s20, s{F_CB}, 2"); A("s_lshr_b32 s20, 0x16420, s20")
        A(f"s_and_b32 s{F_X}, s20, 3"); A("s_bfe_u32 s11, s20, 0x10002")
    else:
        A(f"s_and_b32 s{F_X}, s{F_CB}, 3"); A("s_mov_b32 s11, 0")
    A(f"s_lshl_b32 s{F_LB}, s40, 10")
    srd(A, F_SW, S_WO, 640*1280)
    A(f"v_lshrrev_b32 v{F_VA}, 4, v0"); A(f"v_and_b32 v{F_VA+1}, 15, v0")
    A(f"v_and_b32 v{F_VA+2}, 3, v{F_VA}"); A(f"v_lshlrev_b32 v{F_VA+2}, 2, v{F_VA+2}"); A(f"v_xor_b32 v{F_VA+1}, v{F_VA+1}, v{F_VA+2}")
    A(f"v_mul_u32_u24 v{F_VA}, 1280, v{F_VA}"); A(f"v_lshl_add_u32 v{F_VA}, v{F_VA+1}, 4, v{F_VA}")
    A(f"s_lshl_b32 s20, s{F_CB}, 8"); A(f"v_add_u32 v{F_VA}, s20, v{F_VA}")
    for l in range(4):
        A(f"s_xor_b32 s20, s{F_X}, {l}"); A(f"s_mul_i32 s{26+l}, s20, {160*1280}")
    a, b, c, d = 234, 235, 236, 237
    A(f"v_bfe_u32 v{c}, v1, 2, 2"); A(f"v_lshrrev_b32 v{d}, 5, v1")
    A(f"v_and_b32 v{a}, 1, v1"); A(f"v_bfe_u32 v{b}, v1, 1, 1"); A(f"v_lshl_add_u32 v{a}, v{a}, 1, v{b}")
    A("s_lshl_b32 s20, s40, 6")
    A(f"v_lshl_add_u32 v{a}, v{a}, 3, s20"); A(f"v_bfe_u32 v{b}, v1, 4, 1"); A(f"v_lshl_add_u32 v{a}, v{b}, 5, v{a}")
    A(f"v_lshlrev_b32 v{b}, 6, v{c}"); A(f"v_xor_b32 v{a}, v{a}, v{b}")
    A(f"v_lshl_add_u32 v{a}, v{c}, 8, v{a}")
    A(f"v_mul_u32_u24 v{b}, {20*256}, v{d}"); A(f"v_add_u32 v{b}, {16*256}, v{b}"); A(f"v_add_u32 v{b}, v{b}, v{a}")
    A(f"v_lshl_add_u32 v{a}, v{d}, 10, v{a}")
    A(f"v_add_u32 v{c}, 40960, v{a}"); A(f"v_add_u32 v{d}, 40960, v{b}")
F_QB = [26, 27, 28, 29]
def wo_piece(j, k):
    return [f"s_add_u32 m0, s{F_LB}, {20480*(j%4) + 4096*k}", f"s_add_u32 s20, s{F_QB[j//2]}, {(80*(j%2) + 16*k)*1280}",
            f"buffer_load_dwordx4 v{F_VA}, {s(F_SW,4)}, s20 offen lds"]
def wo_dma(j):
    return [wo_piece(j, k) for k in range(5)]
F_RA = 234
def wo_read(j, ra):
    l, e = divmod(j, 2); b = j % 4; up = 2*(b//2); o = 20480*(b%2)
    R = []
    for p2 in range(2):
        for s_ in range(2):
            for h in range(2):
                R.append(f"ds_read_b64_tr_b16 {v(96+8*(5*l+2*e+p2)+4*s_+2*h, 2)}, v{ra[up]} offset:{o+256*(40*p2+20*h+8*s_)}")
    for s_ in range(2):
        R.append(f"ds_read_b64_tr_b16 {v(96+8*(5*l+4)+4*s_+2*e, 2)}, v{ra[up+1]} offset:{o+256*40*s_}")
    return R

def F_role(A):
    sRB, sCB = F_RB, F_CB
    SS = 52
    vWf = 96
    vAcc = 64
    vGt = 44
    vR1, vR2, vRo, vO, vRd = 2, 3, 4, 5, 46
    def flat(G):
        for g in G:
            for l in g: A(l)
    RA = [2, 3, 6, 7]
    if OPT["fst"] == 2: stamp(A, 1)
    if OPT["gt"]:
        A("v_mov_b32 v44, 128"); A(f"global_load_dword v45, v44, {s(S_DBG,2)} sc1")
    flat(wo_dma(4) + wo_dma(5))
    for k in range(4): A(f"v_mov_b32 v{RA[k]}, v{F_RA+k}")
    A(f"s_mov_b32 s56, s{F_X}"); A("s_lshl_b32 s45, s40, 10")
    A("v_bfe_u32 v10, v1, 2, 2"); A("v_and_b32 v11, 3, v1")
    A("v_bfe_u32 v8, v1, 4, 1"); A("v_lshrrev_b32 v9, 5, v1")
    flat(wo_dma(6))
    srd(A, SS, S_WS, WSZ)
    A(f"v_lshlrev_b32 v{vRd}, 4, v1")
    A(f"s_mul_i32 s41, s{sRB}, 5"); A(f"s_add_u32 s41, s41, s{sCB}"); A(f"s_lshl_b32 s41, s41, {CSH}"); A(f"s_add_u32 s41, s41, {WS_CF}")
    A(f"s_lshl_b32 s42, s{sCB}, 2"); A("s_add_u32 s42, s42, s40"); A("s_lshl_b32 s42, s42, 11"); A(f"s_add_u32 s42, s42, {WS_FA}")
    A("v_min_u32 v20, 15, v1"); A("v_lshl_add_u32 v20, v20, 7, s42")
    A("s_add_u32 s41, s41, s25")
    A("v_mov_b32 v21, s41")
    A("v_lshrrev_b32 v22, 3, v1"); A("v_and_b32 v23, 7, v1")
    A(f"v_mul_u32_u24 v22, {OPT['rs']}, v22"); A("v_lshl_add_u32 v22, v23, 4, v22")
    A(f"s_lshl_b32 s57, s{sCB}, 2"); A("s_add_u32 s57, s57, s40"); A(f"s_mul_i32 s57, s57, {32*OPT['rs']}")
    A(f"s_lshl_b32 s42, s{sRB}, 7"); A("s_add_u32 s57, s57, s42")
    A("s_lshl_b32 s58, s40, 12")
    if OPT["pre"]: A("s_add_u32 s58, s58, 40960")
    A("v_lshl_add_u32 v23, v9, 3, v10"); A("v_lshlrev_b32 v23, 7, v23"); A("v_lshl_add_u32 v23, v8, 5, v23")
    A("v_lshl_add_u32 v23, v11, 3, v23"); A("s_lshl_b32 s42, s11, 6"); A("s_add_u32 s42, s42, s58"); A("v_add_u32 v23, s42, v23")
    A("v_and_b32 v24, 31, v1"); A(f"s_lshl_b32 s41, s{sRB}, 6"); A("v_add_u32 v24, s41, v24")
    A("s_lshl_b32 s42, s11, 7"); A(f"s_add_u32 s42, s42, {WS_G}"); A(f"v_lshl_add_u32 v25, v24, {5 if OPT['gt'] else 2}, s42")
    A("v_mul_u32_u24 v24, 1280, v24"); A("v_lshl_add_u32 v24, v9, 4, v24")
    A(f"s_lshl_b32 s41, s{sCB}, 8"); A("s_lshl_b32 s42, s40, 6"); A("s_add_u32 s41, s41, s42")
    if not OPT["full"]:
        A(f"v_add_u32 v{vO}, s41, v24"); A(f"v_add_u32 v47, {32*1280}, v{vO}")
    else:
        A("v_and_b32 v24, 31, v1"); A("v_mul_u32_u24 v24, 272, v24"); A("v_lshl_add_u32 v24, v9, 4, v24")
        A("s_add_u32 s42, s42, 20480"); A("v_add_u32 v47, s42, v24")
        A("v_lshrrev_b32 v24, 4, v1"); A("s_lshl_b32 s42, s40, 3"); A("v_add_u32 v24, s42, v24"); A("v_and_b32 v26, 15, v1")
        A("v_mul_u32_u24 v27, 272, v24"); A("v_lshl_add_u32 v27, v26, 4, v27"); A("v_add_u32 v27, 20480, v27")
        A(f"s_lshl_b32 s42, s{sRB}, 6"); A("v_add_u32 v24, s42, v24"); A("v_mul_u32_u24 v24, 1280, v24")
        A("v_lshl_add_u32 v24, v26, 4, v24"); A(f"s_lshl_b32 s41, s{sCB}, 8"); A(f"v_add_u32 v{vO}, s41, v24")

    A("v_and_b32 v24, 15, v1"); A("v_lshl_add_u32 v24, v9, 4, v24"); A("v_lshlrev_b32 v24, 4, v24")
    A(f"v_lshl_add_u32 v{vRo}, v8, 12, v24")
    if OPT["gt"]: A("v_lshl_add_u32 v24, v8, 3, v24"); A("v_mov_b32 v26, v24")
    else:
        A("s_and_b32 s41, s56, 1"); A("v_xor_b32 v26, s41, v8")
        A("v_lshl_add_u32 v24, v26, 3, v24"); A("v_xor_b32 v26, 8, v24")
    A(f"s_lshl_b32 s47, s{sRB}, 1"); A("s_add_u32 s47, s47, s11"); A("s_mul_i32 s47, s47, 40960"); A(f"s_add_u32 s47, s47, {WS_OF}")
    A("s_mul_i32 s43, s11, 81920"); A("s_sub_u32 s43, 40960, s43")
    for l in range(4):
        A(f"s_xor_b32 s41, s56, {l}"); A("s_mul_i32 s41, s41, 10240"); A("s_add_u32 s41, s41, s47"); A(f"s_add_u32 s{60+l}, s41, s45")
        if l & 1: A(f"s_sub_u32 s{60+l}, s{60+l}, 10240")
    A("s_cmp_lt_u32 s40, 2"); A("s_cselect_b32 s64, s60, s61"); A("s_cselect_b32 s65, s62, s63")
    def fin_sig():
        A("s_cmp_eq_u32 s10, 0"); A("s_cbranch_scc1 F_nofin")
        msignal(A, 63, 16, vd=62)
        A.label("F_nofin")
    A("s_waitcnt vmcnt(15)"); A("s_barrier")
    if OPT["fst"] == 2: stamp(A, 2)
    for l in wo_read(3, RA): A(l)
    A("s_waitcnt vmcnt(10) lgkmcnt(0)"); A("s_barrier")
    if OPT["fst"] == 2: stamp(A, 3)
    flat(wo_dma(7))
    if OPT["ks"]: fin_sig()
    for l in wo_read(4, RA): A(l)
    A(f"s_waitcnt vmcnt({6 if OPT['ks'] else 5})") if False else A("s_waitcnt vmcnt(5)")
    A("s_barrier")
    if OPT["fst"] == 2: stamp(A, 4)
    for l in wo_read(5, RA) + wo_read(6, RA): A(l)
    if OPT["ks"]:
        A("s_cmp_eq_u32 s10, 0"); A("s_cbranch_scc1 F_w0")
        A("s_waitcnt vmcnt(1)"); A("s_branch F_w1")
        A.label("F_w0"); A("s_waitcnt vmcnt(0)"); A.label("F_w1")
    else: A("s_waitcnt vmcnt(0)")
    A("s_barrier")
    if OPT["fst"] == 2: stamp(A, 5)
    if OPT["gt"]:
        A("v_readfirstlane_b32 s42, v45")
        A("s_cmp_ge_u32 s42, 1"); A("s_cbranch_scc1 F_gok")
        poll(A, 44, S_DBG, 1, 1, vt=45, sleep=8)
        A.label("F_gok")
        for P in range(2):
            for h in range(2): A(f"global_load_dwordx3 {v(64+8*P+4*h,3)}, v25, {s(S_WS,2)} offset:{1024*P+16*h} sc1")
    for l in wo_read(7, RA): A(l)
    A("s_waitcnt lgkmcnt(0)")
    stamp(A, 7)
    vAt = 48
    A(f"s_mul_i32 s41, s11, {32*1280}"); A(f"s_sub_u32 s42, {32*1280}, s41")
    A(f"v_add_u32 v2, s42, v{vO}"); A(f"v_add_u32 v{vO}, s41, v{vO}")
    A(f"v_add_u32 v7, {4*1280}, v{vO}"); A(f"v_add_u32 v3, {4*1280}, v2")
    atd = [[f"s_add_u32 m0, s58, {1024*j}", f"s_add_u32 s42, s57, {8*OPT['rs']*j}", f"buffer_load_dwordx4 v22, {s(SS,4)}, s42 offen sc1 lds"] for j in range(4)]
    atr = [[f"ds_read_b64_tr_b16 {v(vAt+8*P+2*qd,2)}, v23 offset:{2048*(qd//2)+512*(qd%2)}" for qd in range(4)] + (["v_xor_b32 v23, 64, v23"] if P == 0 else []) for P in range(2)]
    if OPT["pre"]:
        poll(A, 20, S_WS, 1, "0xffff", vt=6, sleep=3)
        flat(atd)
        A("s_waitcnt vmcnt(0)")
        flat(atr)
        A("s_waitcnt lgkmcnt(0)")
    if OPT["fst"] == 3: stamp(A, 1)
    A("s_cmp_lg_u32 s40, 0"); A("s_cbranch_scc1 F_go")
    A("s_mov_b64 exec, 1")
    if OPT["fp"]: fpoll(A, 21, S_WS, 8, 60, OPT["fp"], OPT["gap"])
    else: poll(A, 21, S_WS, 8, 1, vt=6, sleep=OPT["fs"], first_loaded=bool(OPT["ep"]))
    A("s_mov_b64 exec, -1")
    A.label("F_go")
    A("s_barrier")
    stamp(A, 8)
    def odma(gi):
        G = []
        for m in range(5):
            sb = 60+2*(gi%2) if m < 2 else 61+2*(gi%2) if m > 2 else 64+(gi%2)
            pre = [f"s_add_u32 s{sb}, s{sb}, s43"] if (gi >= 2 and m in (0, 2, 3)) else []
            G.append(pre + [f"s_add_u32 m0, s45, {20480*gi + 4096*m}", f"s_add_u32 s42, s{sb}, {4096*m}",
                      f"buffer_load_dwordx4 v{vRd}, {s(SS,4)}, s42 offen sc1 lds"])
        return G
    for g in odma(0) + odma(1)[:2]:
        for l in g: A(l)
    if OPT["gt"]:
        A("s_waitcnt vmcnt(7)")
        for P in range(2):
            b = 64 + 8*P
            A(f"v_add_f32 v{b}, v{b}, v{b+1}"); A(f"v_add_f32 v{b+2}, v{b+2}, v{b+4}"); A(f"v_add_f32 v{b+5}, v{b+5}, v{b+6}")
            A(f"v_add_f32 v{b}, v{b}, v{b+2}"); A(f"v_add_f32 v{b}, v{b}, v{b+5}")
            A(f"v_mul_f32 v{b}, {hex(f2u(-LOG2E))}, v{b}"); A(f"v_exp_f32 v{b}, v{b}"); A(f"v_add_f32 v{b}, 1.0, v{b}"); A(f"v_rcp_f32 v{vGt+P}, v{b}")
    if OPT["fst"] == 1: stamp(A, 1)
    fr = [28, 32, 36, 40, 8, 12, 16, 48, 52, 56, 60][:OPT["nr"]]
    NR = len(fr); LOOK = NR - 2
    seq = [(n, k) for n in range(8) for k in range(10)]
    def rd(i):
        n, k = seq[i]; s_, ph = k % 2, k // 2; r = fr[i % NR]
        if ph < 4: return [f"ds_read_b128 {v(r,4)}, v{vRo} offset:{10240*(n%4) + 512*s_ + 1024*ph}"]
        return [f"ds_read_b64 {v(r+2*c,2)}, v{[24,26][n&1]} offset:{10240*(n%4) + 8192 + 1024*c + 512*s_}" for c in range(2)]
    issued = []; done = [0]
    def issue(i):
        if i == 40:
            for r in (vRo, 24, 26): A(f"v_add_u32 v{r}, 40960, v{r}")
        for l in rd(i):
            A(l); issued.append(i)
    def need_i(i):
        idx = max(j for j, x in enumerate(issued) if x == i)
        if idx >= done[0]:
            n = min(15, len(issued) - 1 - idx)
            A(f"s_waitcnt lgkmcnt({n})"); done[0] = len(issued) - n
    if OPT["two"]: OPT["lp"] = [0,1,2] + [OPT["ls"] + k for k in (0,1,2,3,4, 6,8,10,12,14)]
    if False: pass
    else:
        late = [(g, p) for g, p in zip(odma(1)[2:] + odma(2) + odma(3), OPT["lp"])]
        if not OPT["gt"]: late += [([f"global_load_dword v{vGt+P}, v25, {s(S_WS,2)} sc1"] + (["v_xor_b32 v25, 128, v25"] if P == 0 else []), OPT["lp"][-1]+1+P) for P in range(2)]
        needn = {0: 3, 10: 5, 20: 8, 30: 10, 40: 13, 50: 15, 60: 20}
        if not OPT["pre"]:
            if OPT["fl0"]:
                A(f"global_load_dword v6, v20, {s(S_WS,2)} sc1")
                for n in needn:
                    if n >= 20: needn[n] += 1
            else:
                k = needn[OPT["ca"]] - 7
                late.insert(k, ([f"global_load_dword v6, v20, {s(S_WS,2)} sc1"], late[k-1][1] + 1))
                for n in needn:
                    if n >= OPT["ca"]: needn[n] += 1
    vOm = 160; vT = 96
    def ga(P):
        V = []
        for qd in range(4):
            tm = vT + 16*P + 4*qd; a_ = vAt + 8*P + 2*qd
            V += [f"v_lshlrev_b32 v{tm}, 16, v{a_}", f"v_and_b32 v{tm+1}, 0xffff0000, v{a_}",
                  f"v_lshlrev_b32 v{tm+2}, 16, v{a_+1}", f"v_and_b32 v{tm+3}, 0xffff0000, v{a_+1}"]
            V += [f"v_mul_f32 v{tm+k}, v{tm+k}, v{vGt+P}" for k in range(4)]
        return V
    def fin(P):
        V = []; o = 128 + 8*P
        for qd in range(4):
            tm = vT + 16*P + 4*qd; ac = vAcc + 16*P + 4*qd
            V += [f"v_fmac_f32 v{tm+k}, v{ac+k}, v{vOm+P}" for k in range(4)]
            V += cvt4(tm, o+2*qd)
            if qd & 1 and OPT["full"]: V.append(f"ds_write_b128 v47, {v(o+2*qd-2,4)} offset:{10240*P+16*(qd-1)}")
            elif qd & 1: V.append(f"global_store_dwordx4 v{[vO,47][P]}, {v(o+2*qd-2,4)}, {s(S_OUT,2)} offset:{16*(qd-1)}" + ["", " nt", " sc1", " sc0 sc1"][OPT["ont"]])
        return V
    g0 = ga(0)
    epi = [l for l in g0 if not l.startswith("v_mul")] + ["s_waitcnt vmcnt(0)"] + [f"v_sub_f32 v{vOm+P}, 1.0, v{vGt+P}" for P in range(2)] + [l for l in g0 if l.startswith("v_mul")] + fin(0) + ga(1)
    if OPT["spec"]: epi = [f"v_cmp_u_f32 s[60:61], v{vAcc}, v{vAcc}", "s_lshl_b32 s42, s40, 2", "v_mov_b32 v22, s42", "v_mov_b32 v25, 0"] + epi
    E0 = OPT['e0']
    fl = ["", " nt", " sc1", " sc0 sc1", " sc1 nt"][OPT["ont"]]
    def rd2(P): return [f"ds_read_b128 {v(144+8*P+4*j,4)}, v27 offset:{10240*P+4*272*j}" for j in range(2)]
    def st2(P): return [f"global_store_dwordx4 v{[vO,7,2,3][2*P+j]}, {v(144+8*P+4*j,4)}, {s(S_OUT,2)}{fl}" for j in range(2)]
    nvm = 7 + (1 if (OPT['fl0'] and not OPT['pre']) else 0)
    nxt = 0
    for i in range(80):
        while nxt < 80 and nxt <= i + LOOK and (nxt < 10 or i >= 2) and not (OPT['pw'] and i >= E0 and i % 2 == 1):
            if nxt in needn:
                A(f"s_waitcnt vmcnt({nvm - needn[nxt]})")
                A("s_barrier")
                if OPT["fst"] == 1: stamp(A, min(6, 1 + list(needn).index(nxt)))
                if nxt == OPT["ca"] and not OPT["pre"]:
                    A("v_cmp_le_u32 vcc, 1, v6")
                    A("s_cmp_eq_u32 vcc_lo, -1")
                    A("s_cbranch_scc0 F_slow")
                    A.label("F_at")
                    late += [(g, max(i, late[-1][1]+1 if late else 0)+j) for j, g in enumerate(atd)]
            issue(nxt); nxt += 1
        if not OPT["pre"]:
            if i == E0 - 3:
                A("s_waitcnt vmcnt(0)")
            if i == OPT["fchk"] and OPT["ks"]:
                A("v_or_b32 v21, 8, v21"); A(f"global_load_dwordx2 v[162:163], v21, {s(S_WS,2)} sc1")
            if E0 - 3 <= i < E0 - 1:
                for l in atr[i-(E0-3)]:
                    A(l)
                    if l.startswith("ds_"): issued.append(-1-(i-(E0-3)))
        n, k = seq[i]; s_, ph = k % 2, k // 2
        need_i(min(79, i+1) if (OPT['pw'] and i >= E0 and i % 2 == 0) else i)
        d = v(vAcc + 16*((i%2) if (OPT['alt'] and i < 56) else (n//4)), 16)
        A(f"v_mfma_f32_32x32x16_bf16 {d}, {v(vWf+8*(5*(n%4)+ph)+4*s_,4)}, {v(fr[i%NR],4)}, {'0' if i % 40 == 0 else d}")
        while late and late[0][1] <= i:
            for l in late.pop(0)[0]: A(l)
            nvm += 1
        if i == E0 and not OPT['pre']: need_i(-2)
        if i >= E0 and not OPT['fx'] & 4:
            for _ in range(OPT['epg'] if i < 74 else 5):
                if epi:
                    if epi[0].startswith("ds_"): issued.append(-3)
                    A(epi.pop(0))
        if OPT["full"] and i == OPT["tb"]:
            assert issued.count(-3) == 2
            need_i(-3)
            if not OPT["fx"] & 8: A("s_barrier")
            for l in rd2(0): A(l); issued.append(-4)
        if OPT["full"] and i == OPT["tb"] + 3:
            need_i(-4)
            if not OPT["fx"] & 16:
                for l in st2(0): A(l)
    assert not late
    stamp(A, 9)
    for l in epi + fin(1): A(l)
    sp = OPT["spec"]
    if sp:
        A(f"v_cmp_u_f32 vcc, v{vAcc+16}, v{vAcc+16}")
        A("s_or_b64 vcc, vcc, s[60:61]"); A("s_or_b32 s42, vcc_lo, vcc_hi")
        A("v_mov_b32 v23, s42")
        A("ds_write_b32 v22, v23 offset:40000")
    A("s_waitcnt lgkmcnt(0)"); A("s_barrier")
    for l in rd2(1): A(l)
    if sp: A("ds_read_b128 v[8:11], v25 offset:40000")
    for j, l in enumerate(st2(1)):
        A(f"s_waitcnt lgkmcnt({1-j+sp})"); A(l)
    if sp:
        A("s_waitcnt lgkmcnt(0)")
        A("v_or3_b32 v8, v8, v9, v10"); A("v_or_b32 v8, v8, v11")
        A("v_readfirstlane_b32 s42, v8")
        if OPT["ks"]:
            A(f"s_mov_b32 s66, {OPT['spin']}")
            A("s_waitcnt vmcnt(4)")
            A.label("F_fchk")
            A("v_readfirstlane_b32 s44, v162"); A("v_readfirstlane_b32 s45, v163")
            A("s_cmp_ge_u32 s44, 8"); A("s_cbranch_scc1 F_fok")
            A("s_sleep 4")
            A(f"global_load_dwordx2 v[162:163], v21, {s(S_WS,2)} sc1")
            A("s_waitcnt vmcnt(0)")
            A("s_sub_u32 s66, s66, 1"); A("s_cmp_lg_u32 s66, 0"); A("s_cbranch_scc1 F_fchk")
            A.label("F_fok")
            A("s_or_b32 s42, s42, s45")
        A("s_cmp_eq_u32 s42, 0"); A("s_cbranch_scc1 F_end")
        A("s_cmp_lg_u32 s25, 0"); A("s_cbranch_scc1 F_end")
        A(f"s_mov_b32 s25, {8 if OPT['ks'] else 4}")
        A("s_waitcnt vmcnt(0)"); A("s_barrier")
        A("s_branch F_redo")
        A.label("F_end")
    if OPT["endw"] and gen.STAMPS: A("s_waitcnt vmcnt(0)")
    if OPT["hold"]:
        if OPT["dith"]:
            A("s_lshr_b32 s60, s68, 12"); A("s_mul_i32 s60, s60, 0x9E3779B1"); A("s_lshr_b32 s60, s60, 16"); A("s_mul_i32 s60, s60, 10000"); A("s_lshr_b32 s60, s60, 16")
            A("s_add_u32 s68, s68, s60"); A("s_mul_i32 s60, s25, 2500"); A("s_add_u32 s68, s68, s60")
        A(f"s_add_u32 s68, s68, {OPT['hold']}")
        A.label("F_hold")
        A("s_memrealtime s[60:61]"); A("s_waitcnt lgkmcnt(0)")
        A("s_sub_u32 s60, s60, s68"); A("s_cmp_lt_i32 s60, 0"); A("s_cbranch_scc1 F_hold")
    endpgm(A)
    if not OPT["pre"]:
        A.label("F_slow")
        if OPT["fst"] == 1: stamp(A, 7)
        poll(A, 20, S_WS, 1, "0xffff", vt=6, sleep=2)
        A("s_branch F_at")

def unpack(lines):
    out = []
    def half(op, hi):
        m = re.match(r"([vs])\[(\d+):(\d+)\]", op)
        return f"{m.group(1)}{int(m.group(2))+hi}"
    for l in lines:
        if not l.startswith("v_pk_"):
            out.append(l); continue
        i = Ins(l); n = len(i.ops) - 1
        def mod(name, dflt):
            m = re.search(name + r":\[([01,]+)\]", i.mods)
            return [int(x) for x in m.group(1).split(",")] if m else [dflt]*n
        sel, selh, nl, nh = mod("op_sel", 0), mod("op_sel_hi", 1), mod("neg_lo", 0), mod("neg_hi", 0)
        if i.op == "v_pk_mov_b32":
            out += [f"v_mov_b32 {half(i.ops[0],0)}, {half(i.ops[1],sel[0])}", f"v_mov_b32 {half(i.ops[0],1)}, {half(i.ops[2],sel[1])}"]
            continue
        base = {"v_pk_mul_f32": "v_mul_f32", "v_pk_add_f32": "v_add_f32", "v_pk_fma_f32": "v_fma_f32"}[i.op]
        two = []
        for hi, (se, ng) in enumerate(((sel, nl), (selh, nh))):
            srcs = [half(i.ops[1+k], se[k]) for k in range(n)]
            if n == 2:
                if base == "v_add_f32" and ng[1] and not ng[0]:
                    two.append(f"v_sub_f32 {half(i.ops[0],hi)}, {srcs[0]}, {srcs[1]}"); continue
                assert not any(ng)
                if srcs[1].startswith("s"): srcs = srcs[::-1]
            else:
                srcs = [("-" if ng[k] else "") + srcs[k] for k in range(n)]
            two.append(f"{base} {half(i.ops[0],hi)}, " + ", ".join(srcs))
        assert not (Ins(two[0]).w & Ins(two[1]).r), l
        out += two
    return out

def build(path):
    _lab[0] = 0
    A = Asm(); prologue(A)
    if OPT["hold"] and not gen.STAMPS: A("s_memrealtime s[68:69]")
    if OPT["nq"]:
        A("s_cmp_ge_u32 s2, 448"); A("s_cbranch_scc1 X_exit")
        A("s_lshr_b32 s3, s2, 4"); A("s_and_b32 s3, s3, 28"); A("s_lshr_b32 s3, 0x7462310, s3"); A("s_and_b32 s3, s3, 7"); A("s_lshl_b32 s3, s3, 6")
        A("s_andn2_b32 s2, s2, 0x1c0"); A("s_or_b32 s2, s2, s3")
        if gen.STAMPS: A("s_mov_b32 s67, s2")
    if OPT["rm"]:
        A("s_lshr_b32 s3, s2, 4"); A("s_and_b32 s3, s3, 28"); A("s_lshr_b32 s3, 0x72546310, s3"); A("s_and_b32 s3, s3, 7"); A("s_lshl_b32 s3, s3, 6")
        A("s_andn2_b32 s2, s2, 0x1c0"); A("s_or_b32 s2, s2, s3")
        if gen.STAMPS: A("s_mov_b32 s67, s2")
    A("s_sub_u32 s3, s2, 192"); A("s_cmp_ge_u32 s3, 16"); A("s_cbranch_scc1 nocpf")
    A("s_getpc_b64 s[44:45]")
    A("s_and_b32 s3, s3, 8"); A("s_lshl_b32 s3, s3, 12")
    A("v_lshl_add_u32 v3, v0, 7, s3")
    A("s_and_b32 s44, s44, 0xffffff00")
    A("v_min_u32 v3, X_exit-KERNEL, v3")
    A("global_load_dword v128, v3, s[44:45]")
    A.label("nocpf")
    A("v_and_b32 v1, 63, v0")
    A("v_lshrrev_b32 v2, 6, v0")
    A("v_readfirstlane_b32 s40, v2")
    A("s_and_b32 s6, s2, 7"); A("s_lshr_b32 s7, s2, 3")
    A("s_cmp_lt_u32 s2, 256"); A("s_cbranch_scc1 notA")
    A("s_setprio 3")
    A("s_cmp_ge_u32 s2, " + str({0: 512, 1: 0}.get(OPT["noA"], 512))); A("s_cbranch_scc1 X_exit")
    if OPT["noA"] == 2: A("s_cmp_lt_u32 s2, 448"); A("s_cbranch_scc1 X_exit")
    if OPT['nq']:
        A("s_lshr_b32 s60, s40, 1"); A("s_add_u32 s60, s60, 1"); A("s_and_b32 s43, s40, 1")
        A("s_lshl_b32 s42, s2, 1"); A("s_add_u32 s42, s42, s43")
        A("s_xor_b32 s43, s2, 448"); A("s_lshl_b32 s43, s43, 2"); A("s_add_u32 s43, s43, s40")
        A("s_cmp_ge_u32 s2, 384"); A("s_cselect_b32 s60, 0, s60"); A("s_cselect_b32 s41, s43, s42")
    else:
        A("s_lshr_b32 s60, s40, 1"); A("s_add_u32 s60, s60, 1"); A("s_and_b32 s43, s40, 1")
        A("s_lshl_b32 s42, s2, 1"); A("s_sub_u32 s42, s42, 256"); A("s_add_u32 s42, s42, s43")
        A("s_lshl_b32 s43, s2, 2"); A(f"s_sub_u32 s43, s43, {4*448}"); A("s_add_u32 s43, s43, s40")
        A("s_cmp_ge_u32 s2, 448"); A("s_cselect_b32 s60, 0, s60"); A("s_cselect_b32 s41, s43, s42")
    A_head(A)
    A.label("notA")
    if OPT["onlyA4"]: A("s_endpgm")
    A("s_cmp_lt_u32 s2, 192"); A("s_cbranch_scc1 isG")
    A("s_setprio 2")
    A("s_sub_u32 s5, s2, 192")
    A("s_cmp_eq_u32 s40, 3"); A("s_cbranch_scc1 notG")
    T_head(A, 5)
    A.label("isG")
    if OPT["noQ"]: A("s_cmp_ge_u32 s2, 128"); A("s_cbranch_scc1 X_exit")
    A("s_cmp_ge_u32 s2, 128"); A("s_cselect_b32 s63, 1, 0")
    A("s_and_b32 s41, s7, 3"); A("s_and_b32 s3, s6, 3"); A("s_lshl_b32 s3, s3, 2"); A("s_add_u32 s3, s3, s41")
    A("s_lshr_b32 s42, s7, 2")
    A("s_lshr_b32 s43, s6, 2"); A("s_sub_u32 s44, 2, s63"); A("s_lshl_b32 s43, s43, s44")
    A("s_and_b32 s4, s42, 3"); A("s_add_u32 s4, s4, s43")
    if OPT["grp"]:
        R1 = OPT["r1"]; R2 = 10 - R1
        A("s_add_u32 s5, s42, s41"); A("s_and_b32 s41, s6, 3"); A("s_add_u32 s5, s5, s41")
        A("s_lshr_b32 s41, s6, 2"); A("s_lshl_b32 s41, s41, 1"); A("s_add_u32 s5, s5, s41")
        def rotm(R, base, dst):
            mul = -(-256 // R)
            assert all((e*mul >> 8) == e // R for e in range(14))
            A(f"s_mul_i32 s41, s5, {mul}"); A("s_lshr_b32 s41, s41, 8"); A(f"s_mul_i32 s41, s41, {R}"); A("s_sub_u32 s41, s5, s41")
            A("s_lshl_b32 s41, s41, 2")
            pat = sum((base + k % R) << (4*k) for k in range(2*R-1))
            A(f"s_mov_b32 s{dst}, {hex(pat & 0xffffffff)}"); A(f"s_mov_b32 s{dst+1}, {hex(pat >> 32)}")
            A(f"s_lshr_b64 s[{dst}:{dst+1}], s[{dst}:{dst+1}], s41"); A(f"s_and_b32 s{dst}, s{dst}, {hex((1 << 4*R) - 1)}")
        if OPT["g3"]:
            rotm(3, 2, 64)
            A("s_lshl_b32 s64, s64, 8"); A("s_bitcmp1_b32 s5, 0"); A("s_cselect_b32 s41, 1, 16"); A("s_or_b32 s64, s64, s41")
        else: rotm(R1, 0, 64)
        if OPT["rev"]:
            A("s_and_b32 s41, s7, 3"); A("s_sub_u32 s5, s5, s41"); A(f"s_add_u32 s41, s41, {OPT['rev']}"); A("s_and_b32 s41, s41, 3"); A("s_add_u32 s5, s5, s41")
            rotm(R2, R1, 60)
        elif R1 == 5: A("s_add_u32 s60, s64, 0x55555")
        else: rotm(R2, R1, 60)
        A(f"s_lshr_b32 s65, s60, {32 - 4*R1}"); A(f"s_lshl_b32 s60, s60, {4*R1}"); A("s_or_b32 s64, s64, s60")
    else:
        A("s_mul_i32 s41, s41, 5"); A("s_add_u32 s41, s41, 1"); A("s_lshr_b32 s41, s41, 1")
        A("s_lshl_b32 s5, s42, 1"); A("s_add_u32 s5, s5, s41")
        A("s_and_b32 s41, s6, 3"); A("s_add_u32 s5, s5, s41"); A("s_lshr_b32 s41, s6, 2"); A("s_add_u32 s5, s5, s41")
        A("s_cmp_ge_u32 s5, 20"); A("s_cselect_b32 s41, 10, 0"); A("s_sub_u32 s5, s5, s41")
        A("s_cmp_ge_u32 s5, 10"); A("s_cselect_b32 s41, 10, 0"); A("s_sub_u32 s5, s5, s41")
        A("s_lshl_b32 s5, s5, 2")
        A("s_mov_b32 s64, 0x76543210"); A("s_mov_b32 s65, 0x98")
        A("s_sub_u32 s41, 40, s5"); A("s_lshl_b64 s[60:61], s[64:65], s41"); A("s_lshr_b64 s[64:65], s[64:65], s5"); A("s_or_b64 s[64:65], s[64:65], s[60:61]")
    A("s_setprio 2")
    G_start(A, 3, 4, 63, 5)
    A("s_cmp_eq_u32 s63, 1"); A("s_cbranch_scc1 Q_comp")
    G_compute(A, False, 3, 4, 5, "KV")
    A.label("Q_comp")
    G_compute(A, True, 3, 4, 5, "Q")
    A.label("notG")
    if OPT["noT"]: A("s_branch X_exit")
    T_role(A, 5)
    A("s_cmp_ge_u32 s2, 224"); A("s_cbranch_scc1 T_exit")
    A("s_sub_u32 s24, s2, 64"); A("s_mov_b32 s25, 0")
    A.label("F_redo")
    A("s_mov_b32 s10, 0"); A("v_mov_b32 v63, 0")
    F_pre(A, 24)
    for g in wo_dma(0) + wo_dma(1) + wo_dma(2) + wo_dma(3):
        for l in g: A(l)
    A("s_waitcnt vmcnt(5)"); A("s_barrier")
    for j in range(3):
        for l in wo_read(j, [234, 235, 236, 237]): A(l)
    A("s_waitcnt lgkmcnt(0)"); A("s_barrier")
    A.label("F_entry")
    F_role(A)
    A.label("T_exit")
    A("s_sub_u32 s41, s7, 28"); A("s_mul_i32 s41, s41, 160")
    A("v_lshrrev_b32 v2, 1, v0"); A("v_and_b32 v3, 1, v0"); A("v_add_u32 v2, s41, v2")
    A("v_mul_u32_u24 v2, 1280, v2"); A("v_lshl_add_u32 v2, v3, 7, v2")
    A(f"global_load_dword v4, v2, {s(S_WO,2)}")
    A(f"v_add_u32 v2, {32*1280}, v2")
    A("s_cmp_lt_u32 s40, 3"); A("s_cbranch_scc1 T_exit2")
    A(f"global_load_dword v5, v2, {s(S_WO,2)}")
    A.label("T_exit2")
    endpgm(A)
    A_chan(A)
    A.label("X_exit"); A("s_endpgm")
    kn = NAME + "_kernel"
    if OPT["nopk"]:
        if OPT["scalar"]: A.lines = unpack(A.lines)
        else:
            p0 = A.lines.index("A_pass:"); p1 = A.lines.index("s_cbranch_scc1 A_pass")
            A.lines = unpack(A.lines[:p0]) + A.lines[p0:p1] + unpack(A.lines[p1:])
    A.lines = [l.replace("CODE_END_OFF", f"X_exit-{kn}").replace("KERNEL", kn) for l in A.lines]
    emit([kernel_text(kn, A, 256)], [(kn, 448 if OPT['nq'] else 512, 256, LDS)], path)

if __name__ == "__main__":
    for a in sys.argv[1:]:
        k, val = a.split("="); OPT[k] = int(val)
    build("u.s"); gen.STAMPS = True; build("us.s")
```

```python
import sys, gen, re
from gen import *
from genG import srd, setexec
from g2 import phi4, cvt4

FULL = (1<<64)-1
KVH = 1680
KVG = 6784
CSH = int([a.split("=")[1] for a in sys.argv if a.startswith("csh=")][0]) if any(a.startswith("csh=") for a in sys.argv) else 8
WS_CQ = WS_KV + 8*KVG
WS_CF = WS_CQ + (64<<CSH)
WS_CA = WS_CF + (160<<CSH)
WS_FA = WS_CA
WS_CP = 0x680000
WS_UH = WS_CP + 200*256
WS_C2 = WS_FA + 324*128
ZPW = (8*KVG + (224<<CSH) + 328*128) // 8
WS_UT = 0 if 'al=1' in sys.argv else 0x900000
WSZ = 0xC00000
LDS = 81920
SPIN = 300000
OPT = dict(codepf=False, rot=2, l2pf=False, tpf=3, nopk=1, ra=0, flp=-1, ep2=5, epx=74, mg=0, hk=0, lu=1, wop=0, sa=0, qd=1, gt=1, al=1, ex=0, mo=0, nq=0, pl=0, g3=0, pw=1, uh=448, oo=1, ov=1, tmg=1, kw=8, wd=1333, a4w=0, ep=0, pft=1, pfe=3, rm=0, xthr=0, finl=1, fchk=67, ks=1, kforce=0, t3=0, bal=0, tm=0, l2p=0, rev=1, wnt=0, tfix=1, a4d=0, sst=0, sig4=0, safe0=0, dith=0, sp=3, two=2, ls=10, w1=6, w1c=20, nb=4, cw=1, dofs=1, rc=1, peel=1, wb=3, kg=1, onlyA4=0, conv=0, ue=1, b0=2, a4t=1, noQ=0, fl0=0, py=0, la=2, spec=1, force=0, pre=0, ca=30, wsig=1, ast=0, lp=[0,1,2,3,5,7,9,11,13,15,17,19,21], aprio=1, epg=4, tb=76, fp=0, qs=2, e0=60, fs=1, gap=2, nq0=5, twait=0, wfirst=0, r1=5, pk=0, pq=0, full=1, endw=1, hold=0, tp=0, cadir=0, fx=0, alt=0, nr=7, ont=2, rs=4352, tw=0, gst=0, rtail=2, early=0, grp=1, thr=3, big=0, cut=0, dry=0, fst=0, osc1=1, nt=4, noA=0, noT=0, spin=300000, tdelay=0, scalar=True, sleep=2)

_lab = [0]
def poll(A, vaddr, sbase, vexp, mask, vt=2, first_loaded=False, sleep=None, cmp='le', spin=None):
    _lab[0] += 1; L = f"poll{_lab[0]}"
    A(f"s_mov_b32 s66, {spin or OPT['spin']}")
    if first_loaded: A(f"s_branch {L}c")
    A.label(L)
    A(f"global_load_dword v{vt}, v{vaddr}, {s(sbase,2)} sc1")
    A.label(L + "c")
    A("s_waitcnt vmcnt(0)")
    A(f"v_cmp_{cmp}_u32 vcc, {vexp}, v{vt}")
    A(f"s_and_b32 vcc_lo, vcc_lo, {mask}")
    A(f"s_cmp_eq_u32 vcc_lo, {mask}")
    A(f"s_cbranch_scc1 {L}d")
    A(f"s_sleep {sleep or OPT['sleep']}")
    A("s_sub_u32 s66, s66, 1")
    A("s_cmp_lg_u32 s66, 0")
    A(f"s_cbranch_scc1 {L}")
    A.label(L + "d")

def fpoll(A, vaddr, sbase, exp, vt, depth=3, gap=2):
    _lab[0] += 1; L = f"fp{_lab[0]}"
    A(f"s_mov_b32 s66, {OPT['spin']}")
    for k in range(depth-1):
        A(f"global_load_dword v{vt+k}, v{vaddr}, {s(sbase,2)} sc1"); A(f"s_sleep {gap}")
    A.label(L)
    for k in range(depth):
        A(f"global_load_dword v{vt+(k+depth-1)%depth}, v{vaddr}, {s(sbase,2)} sc1")
        A(f"s_waitcnt vmcnt({depth-1})")
        A(f"v_cmp_le_u32 vcc, {exp}, v{vt+k}")
        A(f"s_cbranch_vccnz {L}d")
        A(f"s_sleep {gap}")
    A("s_sub_u32 s66, s66, 1"); A("s_cmp_lg_u32 s66, 0"); A(f"s_cbranch_scc1 {L}")
    A.label(L + "d")

def signal(A, soff, base=S_WS, va=3, vd=2, val="1"):
    A("s_mov_b64 exec, 1")
    A(f"v_mov_b32 v{va}, s{soff}")
    A(f"v_mov_b32 v{vd}, {val}")
    A(f"global_atomic_add v{va}, v{vd}, {s(base,2)} sc1")
    A("s_mov_b64 exec, -1")

def lsignal(A, soff, base, val, total, flagoff, va=3, vd=2, fbase=None, hint=None):
    _lab[0] += 1; L = f"ls{_lab[0]}"
    A("s_mov_b64 exec, 1")
    A(f"v_mov_b32 v{va}, {soff}")
    A(f"v_mov_b32 v{vd}, {val}")
    A(f"global_atomic_add v{vd+2}, v{va}, v{vd}, {s(base,2)} sc0 sc1")
    A(f"v_add_u32 v{va}, {flagoff}, v{va}" if fbase is None else f"v_mov_b32 v{va}, {flagoff}")
    A("s_waitcnt vmcnt(0)")
    A(f"v_add_u32 v{vd+2}, v{vd+2}, v{vd}")
    A(f"v_cmp_eq_u32 vcc, {total}, v{vd+2}")
    A("s_and_b64 exec, exec, vcc")
    A(f"s_cbranch_execz {L}")
    A(f"global_store_dword v{va}, v{vd}, {s(base if fbase is None else fbase,2)} sc1")
    if hint:
        A(f"v_mov_b32 v{vd+2}, {hint}"); A("s_waitcnt vmcnt(0)")
        A(f"global_atomic_add v{vd+2}, v{vd}, {s(S_WS,2)} sc1")
    A.label(L)
    A("s_mov_b64 exec, -1")

def pflag(A, va, vd):
    A("s_lshl_b32 s58, s2, 8"); A(f"s_add_u32 s58, s58, {WS_CP}")
    A(f"v_mov_b32 v{va}, s58"); A(f"v_mov_b32 v{vd}, 1")
    A("s_mov_b64 exec, 1")
    A(f"global_atomic_add v{va}, v{vd}, {s(S_WS,2)} sc1")
    A("s_mov_b64 exec, -1")

def msignal(A, vaddr, nl, vd=2):
    A(f"v_mov_b32 v{vd}, 1")
    A(f"s_mov_b64 exec, {(1<<nl)-1}")
    A(f"global_atomic_add v{vaddr}, v{vd}, {s(S_WS,2)} sc1")
    A("s_mov_b64 exec, -1")

def spread(A, ms, fl, lead=0, tail=0):
    n = len(ms) - lead - tail
    for k, m_ in enumerate(ms):
        A(m_)
        kk = k - lead
        if 0 <= kk < n:
            for g in fl[(kk*len(fl))//n : ((kk+1)*len(fl))//n]:
                for l in ([g] if isinstance(g, str) else g): A(l)

G_X = 0; G_W = 32768; G_WS = 10240; G_GW = G_W + 4*G_WS
sKx, sKw, sMx, sMw = 43, 44, 46, 47
SX, SWq = 48, 52
vXA, vWA = 8, 12
def dmaX(j, slot):
    return [f"s_add_u32 m0, s{sMx}, {G_X + 16384*slot + 4096*j}", f"buffer_load_dwordx4 v{vXA+j}, {s(SX,4)}, s{sKx} offen lds"]
def dmaW(m, slot):
    return [f"s_add_u32 m0, s{sMw}, {2*G_WS*slot + 4096*m}", f"buffer_load_dwordx4 v{vWA+m}, {s(SWq,4)}, s{sKw} offen lds"]
sTab = 64
advK = [f"s_and_b32 s{sKw}, s{sTab}, 15", f"s_lshr_b64 s[{sTab}:{sTab+1}], s[{sTab}:{sTab+1}], 4",
        f"s_lshl_b32 s{sKx}, s{sKw}, 7", f"s_mul_i32 s{sKw}, s{sKw}, {64*3840}"]
def dma_even(slot): return [dmaX(0,slot), dmaW(0,slot), dmaX(1,slot), dmaW(1,slot), dmaX(2,slot)]
def dma_odd(slot): return [dmaW(2,slot), dmaX(3,slot), dmaW(3,slot), dmaW(4,slot) + advK]

def ntify(A, n0, n1=None):
    A.lines[n0:n1] = [(l.replace(" lds", " nt lds") if l.endswith(" lds") else l + " nt") if (l.startswith(("buffer_load", "global_load")) and "sc1" not in l) else l for l in A.lines[n0:n1]]

def G_start(A, sRB, sCG, sQ, sRot):
    n0 = len(A.lines)
    A("v_lshrrev_b32 v3, 3, v1")
    A("v_and_b32 v4, 7, v1")
    A("v_lshrrev_b32 v5, 4, v1")
    A("v_xor_b32 v4, v4, v5")
    A("v_mul_u32_u24 v3, 1280, v3")
    A("v_lshl_add_u32 v6, v4, 4, v3")
    A("s_and_b32 s57, s40, 1"); A("s_lshr_b32 s56, s40, 1")
    A("s_lshl_b32 s41, s57, 6"); A(f"s_mul_i32 s58, s57, {8*1280}")
    A("v_xor_b32 v6, s41, v6")
    A("s_mov_b32 s42, 0") if OPT["gt"] else A(f"s_and_b32 s42, s{sCG}, s{sQ}")
    A("s_xor_b32 s42, s42, s56")
    A(f"s_mul_i32 s41, s{sRB}, {128*1280}"); A("s_add_u32 s41, s41, s58")
    for j in range(4):
        A(f"s_xor_b32 s58, s42, {2*j}")
        A(f"s_mul_i32 s58, s58, {16*1280}")
        A("s_add_u32 s58, s58, s41")
        A(f"v_add_u32 v{vXA+j}, s58, v6")
    A(f"s_lshl_b32 s{sMx}, s40, 10"); A(f"s_add_u32 s{sMw}, s{sMx}, {G_W}")
    A(f"s_mov_b64 s[60:61], s[{sTab}:{sTab+1}]")
    for l in advK: A(l)
    wf = OPT["wfirst"]
    def xs():
        srd(A, SX, S_U, 2048*1280)
        if OPT["qd"]: A(f"s_cmp_eq_u32 s{sQ}, 1"); A("s_cbranch_scc1 G_nx")
        for j in range(4):
            for l in dmaX(j, 0): A(l)
        if OPT["qd"]: A.label("G_nx")
    if not wf:
        if OPT["sst"]: stamp(A, 7)
        A("s_waitcnt lgkmcnt(0)")
        if OPT["sst"]: stamp(A, 8)
        if not OPT['gt']:
            A(f"s_cmp_eq_u32 s{sQ}, 0"); A("s_cbranch_scc1 G_nogl")
            A("v_min_u32 v40, 79, v0")
            A("v_lshrrev_b32 v41, 3, v40"); A("v_lshlrev_b32 v41, 2, v41")
            A("v_lshrrev_b64 v[42:43], v41, s[60:61]")
            A("v_and_b32 v42, 15, v42"); A("v_and_b32 v40, 7, v40")
            A("v_lshlrev_b32 v40, 4, v40"); A("v_lshl_add_u32 v40, v42, 7, v40")
            A(f"global_load_dwordx4 v[24:27], v40, {s(S_GW,2)}")
            A.label("G_nogl")
        xs()
        srd(A, SWq, S_WQKV, 640*3840)
    A(f"s_cmp_eq_u32 s{sQ}, 1")
    A(f"s_cselect_b32 s59, 0, 1280"); A(f"s_cselect_b32 s62, 0, 1120"); A(f"s_lshl_b32 s58, 160, s{sQ}")
    A(f"s_mul_i32 s58, s58, s{sCG}"); A("s_add_u32 s58, s58, s59")
    A("v_mov_b32 v7, s62")
    for m in range(5):
        if m: A(f"v_add_u32 v3, {256*m}, v0")
        src = "v3" if m else "v0"
        A(f"v_mul_u32_u24 v4, 3277, {src}")
        A("v_lshrrev_b32 v4, 16, v4")
        A("v_mul_u32_u24 v5, 20, v4")
        A(f"v_sub_u32 v3, {src}, v5")
        A("v_lshrrev_b32 v5, 2, v4")
        A("v_and_b32 v5, 2, v5")
        A("v_xor_b32 v3, v3, v5")
        A("v_cmp_lt_u32 vcc, 9, v3")
        A("v_mul_u32_u24 v4, 3840, v4")
        A("v_lshl_add_u32 v4, v3, 4, v4")
        A("v_cndmask_b32 v5, 0, v7, vcc")
        A(f"v_add3_u32 v{vWA+m}, v4, v5, s58")
        if not wf:
            if OPT["qd"]: A(f"s_cmp_eq_u32 s{sQ}, 1"); A(f"s_cbranch_scc1 G_nw{m}")
            for l in dmaW(m, 0): A(l)
            if OPT["qd"]: A.label(f"G_nw{m}")
    if wf:
        A("s_waitcnt lgkmcnt(0)")
        if not OPT['gt']:
            A(f"s_cmp_eq_u32 s{sQ}, 0"); A("s_cbranch_scc1 G_nogl")
            A("v_min_u32 v40, 79, v0")
            A("v_lshrrev_b32 v41, 3, v40"); A("v_lshlrev_b32 v41, 2, v41")
            A("v_lshrrev_b64 v[42:43], v41, s[60:61]")
            A("v_and_b32 v42, 15, v42"); A("v_and_b32 v40, 7, v40")
            A("v_lshlrev_b32 v40, 4, v40"); A("v_lshl_add_u32 v40, v42, 7, v40")
            A(f"global_load_dwordx4 v[24:27], v40, {s(S_GW,2)}")
            A.label("G_nogl")
        srd(A, SWq, S_WQKV, 640*3840)
        for l in dmaW(2, 0): A(l)
        A(f"s_bitcmp1_b32 s{sRB}, {1 if OPT['g3'] else 0}"); A("s_cbranch_scc1 G_desc")
        for m in (0, 1):
            for l in dmaW(m, 0): A(l)
        A.label("G_desc")
        for m in (3, 4):
            for l in dmaW(m, 0): A(l)
        A(f"s_bitcmp1_b32 s{sRB}, {1 if OPT['g3'] else 0}"); A("s_cbranch_scc0 G_asc")
        for m in (0, 1):
            for l in dmaW(m, 0): A(l)
        A.label("G_asc")
        xs()
    if not OPT["qd"]:
        for l in advK: A(l)
    if OPT["sst"]: stamp(A, 9)

def G_compute(A, q, sRB, sCG, sRot, L):
    qg = q and not OPT['gt']
    sW, sT, sT2, sRH, sCH, sCnt = 40, 41, 42, 56, 57, 45
    vRA = 2; vRB = 17; vGA = 22; vGF = 24; vGacc = 32; vB = 36; vA = 76; vAcc = 140
    A(f"v_and_b32 v42, 15, v1")
    A(f"v_lshrrev_b32 v43, 4, v1")
    A(f"v_lshrrev_b32 v44, 1, v42")
    A(f"v_xor_b32 v44, v44, v43")
    A(f"v_lshlrev_b32 v45, 7, v42")
    A(f"s_lshl_b32 s{sT}, s{sRH}, 13")
    A(f"v_add_u32 v45, s{sT}, v45")
    A(f"v_lshl_add_u32 v{vRA}, v44, 4, v45")
    A(f"v_xor_b32 v{vRA+1}, 64, v{vRA}")
    A(f"v_lshrrev_b32 v44, 2, v42")
    A(f"v_and_b32 v45, 3, v42")
    A(f"v_lshl_add_u32 v44, v43, 3, v44")
    A(f"v_mul_u32_u24 v44, 320, v44")
    A(f"v_add_u32 v44, {G_W}, v44")
    A(f"v_and_b32 v46, 1, v43"); A(f"v_lshlrev_b32 v46, 5, v46")
    A(f"s_mul_i32 s{sT}, s{sCH}, {160 if q else 80}")
    toff = [0, 40, 80, 120] if q else [0, 40, 160, 200]
    for t in range(5):
        if t < 4:
            A(f"s_add_u32 s{sT2}, s{sT}, {toff[t]}")
            A(f"v_lshl_add_u32 v47, v45, 3, s{sT2}")
        else:
            A(f"s_add_u32 s{sT2}, s{sT}, 32")
            A(f"v_mul_u32_u24 v47, 40, v45")
            if not q:
                A(f"v_lshrrev_b32 v48, 1, v45"); A(f"v_mul_u32_u24 v48, 80, v48"); A(f"v_add_u32 v47, v47, v48")
            A(f"v_add_u32 v47, s{sT2}, v47")
        A(f"v_xor_b32 v47, v47, v46")
        A(f"v_add_u32 v{vRB+t}, v47, v44")
    A("v_mov_b32 v4, 0"); A("v_mov_b32 v5, 0")
    for i in range(0, 80, 2): A(f"v_pk_mov_b32 {v(vAcc+i,2)}, v[4:5], v[4:5]")
    if qg:
        for i in range(0, 4, 2):
            A(f"v_pk_mov_b32 {v(vGacc+i,2)}, v[4:5], v[4:5]"); A(f"v_pk_mov_b32 {v(230+i,2)}, v[4:5], v[4:5]")
        A(f"s_mov_b32 s{sT}, {G_GW}")
        A(f"v_lshl_add_u32 v{vGA}, v43, 4, s{sT}")
        A(f"v_lshlrev_b32 v40, 4, v0")
        A(f"v_add_u32 v40, {G_GW}, v40")
    HS = 6912
    vSt = 236; vMk = 242
    if q:
        A(f"s_lshl_b32 s{sT}, s{sRB}, 1"); A(f"s_add_u32 s{sT}, s{sT}, s{sRH}"); A(f"s_lshl_b32 s{sT}, s{sT}, 2")
        A(f"s_and_b32 s{sT2}, s{sCG}, 1"); A(f"s_add_u32 s{sT2}, s{sT2}, s{sT}"); A(f"s_lshl_b32 s{sT2}, s{sT2}, 6"); A(f"s_add_u32 s{sT2}, s{sT2}, {WS_G}")
        A(f"v_lshl_add_u32 v226, v42, 2, s{sT2}"); A("v_lshrrev_b32 v44, 5, v1"); A("v_lshl_add_u32 v226, v44, 7, v226")
        A(f"s_mul_i32 s{sT2}, s{sCH}, {KVG}")
        A("v_mul_u32_u24 v220, 80, v42"); A(f"v_add_u32 v220, s{sT2}, v220")
        A("v_lshl_add_u32 v221, v43, 4, v220")
        A("v_lshrrev_b32 v44, 2, v42"); A("v_and_b32 v45, 3, v42")
        A(f"v_mul_u32_u24 v222, {KVH}, v44"); A("v_mul_u32_u24 v223, 80, v45")
        A(f"v_add3_u32 v222, v222, v223, s{sT2}"); A("v_lshl_add_u32 v223, v43, 4, v222")
        A(f"v_mul_u32_u24 v224, {KVH}, v45"); A(f"v_add_u32 v224, s{sT2}, v224"); A("v_lshl_add_u32 v225, v43, 4, v224")
        A(f"s_mul_i32 s20, s{sCG}, 10240"); A(f"s_add_u32 s20, s20, {WS_OF}")
        A(f"s_mul_i32 s21, s{sT}, 20480"); A("s_add_u32 s20, s20, s21")
        A(f"s_lshl_b32 s21, s{sCH}, 11"); A("s_add_u32 s21, s21, s20")
        A("v_lshl_add_u32 v46, v1, 4, s21")
        A(f"s_lshl_b32 s21, s{sCH}, 10"); A("s_add_u32 s21, s21, s20"); A("s_add_u32 s21, s21, 8192")
        A("v_lshl_add_u32 v47, v1, 4, s21")
        A(f"s_and_b32 s20, s{sCG}, {0 if OPT['gt'] else 1}"); A("s_lshl_b32 s20, s20, 12"); A("s_sub_u32 s21, 4096, s20")
        for nt in range(4):
            if nt < 2: A(f"v_add_u32 v{vSt+nt}, s{20+nt}, v46")
            else: A(f"v_add_u32 v{vSt+nt}, 40960, v{vSt+nt-2}")
            if nt & 1: A(f"v_add_u32 v{vSt+4+nt//2}, {40960*(nt//2)}, v47")
        mk = [(43, h) for h in range(4)] + [(45, h) for h in range(4)] + [(44, h) for h in range(4)] + [(45, "v43"), (44, "v43")]
        for i, (r, c) in enumerate(mk):
            A(f"v_cmp_eq_u32 s[{20+2*(i%2)}:{21+2*(i%2)}], {c}, v{r}")
            if i: A(f"v_cndmask_b32 v{vMk+i-1}, 0, -1, s[{20+2*((i-1)%2)}:{21+2*((i-1)%2)}]")
        A(f"v_cndmask_b32 v{vMk+13}, 0, -1, s[22:23]")
        A(f"s_lshl_b32 s20, s{sRB}, 2"); A(f"s_add_u32 s20, s20, s{sCG}"); A(f"s_lshl_b32 s20, s20, {CSH}"); A(f"s_add_u32 s20, s20, {WS_CQ}")
        A("v_mov_b32 v227, s20")
        A(f"s_mul_i32 s20, s{sT}, {(5<<CSH)//4}"); A(f"s_add_u32 s20, s20, {WS_CF}")
        A(f"v_lshl_add_u32 v228, v1, {CSH}, s20")
        A("v_lshlrev_b32 v229, 4, v1")
    if not q:
        A("s_mov_b32 s24, s2"); A("s_mov_b32 s25, 0"); A("s_mov_b32 s10, 0")
        F_pre(A, 2)
        A(f"s_mul_i32 s{sT}, s{sRH}, {HS}"); A(f"s_mul_i32 s{sT2}, s{sCH}, {2*KVH}"); A(f"s_add_u32 s{sT}, s{sT}, s{sT2}"); A(f"s_add_u32 s{sT}, s{sT}, 61440")
        A("v_mul_u32_u24 v224, 80, v42"); A(f"v_add_u32 v224, s{sT}, v224")
        A("v_lshl_add_u32 v225, v43, 4, v224")
        A(f"v_mul_u32_u24 v228, {KVH}, v43")
        A("v_add_u32 v224, v224, v228")
        A("v_and_b32 v226, 3, v42"); A("v_add_u32 v226, 16, v226")
        A("v_cmp_eq_u32 vcc, 0, v42"); A("v_mov_b32 v227, 20"); A("v_cndmask_b32 v226, v226, v227, vcc")
        A("v_mul_u32_u24 v226, 80, v226"); A(f"v_add_u32 v226, s{sT}, v226")
        A("v_lshl_add_u32 v227, v43, 4, v226")
        A("v_add_u32 v228, v228, v226")
        A("v_lshlrev_b32 v229, 2, v0")
        A(f"s_mul_i32 s{sT}, s{sCG}, {KVG}"); A(f"s_add_u32 s{sT}, s{sT}, {WS_KV}")
        A(f"v_add_u32 v230, s{sT}, v229"); A("v_add_u32 v231, 4096, v230"); A("v_add_u32 v229, 61440, v229")
        A("v_mov_b32 v232, 0x3f803f80")
        if OPT["sa"]:
            A(f"v_cmp_le_u32 vcc, {420-256}, v0"); A("v_mov_b32 v238, 1680"); A("v_cndmask_b32 v238, 0, v238, vcc")
            A("v_add_u32 v239, v238, v230"); A("v_add_u32 v238, v238, v229")
            A(f"v_cmp_gt_u32 vcc, {840-768}, v0"); A("s_mov_b64 s[8:9], vcc")
        A("s_mov_b32 s22, 0xffff0000"); A("s_mov_b32 s23, 0")
    A("s_lshl_b32 s60, s2, 8"); A(f"s_add_u32 s60, s60, {WS_CP}")
    if OPT["nq"] and not q:
        A("v_mov_b32 v233, s60"); A("s_cmp_lt_u32 s2, 64"); A("s_cselect_b32 s61, 0x10000, 0"); A("s_add_u32 s60, s60, s61")
    A("v_mov_b32 v4, s60"); A("v_mov_b32 v5, 1"); A("v_mov_b32 v6, 0")
    A(f"s_mov_b32 s60, {hex(f2u(LOG2E))}"); A(f"s_mov_b32 s61, {hex(f2u(LOG2E))}")
    A(f"s_mov_b32 s62, {hex(f2u(1e-6))}")
    order = [0, 1, 4, 2, 3] if q else [4, 2, 3, 0, 1]
    def reads(i):
        bs = vB + 20*(i % 2)
        R = [f"ds_read_b64_tr_b16 {v(bs+4*t+2*h,2)}, v{vRB+t} offset:{G_WS*(i%4)+1280*h}" for t in order for h in range(2)]
        RA = []
        if i % 2 == 0:
            j = (i//2) % 2
            RA = [f"ds_read_b128 {v(vA+32*j+16*ks+4*mt,4)}, v{vRA+ks} offset:{G_X+16384*j+2048*mt}" for ks in range(2) for mt in range(4)]
        RG = [f"ds_read_b128 {v(vGF+4*(i%2),4)}, v{vGA} offset:{64*i}"] if qg else []
        if OPT["big"] == 1: R = R + R[:2]
        if OPT["big"] == 2: R = R + R; RA = RA[:4]
        return RA[:4] + R + RG + RA[4:]
    def mfmas(i):
        M = []
        bs = vB + 20*(i % 2); aa = vA + 32*((i//2) % 2) + 16*(i % 2)
        seq_ = [(t, mt) for k, t in enumerate(order) for mt in (range(4) if (k % 2 == 0 or OPT["mo"] != 1) else range(3, -1, -1))]
        if OPT["mo"] == 2: seq_ = seq_[:4] + [(t, mt) for k, mt in enumerate((3, 2, 1, 0)) for t in (order[1:] if k % 2 == 0 else order[:0:-1])]
        for t, mt in seq_:
            if True:
                d = v(vAcc + 20*mt + 4*t, 4)
                x, y = v(aa+4*mt,4), v(bs+4*t,4)
                M.append(f"v_mfma_f32_16x16x32_bf16 {d}, {y}, {x}, {d}" if q else f"v_mfma_f32_16x16x32_bf16 {d}, {x}, {y}, {d}")
        if OPT["big"]:
            M = [f"v_mfma_f32_32x32x16_bf16 {v(vAcc+16*t,16)}, {v(aa+4*k,4)}, {v(bs+4*t,4)}, {v(vAcc+16*t,16)}" for k in range(2) for t in range(5)]
        if qg: M.append(f"v_mfma_f32_16x16x32_bf16 {v(230,4)}, {v(vGF+4*(i%2),4)}, {v(aa+8,4)}, {v(230,4)}")
        if qg: M.append(f"v_mfma_f32_16x16x32_bf16 {v(vGacc,4)}, {v(vGF+4*(i%2),4)}, {v(aa,4)}, {v(vGacc,4)}")
        return M
    def step(i, dma, nwait, last=False, dm=None, latebar=None, fill=None):
        M = mfmas(i)
        if OPT["ex"] == 2 and dma: M = ["s_nop 3"] * len(M)
        NB = OPT["nb"]
        if OPT["cw"]:
            nrd = len(reads(i)); first = (4 if i % 2 == 0 else 0) + 2*((NB+3)//4)
            A(f"s_waitcnt lgkmcnt({nrd - first})")
        else: A("s_waitcnt lgkmcnt(0)")
        for k in range(NB): A(M[k])
        M = [None, None] + M[NB:]
        if not last and latebar is None:
            if nwait is not None: A(f"s_waitcnt vmcnt({nwait})" + (" lgkmcnt(0)" if OPT["cw"] else ""))
            A("s_barrier")
        elif OPT["cw"]:
            A("s_waitcnt lgkmcnt(0)")
            if last and not q: A("s_barrier")
        rd = [] if (last or latebar is not None) else reads(i+1)
        if OPT["ex"] == 1 and dma: rd = ["s_nop 0"] * len(rd)
        if OPT["ex"] == 3 and dma: dm = [["s_nop 0", "s_nop 7"]] * 4
        if dm is None: dm = (dma_even((i//2) % 2) if i % 2 == 0 else dma_odd((i//2) % 2)) if dma else []
        n = len(M) - 2
        nr = n - OPT["rtail"]
        rc = OPT["rc"]
        grp_ = [rd[k:k+rc] for k in range(0, len(rd), rc)]
        for mi in range(n):
            if mi < nr:
                for g_ in grp_[-(-mi*len(grp_)//nr) : -(-(mi+1)*len(grp_)//nr)] if rc > 1 else [rd[(mi*len(rd))//nr : ((mi+1)*len(rd))//nr]]:
                    for l in g_: A(l)
            g = None
            for k in range(len(dm)):
                if mi == (k*n)//len(dm) + OPT['dofs']: g = dm[k]
            if g: A(g[0])
            A(M[2+mi])
            if g:
                for l in g[1:]: A(l)
            elif fill and mi >= 3:
                for _ in range(2): A(fill.pop(0))
        if latebar is not None:
            A(f"s_waitcnt vmcnt({nwait})")
            A("s_barrier")
            for l in reads(i+1): A(l)
            for g in latebar:
                for l in g: A(l)
    if OPT["sst"]: stamp(A, 6)
    pl0 = [(vSt+nt, o_) for nt in range(4) for o_ in (0, 1024)] + [(vSt+4, 0), (vSt+5, 0)]
    if OPT["qd"]:
        if q:
            for i in range(4): A(f"v_mov_b32 v{36+i}, -1")
            for k in range(OPT["qd"] - 1):
                a_, o_ = pl0.pop()
                A(f"global_store_dwordx4 v{a_}, v[36:39], {s(S_WS,2)} offset:{o_} sc1")
            A("s_waitcnt vmcnt(0)")
            for g in [dmaX(j, 0) for j in range(4)] + [dmaW(m, 0) for m in range(5)]:
                for l in g: A(l)
        for l in advK: A(l)
    for g in dma_even(1) + ([] if OPT["early"] else dma_odd(1)):
        for l in g: A(l)
    stamp(A, 1)
    nb = 5 if OPT["early"] else 9
    if qg:
        A(f"v_cmp_gt_u32 vcc, 80, v0")
        A(f"s_waitcnt vmcnt(18)")
        A(f"s_and_saveexec_b64 s[58:59], vcc")
        A(f"ds_write_b128 v40, {v(vGF,4)}")
        A(f"s_mov_b64 exec, -1")
    A(f"s_waitcnt vmcnt({5 if OPT['early'] else 9 if OPT['wfirst'] else 11}) lgkmcnt(0)")
    A("s_barrier")
    stamp(A, 2)
    if OPT["sst"]: endpgm(A)
    for l in reads(0): A(l)
    A(f"s_mov_b32 s{sCnt}, 4")
    if OPT["early"]:
        step(0, True, None, dm=dma_odd(1))
        step(1, True, 7, dm=dma_even(0), latebar=dma_odd(0))
        A(f"s_branch {L}_mid")
    A(".p2align 3")
    A.label(f"{L}_loop")
    for i in range(4):
        if i == 2: A.label(f"{L}_mid")
        if OPT["gst"] and gen.STAMPS and i % 2 == 0:
            for k in range(1, 9): A(f"s_mov_b32 s{70+2*k}, s{72+2*k}")
            A("s_memtime s[88:89]")
        step(i, True, 9 if i % 2 == 0 else 7)
    if qg: A(f"v_add_u32 v{vGA}, 256, v{vGA}")
    A(f"s_sub_u32 s{sCnt}, s{sCnt}, 1")
    A(f"s_cmp_lg_u32 s{sCnt}, 0")
    A(f"s_cbranch_scc1 {L}_loop")
    if OPT["gst"]:
        A("s_waitcnt vmcnt(0) lgkmcnt(0)"); endpgm(A)
    stamp(A, 3)
    def pf():
        A("s_mov_b64 exec, 1")
        A(f"global_atomic_add v4, v5, {s(S_WS,2)} sc1")
        A("s_mov_b64 exec, -1")
    pp = max(0, OPT["pq"]) if q else OPT["pk"]
    pl = pl0
    k_ = OPT["pft"] if q else 0
    wl = [wo_piece(*x) for x in ((0,0),(0,1),(0,2),(0,3),(1,3),(1,4),(2,0),(2,1),(2,2),(0,4),(1,0),(1,1),(1,2),(2,3),(2,4))]
    wd = [int(c) for c in ("%04d" % OPT["wd"])]
    assert wd[0] <= 6 and wd[0] + wd[1] <= 9
    cum = [k_, 2*k_] if q else [wd[0], wd[0]+wd[1]]
    def pst():
        if not q:
            n = wd.pop(0); G = wl[:n]; del wl[:n]
            return G
        G = [["s_nop 0", f"global_store_dwordx4 v{a}, v[8:11], {s(S_WS,2)} offset:{o_} sc1"] for a, o_ in pl[:k_]]
        del pl[:k_]
        return G
    if k_ and q:
        for i in range(4): A(f"v_mov_b32 v{8+i}, -1")
    if pp == 0: pf()
    step(0, False, 9 + (pp < 1), dm=pst())
    if pp == 1: pf()
    step(1, False, 2 + (pp < 2) + cum[0], dm=pst())
    if pp == 2: pf()
    A(f"global_load_dword v7, v6, {s(S_DBG,2)} sc1")
    step(2, False, 1 + (pp < 3) + cum[1], dm=pst())
    if pp == 3: pf()
    acc = lambda mt, t: vAcc + 20*mt + 4*t
    V0 = None
    if not q:
        op = lambda nm, p: 36 + 8*["K0","K1","V0","V1","TA","TB"].index(nm) + 4*p
        tmp = [112, 116]
        def ph(nm, t_, p): return phi4(acc(2*p,t_), op(nm,p), tmp[0]) + phi4(acc(2*p+1,t_), op(nm,p)+2, tmp[1])
        def vs(p):
            V = []
            for half in range(2):
                mt = 2*p + half
                V += cvt4(acc(mt,4), op("TB",p)+2*half)
                V += [f"v_cndmask_b32 v{op('TB',p)+2*half+kk}, v{op('TB',p)+2*half+kk}, v232, vcc" for kk in range(2)]
            return V
        def vv(p): return [l for half in range(2) for l in cvt4(acc(2*p+half,2), op("V0",p)+2*half) + cvt4(acc(2*p+half,3), op("V1",p)+2*half)]
        if OPT["tmg"]:
            mg = [f"v_mov_b32_dpp v{acc(h,4)+k}, v{acc(h+2,4)+k} row_shr:8 row_mask:0xf bank_mask:0xc" for h in range(2) for k in range(4)]
            um = [f"v_mov_b32_dpp v{op('TA',1)+k}, v{op('TA',0)+k} row_ror:8 row_mask:0xf bank_mask:0xf" for k in range(4)]
            V0 = vs(0) + vs(1) + mg + ph("TA",4,0) + vv(0) + um + vv(1)
        else:
            V0 = vs(0) + vs(1) + ph("TA",4,0) + vv(0) + ph("TA",4,1) + vv(1)
        V0 = unpack(V0)
        A(f"s_mov_b32 vcc_lo, 0x00ff00ff"); A(f"s_mov_b32 vcc_hi, 0x00ff00ff")
    step(3, False, 0, last=True, dm=pst(), fill=V0 if OPT["ov"] else None)
    stamp(A, 4)
    acc = lambda mt, t: vAcc + 20*mt + 4*t
    if not q:
        op = lambda nm, p: 36 + 8*["K0","K1","V0","V1","TA","TB"].index(nm) + 4*p
        vPp = 84; tmp = [112, 116]
        prods = [("K0","V0"),("K1","V1"),("K0","TB"),("K1","TB"),("TA","V0"),("TA","V1"),("TA","TB")]
        pm = lambda n, p: f"v_mfma_f32_16x16x32_bf16 {v(vPp+4*n,4)}, {v(op(prods[n][0],p),4)}, {v(op(prods[n][1],p),4)}, {'0' if p==0 else v(vPp+4*n,4)}"
        def wv(V, ms):
            ms = list(ms); st = max(1, len(V)//(len(ms)+1))
            for n, l in enumerate(V):
                A(l)
                if ms and n % st == st-1:
                    g = ms.pop(0)
                    for x in ([g] if isinstance(g, str) else g): A(x)
            for g in ms:
                for x in ([g] if isinstance(g, str) else g): A(x)
        def ph(nm, t_, p): return phi4(acc(2*p,t_), op(nm,p), tmp[0]) + phi4(acc(2*p+1,t_), op(nm,p)+2, tmp[1])
        def vs(p):
            V = []
            for half in range(2):
                mt = 2*p + half
                V += cvt4(acc(mt,4), op("TB",p)+2*half)
                V += [f"v_cndmask_b32 v{op('TB',p)+2*half+kk}, v{op('TB',p)+2*half+kk}, v232, vcc" for kk in range(2)]
            return V
        def vv(p): return [l for half in range(2) for l in cvt4(acc(2*p+half,2), op("V0",p)+2*half) + cvt4(acc(2*p+half,3), op("V1",p)+2*half)]
        mrg = lambda d, s_, m: [f"v_cndmask_b32 v{vPp+4*d+k}, v{vPp+4*d+k}, v{vPp+4*s_+k}, s[{m}:{m+1}]" for k in range(4)]
        def wr(a, n, lo, hi, off=0):
            return [f"s_mov_b32 exec_lo, {lo}", f"s_mov_b32 exec_hi, {hi}", f"ds_write_b128 v{a}, {v(vPp+4*n,4)} offset:{off}", "s_mov_b64 exec, -1"]
        lb = [[l for g in wl[k:k+3] for l in g] for k in range(0, len(wl), 3)]
        def late():
            A("s_cmp_ge_u32 s2, 64"); A("s_cbranch_scc1 KV_nl"); A("s_cmp_lg_u32 s40, 0"); A("s_cbranch_scc1 KV_nl")
            A("s_mov_b64 exec, 1"); A(f"global_atomic_add v233, v5, {s(S_WS,2)} sc1"); A("s_mov_b64 exec, -1")
            A.label("KV_nl")
        if OPT["nq"] and OPT["pl"] == 0: late()
        wv(V0, lb)
        if OPT["nq"] and OPT["pl"] == 1: late()
        wv(ph("K0",0,0), [pm(4,0), pm(5,0), pm(6,0), pm(4,1), pm(5,1), pm(6,1)])
        wv(ph("K0",0,1), [pm(0,0), pm(2,0), mrg(4,5,22), wr(228,6,"0xf0010f01",0,64)])
        if OPT['sa']:
            def rds(hb): return [f"ds_read_b32 v{12+2*k+c}, v{238 if k == 1 else 229} offset:{1024*k + (1680 if k > 1 else 0) + hb*KVH + c*HS}" for k in range(4) for c in range(2)]
            def ats(hb, tag):
                G = []
                for k in range(4):
                    g = [f"v_add_f32 v{12+2*k}, v{12+2*k}, v{13+2*k}"]
                    o_ = 1024*k + (1680 if k > 1 else 0) + hb*KVH
                    a_ = 239 if k == 1 else (230 if o_ < 4096 else 231)
                    if a_ == 231: o_ -= 4096
                    at = f"global_atomic_add_f32 v{a_}, v{12+2*k}, {s(S_WS,2)} offset:{o_}"
                    g += ["s_mov_b64 exec, s[8:9]", f"s_cbranch_execz {tag}", at] + ([f"{tag}:", "s_mov_b64 exec, -1"] if hb == 0 else []) if k == 3 else [at]
                    G.append(g)
                return G
            wv(ph("K1",1,0), [pm(0,1), pm(2,1), wr(224,4,-1,0,64), f"ds_write_b128 v225, {v(vPp,4)}", wr(227,2,"0x0f010f01","0x0f010f01")])
            poll(A, 6, S_DBG, 64, 1, vt=7, first_loaded=True)
            A("s_waitcnt lgkmcnt(0)")
            A("s_barrier")
            for l in rds(0): A(l)
            a0 = ats(0, "KV_sk0")
            wv(ph("K1",1,1), [pm(1,0), pm(3,0), ["s_waitcnt lgkmcnt(0)"] + a0[0] + a0[1], a0[2] + a0[3]])
            A(pm(1,1)); A(pm(3,1))
            stamp(A, 5)
            A(f"ds_write_b128 v225, {v(vPp+4,4)} offset:{KVH}")
            for l in wr(227,3,"0xf001f001","0xf001f001",KVH): A(l)
            A("s_waitcnt lgkmcnt(0)")
            A("s_barrier")
            if OPT["kforce"]:
                A(f"s_lshr_b32 s{sT}, s{sCG}, 1"); A(f"s_lshl_b32 s{sT}, s{sT}, {CSH}"); A(f"s_add_u32 s{sT}, s{sT}, {WS_CQ}")
                A(f"v_lshl_add_u32 v5, v1, {CSH+2}, s{sT}")
                A("s_cmp_lg_u32 s40, 0"); A("s_cbranch_scc1 KV_nf"); msignal(A, 5, 16); A.label("KV_nf")
                A("s_sleep 40")
            for l in rds(1): A(l)
            for k, g in enumerate(ats(1, f"{L}_skip")):
                A(f"s_waitcnt lgkmcnt({6-2*k})")
                for l in g: A(l)
        else:
            wv(ph("K1",1,0), [pm(0,1), pm(2,1), wr(224,4,-1,0,64)])
            wv(ph("K1",1,1), [pm(1,0), pm(3,0), f"ds_write_b128 v225, {v(vPp,4)}", wr(227,2,"0x0f010f01","0x0f010f01")])
            A(pm(1,1)); A(pm(3,1))
            stamp(A, 5)
            poll(A, 6, S_DBG, 64, 1, vt=7, first_loaded=True)
            A(f"ds_write_b128 v225, {v(vPp+4,4)} offset:{KVH}")
            for l in wr(227,3,"0xf001f001","0xf001f001",KVH): A(l)
            A(f"v_cmp_gt_u32 vcc, {1680-1536}, v0")
            A("s_waitcnt lgkmcnt(0)")
            A("s_barrier")
            if OPT["kforce"]:
                A(f"s_lshr_b32 s{sT}, s{sCG}, 1"); A(f"s_lshl_b32 s{sT}, s{sT}, {CSH}"); A(f"s_add_u32 s{sT}, s{sT}, {WS_CQ}")
                A(f"v_lshl_add_u32 v5, v1, {CSH+2}, s{sT}")
                A("s_cmp_lg_u32 s40, 0"); A("s_cbranch_scc1 KV_nf"); msignal(A, 5, 16); A.label("KV_nf")
                A("s_sleep 40")
            for k in range(7):
                A(f"ds_read2st64_b32 {v(12+2*k,2)}, v229 offset0:{4*k} offset1:{4*k+HS//256}")
            for k in range(7):
                A(f"s_waitcnt lgkmcnt({6-k})")
                A(f"v_add_f32 v{12+2*k}, v{12+2*k}, v{13+2*k}")
                if k == 6:
                    A("s_and_saveexec_b64 s[58:59], vcc")
                    A(f"s_cbranch_execz {L}_skip")
                A(f"global_atomic_add_f32 v{230 if k<4 else 231}, v{12+2*k}, {s(S_WS,2)} offset:{1024*(k%4)}")
        A.label(f"{L}_skip")
        A("s_mov_b64 exec, -1")
        A(f"s_lshr_b32 s{sT}, s{sCG}, 1"); A(f"s_lshl_b32 s{sT}, s{sT}, {CSH}"); A(f"s_add_u32 s{sT}, s{sT}, {WS_CQ}")
        if OPT["sig4"]:
            A(f"s_lshl_b32 s{sT2}, s40, {CSH+4}"); A(f"s_add_u32 s{sT}, s{sT}, s{sT2}")
        A(f"v_lshl_add_u32 v5, v1, {CSH+2}, s{sT}")
        rd3 = [l for j in range(3) for l in wo_read(j, [234, 235, 236, 237])]
        if OPT["ks"]:
            if OPT["kw"] < 9:
                for l in rd3: A(l)
                A(f"s_waitcnt vmcnt({OPT['kw']}) lgkmcnt(0)")
            A("s_barrier")
            A("s_cmp_lg_u32 s40, 3"); A("s_cbranch_scc1 KV_nosig")
            if not OPT["kforce"]: msignal(A, 5, 16)
            A("s_mov_b32 s10, 1")
            A("v_add_u32 v63, 128, v5")
            A.label("KV_nosig")
            stamp(A, 6)
            for g in wo_dma(3):
                for l in g: A(l)
            if OPT["kw"] == 9:
                for l in rd3: A(l)
                A("s_waitcnt lgkmcnt(0)"); A("s_barrier")
        else:
            for l in rd3: A(l)
            A("s_waitcnt lgkmcnt(0)"); A("s_barrier")
            for g in wo_dma(3):
                for l in g: A(l)
            A("s_waitcnt vmcnt(5)")
            A("s_barrier")
            A("s_cmp_lg_u32 s40, 0"); A("s_cbranch_scc1 KV_nosig")
            msignal(A, 5, 16)
            A.label("KV_nosig")
            stamp(A, 6)
        A("s_branch F_entry")
    else:
        vQ = 36
        vAN = 84; vAD = 100; vAM = 112; vEps = 124; vK = 132; vD = 180; vN = 196
        for i in range(4): A(f"v_mov_b32 v{20+i}, -1")
        srd(A, SX, S_WS, WSZ)
        A("s_mov_b32 s44, 0xffff0000"); A("s_mov_b32 s45, 0xffff0000"); A("s_mov_b32 s46, 0"); A("s_mov_b32 s47, -1")
        if qg:
            A(f"v_cndmask_b32 v4, v{vGacc}, v230, s[46:47]")
            A(f"v_mul_f32 v4, {hex(f2u(-LOG2E))}, v4")
            A("v_exp_f32 v4, v4"); A("v_add_f32 v4, 1.0, v4"); A("v_rcp_f32 v4, v4")
            A(f"global_store_dword v226, v4, {s(S_WS,2)} sc1")
        A(f"s_mul_i32 s43, s{sCG}, {2*KVG}"); A(f"s_add_u32 s43, s43, {WS_KV}")
        pf_ = lambda a, o_: A(f"global_store_dwordx4 v{a}, v[20:23], {s(S_WS,2)} offset:{o_} sc1" + (" nt" if OPT["wnt"] & 2 else "")) if OPT["spec"] else None
        if OPT['pfe']:
            def pfs(n):
                for _ in range(n):
                    if pl: pf_(*pl.pop(0))
            for nt in range(4):
                b = vQ + 12*nt
                for t_, o_, tm in ((0, 0, 24), (4, 2, 28), (1, 4, 24), (2, 6, 28), (3, 10, 24)):
                    if OPT["pfe"] < 3 or t_ in (0, 1): pfs(OPT["pfe"] % 3 or 1) if OPT["pfe"] < 3 else pfs(1)
                    for l in phi4(acc(nt,t_), b+o_, tm): A(l)
                A(f"v_pk_mov_b32 {v(b+8,2)}, {v(b+2,2)}, {v(b+2,2)} op_sel:[0,1]")
        else:
            for nt in range(4):
                b = vQ + 12*nt
                pf_(vSt+nt, 0)
                for l in phi4(acc(nt,0), b, 24): A(l)
                for l in phi4(acc(nt,4), b+2, 28): A(l)
                pf_(vSt+nt, 1024)
                for l in phi4(acc(nt,1), b+4, 24): A(l)
                if nt % 2 == 0: pf_(vSt+4+nt//2, 0)
                for l in phi4(acc(nt,2), b+6, 28): A(l)
                A(f"v_pk_mov_b32 {v(b+8,2)}, {v(b+2,2)}, {v(b+2,2)} op_sel:[0,1]")
                for l in phi4(acc(nt,3), b+10, 24): A(l)
        for r in (vAD+8, vAD+9, vAM+8, vAM+9): A(f"v_mov_b32 v{r}, 0")
        for i in range(4): A(f"v_mov_b32 v{vEps+i}, s62")
        A("v_mov_b32 v19, v228")
        for i in range(6): A(f"v_mov_b32 v{8+i}, v{220+i}")
        A("v_add_u32 v14, 128, v227"); A("v_mov_b32 v15, v229"); A("s_mov_b32 s41, 0")
        poll(A, 6, S_DBG, 64, 1, vt=7, first_loaded=True)
        stamp(A, 5)
        A("s_cmp_lg_u32 s40, 0"); A("s_cbranch_scc1 Q_nopoll")
        A("s_mov_b64 exec, 1")
        A("s_mov_b32 m0, 0")
        if OPT["fp"]: fpoll(A, 227, S_WS, 32, 128, OPT["fp"], OPT["gap"])
        else: poll(A, 227, S_WS, 32, 1, vt=7, sleep=OPT["qs"])
        A("s_mov_b64 exec, -1")
        stamp(A, 6)
        for gq in range(2):
            for j in range(7):
                if j % 4 == 0 and (gq or j):
                    A(f"s_mov_b32 m0, {KVG*gq + 1024*j}")
                    A(f"s_add_u32 s58, s43, {KVG*gq + 1024*j}")
                A(f"buffer_load_dwordx4 v229, {s(SX,4)}, s{58 if (gq or j>=4) else 43} offen" + (f" offset:{1024*(j%4)}" if j%4 else "") + " sc1 lds")
        A("s_waitcnt vmcnt(0)")
        A.label("Q_nopoll")
        A("s_barrier")
        stamp(A, 7)
        A.label("Q_o")
        A(f"ds_read_b128 {v(vK+40,4)}, v13 offset:1600")
        A(f"ds_read_b128 {v(vK+44,4)}, v12 offset:{1600+64}")
        for h in range(4):
            A(f"ds_read_b128 {v(vK+8*h,4)}, v9 offset:{KVH*h}")
            A(f"ds_read_b128 {v(vK+8*h+4,4)}, v8 offset:{KVH*h+64}")
        A(f"ds_read_b128 {v(vK+32,4)}, v11 offset:1280")
        A(f"ds_read_b128 {v(vK+36,4)}, v10 offset:{1280+64}")
        mo = lambda h: 0 if h % 2 == 0 else 2
        to = lambda h: 2 - mo(h)
        bq = lambda nt, h: vQ + 12*nt + [0, 2, 6, 8][h]
        def tri(raw, dst, mbase, mt):
            V = cvt4(raw, raw) + cvt4(raw+4, raw+4)
            for k in range(2): V.append(f"v_and_b32 v{dst+k}, v{raw+k}, v{mbase}")
            for k in range(2): V.append(f"v_and_b32 v{dst+2+k}, v{raw+4+k}, v{mt}")
            for h, o in ((1, 4), (2, 6), (3, 10)):
                for k in range(2): V.append(f"v_and_b32 v{dst+o+k}, v{raw+k}, v{mbase+h}")
            return V
        def trim(dreg, frag, nt, c0):
            return [f"v_mfma_f32_16x16x32_bf16 {v(dreg,4)}, {v(frag+4*k,4)}, {v(vQ+12*nt+4*k,4)}, {c0 if k==0 else v(dreg,4)}" for k in range(3)]
        def weave(ms, V, lead=0):
            ms = list(ms)
            for l in ms[:lead]: A(l)
            ms = ms[lead:]
            n = len(ms)
            pos = [(k*len(V))//max(1,n) for k in range(n)]
            for i_, l in enumerate(V):
                while pos and pos[0] == i_:
                    A(ms.pop(0)); pos.pop(0)
                A(l)
            for l in ms: A(l)
        if OPT["force"]: msignal(A, 19, 5)
        A("s_waitcnt lgkmcnt(10)")
        for l in tri(vK+40, vAD, vMk+4, vMk+12): A(l)
        dm = [trim(vD+4*nt, vAD, nt, v(vEps,4)) for nt in range(4)]
        dl = [dm[nt][k] for k in range(3) for nt in (2, 3)] if OPT["oo"] else []
        dm = [dm[nt][k] for k in range(3) for nt in ((0, 1) if OPT["oo"] else range(4))]
        VA = []
        for h in range(4):
            VA.append(f"s_waitcnt lgkmcnt({8-2*h})")
            VA += cvt4(vK+8*h, vAN+4*h+mo(h)) + cvt4(vK+8*h+4, vK+8*h+4)
            VA += [f"v_and_b32 v{vAN+4*h+to(h)+k}, v{vK+8*h+4+k}, v{vMk+h}" for k in range(2)]
        weave(dm, VA)
        def Nreg(nt, h): return vN + 20*(nt % 2) + 4*h
        def Mreg(nt): return vN + 20*(nt % 2) + 16
        def mn(nt): return [f"v_mfma_f32_16x16x32_bf16 {v(Nreg(nt,h),4)}, {v(vAN+4*h,4)}, {v(bq(nt,h),4)}, 0" for h in range(4)]
        def mm(nt): return trim(Mreg(nt), vAM, nt, "0")
        def rcp(nt): return [f"v_rcp_f32 v{vD+4*nt+i}, v{vD+4*nt+i}" for i in range(4)]
        def post(nt):
            V = []
            d = vD + 4*nt
            o = vK + 8*nt
            for h in range(4):
                n = Nreg(nt,h)
                V += [f"v_mul_f32 v{n+k}, v{n+k}, v{d+h}" for k in range(4)]
                V += cvt4(n, o+2*h)
                if h & 1: V.append(f"global_store_dwordx4 v{vSt+nt}, {v(o+2*h-2,4)}, {s(S_WS,2)} offset:{512*(h-1)} sc1")
            V.append(f"v_cndmask_b32 v16, v{d}, v{d+1}, s[44:45]")
            V.append(f"v_cndmask_b32 v17, v{d+2}, v{d+3}, s[44:45]")
            V.append(f"v_cndmask_b32 v16, v16, v17, s[46:47]")
            m_ = Mreg(nt)
            V += [f"v_mul_f32 v{m_+k}, v{m_+k}, v16" for k in range(4)]
            t4 = 20 + 4*(nt >> 1)
            V += cvt4(m_, t4 + 2*(nt & 1))
            if nt & 1: V.append(f"global_store_dwordx4 v{vSt+4+nt//2}, {v(t4,4)}, {s(S_WS,2)} sc1")
            return V
        A("s_waitcnt lgkmcnt(0)")
        weave(mn(0) + mn(1), tri(vK+32, vAM, vMk+8, vMk+13) + rcp(0))
        if OPT["two"] and OPT["sp"] == 0: msignal(A, 19, 5)
        weave(mm(0) + mm(1), post(0)[:20])
        if OPT["two"] and OPT["sp"] == 1: msignal(A, 19, 5)
        for l in post(0)[20:] + rcp(1): A(l)
        if OPT["two"] and OPT["sp"] == 2: msignal(A, 19, 5)
        if OPT['oo']:
            p1 = post(1)
            for l in p1[:-9]: A(l)
            weave(dl[:4], p1[-9:])
            msignal(A, 19, 5)
            for l in dl[4:] + mn(2) + mm(2) + mn(3)[:2]: A(l)
            for l in rcp(2): A(l)
            weave(mn(3)[2:] + mm(3), post(2)[:28])
        else:
            weave(mn(2) + mm(2), post(1)[:28])
            for l in post(1)[28:]: A(l)
            if OPT["two"] and OPT["sp"] == 3: msignal(A, 19, 5)
            for l in rcp(2): A(l)
            weave(mn(3) + mm(3), post(2)[:28])
        for l in post(2)[28:] + rcp(3): A(l)
        if OPT["two"] and OPT["sp"] == 4:
            A("s_waitcnt vmcnt(2)"); msignal(A, 19, 5)
        for l in post(3): A(l)
        if OPT['ks']:
            stamp(A, 8)
            A("s_cmp_lg_u32 s41, 0"); A("s_cbranch_scc1 Q_fin")
            A("s_cmp_lg_u32 s40, 0"); A("s_cbranch_scc1 Q_nopoll2")
            A("s_mov_b64 exec, 1")
            poll(A, 14, S_WS, 32, 1, vt=7, sleep=4)
            A("s_mov_b64 exec, -1")
            for gq in range(2):
                for j in range(7):
                    if j % 4 == 0:
                        A(f"s_mov_b32 m0, {16384 + KVG*gq + 1024*j}")
                        A(f"s_add_u32 s58, s43, {KVG*gq + 1024*j}")
                    A(f"buffer_load_dwordx4 v15, {s(SX,4)}, s58 offen" + (f" offset:{1024*(j%4)}" if j%4 else "") + " sc1 lds")
            A.label("Q_nopoll2")
            A("v_add_u32 v3, 768, v0"); A(f"v_min_u32 v3, {(KVG+6720)//16-1}, v3"); A("v_lshlrev_b32 v3, 4, v3"); A("v_lshlrev_b32 v4, 4, v0")
            A("s_lshl_b32 s42, s40, 2"); A("v_mov_b32 v5, s42"); A("v_mov_b32 v6, 0")
            A("s_waitcnt vmcnt(0)")
            A("s_barrier")
            for k in range(4):
                for c in range(2):
                    A(f"ds_read_b128 {v(vN+8*k+4*c,4)}, v{4 if k<3 else 3} offset:{(4096*k if k<3 else 0) + 16384*c}")
            for k in range(4):
                A(f"s_waitcnt lgkmcnt({6-2*k})")
                for i in range(4): A(f"v_xor_b32 v{vN+8*k+i}, v{vN+8*k+i}, v{vN+8*k+4+i}")
                A(f"v_or3_b32 v6, v6, v{vN+8*k}, v{vN+8*k+1}"); A(f"v_or3_b32 v6, v6, v{vN+8*k+2}, v{vN+8*k+3}")
            A("v_cmp_ne_u32 vcc, 0, v6")
            A("s_or_b32 s42, vcc_lo, vcc_hi")
            A("v_mov_b32 v6, s42"); A("v_mov_b32 v7, 0")
            A("ds_write_b32 v5, v6 offset:32000")
            A("s_waitcnt lgkmcnt(0)"); A("s_barrier")
            A(f"ds_read_b128 {v(vN,4)}, v7 offset:32000")
            A("s_waitcnt lgkmcnt(0)")
            A(f"v_or3_b32 v6, v{vN}, v{vN+1}, v{vN+2}"); A(f"v_or_b32 v6, v6, v{vN+3}")
            A("v_readfirstlane_b32 s41, v6")
            A("s_cmp_eq_u32 s41, 0"); A("s_cbranch_scc1 Q_fin")
            for i in range(6): A(f"v_add_u32 v{8+i}, 16384, v{8+i}")
            A("v_add_u32 v3, 12, v19")
            msignal(A, 3, 5)
            A("s_branch Q_o")
            A.label("Q_fin")
            A("v_add_u32 v19, 8, v19")
            A("s_waitcnt vmcnt(0)")
            msignal(A, 19, 5)
        else:
            stamp(A, 8)
            if OPT["spec"]:
                if OPT["two"] and OPT["sp"] == 5:
                    A("s_waitcnt vmcnt(5)"); msignal(A, 19, 5)
                if not OPT["two"]: msignal(A, 19, 5)
                A("v_add_u32 v19, 4, v19")
                A(f"s_waitcnt vmcnt({0 if OPT['two'] else 1})")
            else: A("s_waitcnt vmcnt(0)")
            msignal(A, 19, 5)
        endpgm(A)

A_CS = 2368
A_Z = 16240
A_U0 = A_Z + 16
A_CH = A_U0 + 4096
SROW = 272

def A_head(A):
    sD, sT, vP = 41, 42, 162
    A(f"s_mul_i32 s{sT}, s{sD}, 384")
    A(f"v_lshl_add_u32 v2, v1, 2, s{sT}")
    A(f"v_lshl_add_u32 v3, v1, 1, s{sT}")
    A(f"s_lshl_b32 s{sT}, s{sD}, 1"); A(f"s_and_b32 s{sT}, s{sT}, 0xfffffffc")
    nt = " nt" if OPT["nt"] & 4 else ""
    if OPT["nq"]:
        A("s_and_b32 s43, s2, 127"); A("s_cmp_lt_u32 s2, 384")
        A("s_cselect_b32 s44, 64, 0"); A("s_add_u32 s43, s43, s44"); A("s_add_u32 s43, s43, 256")
    elif OPT["rm"]: A("s_and_b32 s43, s2, 127"); A("s_add_u32 s43, s43, 256")
    else: A("s_cmp_ge_u32 s2, 448"); A(f"s_cselect_b32 s43, {64 if OPT['a4w'] else 192}, 0"); A("s_sub_u32 s43, s2, s43")
    A("s_lshl_b32 s43, s43, 8"); A(f"s_add_u32 s43, s43, {WS_CP - 256*256}")
    if OPT["uh"] < 448: A("s_cmp_eq_u32 s40, 3"); A(f"s_cselect_b32 s43, {WS_UH}, s43")
    A("v_mov_b32 v175, s43")
    A("s_waitcnt lgkmcnt(0)")
    if OPT["a4d"]:
        A("s_cmp_lg_u32 s60, 0"); A("s_cbranch_scc1 A_h1")
        for k in range(OPT["a4d"]):
            A(f"global_load_dword v174, v175, {s(S_WS,2)} offset:{128*k} sc1"); A("s_waitcnt vmcnt(0)")
        A.label("A_h1")
    if not OPT["bal"]: A("s_cmp_eq_u32 s60, 2"); A("s_cbranch_scc1 A_h2")
    for i, sp in enumerate((S_ARE, S_AIM, S_BRE, S_BIM, S_CRE, S_CIM)):
        A(f"global_load_dword v{vP+i}, v2, {s(sp,2)}{nt}")
    if not OPT["bal"]: A("s_cmp_eq_u32 s60, 1"); A("s_cbranch_scc1 A_h3")
    A.label("A_h2")
    for i, sp in enumerate((S_ARE, S_AIM, S_BRE, S_BIM, S_CRE, S_CIM)):
        A(f"global_load_ushort v{vP+6+i}, v3, {s(sp,2)} offset:256{nt}")
    A(f"global_load_dword v174, v175, {s(S_WS,2)} sc1")
    A.label("A_h3")
    A(f"s_load_dword s64, {s(S_LDT,2)}, s{sT}")
    A(f"s_load_dword s65, {s(S_DSK,2)}, s{sT}")
    A("s_setprio 0")
    A("s_branch A_body")

def A_chan(A):
    sW, sD, sT, sBase, sCnt, sT2 = 40, 41, 42, 43, 44, 45
    vP = 88
    vDer = 14
    vG = 26
    vAA, vBA, vB0, vOA = 36, 37, 38, 39
    vFX, vTW1, vTW2, vTW3, vTW0, vDsk = 40, 41, 42, 43, 44, 45
    vZ, vW, vW2, vZZ = 46, 48, 50, 52
    vS = 54
    vP = 162
    vAcc = 80
    vFr = 96
    A.label("A_body")
    A(f"s_mul_i32 s{sBase}, s{sW}, {A_CH}")
    sMode, sMain, sAux, sTb = 60, 61, 62, 63
    if OPT["dry"]:
        A("s_mov_b32 s59, 0")
        A(f"s_cmp_eq_u32 s{sMode}, 2"); A("s_cbranch_scc0 A_setup")
        A("s_mov_b32 s59, 1"); A(f"s_mov_b32 s{sCnt}, 1"); A(f"s_mov_b32 m0, s{sBase}"); A(f"v_mov_b32 v{vFX}, s{sBase}")
        A(f"v_mov_b32 v{vOA}, 0"); A("v_mov_b32 v160, 128")
        A("s_branch A_pass")
        A.label("A_setup")
        A("s_mov_b32 s59, 0")
        A("s_waitcnt lgkmcnt(0)")
    A(f"s_cmp_eq_u32 s{sMode}, 2"); A(f"s_cselect_b32 s{sT}, {2*A_CH}, 0"); A(f"s_sub_u32 s{sMain}, s{sBase}, s{sT}")
    A(f"s_add_u32 s{sAux}, s{sMain}, {2*A_CH}")
    A(f"s_mul_i32 s{sTb}, s{sMode}, 3328"); A(f"s_add_u32 s{sTb}, s{sTb}, s{sAux}"); A(f"s_add_u32 s{sT}, s{sBase}, 9600")
    A(f"s_cmp_eq_u32 s{sMode}, 0"); A(f"s_cselect_b32 s{sTb}, s{sT}, s{sTb}")
    A(f"v_sub_u32 v2, 63, v1")
    A(f"v_lshlrev_b32 v2, 1, v2")
    A(f"v_lshl_add_u32 v{vG}, v2, 2, s{sTb}")
    for beta in (1, 2, 3):
        for e in range(3):
            r = vG + 1 + 3*(beta-1) + e
            A(f"v_add_u32 v3, {e}, v2")
            A(f"v_bfe_u32 v4, v3, {beta}, 1")
            A(f"v_add3_u32 v3, v3, v4, {(1<<(beta-1))-1}")
            A(f"v_lshrrev_b32 v3, {beta}, v3")
            A(f"v_lshl_add_u32 v{r}, v3, 2, s{sTb}")
    A(f"v_and_b32 v2, 15, v1")
    A(f"v_lshrrev_b32 v3, 4, v1")
    A(f"v_sub_u32 v4, 0, v2")
    A(f"v_and_b32 v4, 3, v4")
    A(f"v_mul_u32_u24 v5, {A_CS}, v4")
    A(f"v_add_u32 v6, v2, v4")
    A(f"v_sub_u32 v6, 112, v6")
    A(f"v_lshl_add_u32 v6, v3, 3, v6")
    A(f"v_lshl_add_u32 v5, v6, 1, v5")
    A(f"v_add3_u32 v{vAA}, v5, s{sMain}, 16")
    A("v_lshlrev_b32 v5, 2, v3"); A("v_sub_u32 v5, v2, v5")
    A(f"s_add_u32 s{sT}, s{sTb}, {4*(544-6)}")
    A(f"v_lshl_add_u32 v176, v5, 3, s{sT}")
    A(f"v_lshlrev_b32 v5, 5, v2")
    A(f"v_lshl_add_u32 v6, v3, 4, v5")
    A(f"s_add_u32 s{sT}, s{sMain}, {A_U0+32}")
    A(f"v_add_u32 v{vBA}, s{sT}, v6")
    A(f"v_and_b32 v6, 1, v3"); A(f"v_lshl_add_u32 v5, v6, {10 if OPT['conv'] else 9}, v5")
    A(f"v_lshrrev_b32 v6, 1, v3"); A(f"v_lshl_add_u32 v6, v6, 4, v5")
    A(f"s_mul_i32 s{sT}, s{sD}, {OPT['rs']}")
    A(f"v_add_u32 v{vOA}, s{sT}, v6")
    A(f"v_and_b32 v2, 31, v1")
    A(f"v_lshrrev_b32 v3, 5, v1")
    A(f"v_mul_u32_u24 v4, {SROW}, v2")
    A(f"v_lshl_add_u32 v4, v3, 4, v4")
    A(f"v_add_u32 v{vFX}, s{sBase}, v4")
    A(f"v_lshlrev_b32 v4, 5, v2")
    A(f"v_lshl_add_u32 v4, v3, 4, v4")
    A(f"v_add_u32 v{vTW0}, s{sTb}, v4")
    A(f"v_cmp_eq_u32 vcc, 0, v3")
    A(f"v_lshlrev_b32 v4, 4, v2")
    A(f"v_lshlrev_b32 v5, 3, v2")
    A(f"v_add_u32 v6, 1024, v4")
    A(f"v_add_u32 v7, 1536, v5")
    A(f"v_cndmask_b32 v6, v7, v6, vcc")
    A(f"v_add_u32 v{vTW1}, s{sTb}, v6")
    A(f"v_add_u32 v6, 1032, v4")
    A(f"v_add_u32 v7, 1792, v5")
    A(f"v_cndmask_b32 v6, v7, v6, vcc")
    A(f"v_add_u32 v{vTW2}, s{sTb}, v6")
    A(f"v_lshlrev_b32 v4, 2, v2")
    A(f"v_lshl_add_u32 v4, v3, 9, v4")
    A(f"s_add_u32 s{sT}, s{sTb}, {2048+124}")
    A(f"v_add_u32 v{vTW3}, s{sT}, v4")
    A(f"v_mov_b32 v2, 0")
    A(f"v_mov_b32 v3, 0")
    A(f"s_mov_b32 m0, s{sMain}")
    A("s_mov_b64 exec, 15")
    A(f"ds_write_addtid_b32 v2 offset:{A_Z}")
    A("s_mov_b64 exec, -1")
    A(f"s_mov_b32 m0, s{sBase}")
    A(f"v_mov_b32 v5, 0x3f80")
    A(f"ds_write_addtid_b32 v5 offset:{21*SROW}")
    for i in range(0, 16 if OPT["peel"] else 80, 2):
        A(f"v_pk_mov_b32 {v(vAcc+i,2)}, v[2:3], v[2:3]")
    stamp(A, 1)
    A("s_waitcnt lgkmcnt(0)")
    A(f"s_bitcmp1_b32 s{sD}, 0"); A("s_cselect_b32 s46, 0, 16")
    A("s_lshl_b32 s64, s64, s46"); A("s_lshl_b32 s65, s65, s46")
    A("s_and_b32 s64, s64, 0xffff0000"); A("s_and_b32 s65, s65, 0xffff0000")
    A(f"v_mov_b32 v2, {hex(f2u(LOG2E))}")
    A(f"v_mul_f32 v2, s64, v2")
    A(f"v_exp_f32 v2, v2")
    A(f"v_cmp_eq_u32 vcc, 0, v1")
    A(f"v_mov_b32 v3, s65")
    A(f"v_cvt_pk_bf16_f32 v2, v2, v2")
    A(f"v_cndmask_b32 v{vDsk}, 0, v3, vcc")
    A(f"v_and_b32 v2, 0xffff0000, v2")
    A("s_waitcnt vmcnt(0)")
    stamp(A, 2)
    for p in range(3):
        for i in range(6):
            src = vP + i if p < 2 else vP + 6 + i
            if p == 1: A(f"v_and_b32 v{4+i}, 0xffff0000, v{src}")
            else:      A(f"v_lshlrev_b32 v{4+i}, 16, v{src}")
        d = vDer + 4*p
        A(f"v_pk_mul_f32 v[4:5], v[4:5], v[2:3] op_sel_hi:[1,0]")
        A(f"v_pk_mul_f32 v[6:7], v[6:7], v[2:3] op_sel_hi:[1,0]")
        A(f"v_mul_f32 v{d}, {hex(f2u(LOG2E))}, v4")
        A(f"v_mul_f32 v{d+1}, 0.15915494, v5")
        A(f"v_pk_mul_f32 v[10:11], v[8:9], v[6:7] op_sel_hi:[1,0]")
        A(f"v_pk_fma_f32 {v(d+2,2)}, v[8:9], v[6:7], v[10:11] op_sel:[1,1,0] op_sel_hi:[0,1,1] neg_lo:[1,0,0]")
    if OPT["bal"]:
        A(f"s_mov_b32 s{sCnt}, 3"); A("s_mov_b32 s56, 0")
        A(f"s_cmp_eq_u32 s{sMode}, 0"); A("s_cbranch_scc1 A_p0")
        A(f"s_mov_b32 s{sCnt}, 2")
        A(f"s_cmp_eq_u32 s{sMode}, 1"); A("s_cbranch_scc1 A_p1")
        for i in range(4): A(f"v_mov_b32 v{vDer+i}, v{vDer+4+i}")
        A.label("A_p1")
        for i in range(4): A(f"v_mov_b32 v{vDer+4+i}, v{vDer+8+i}")
    else:
        A(f"s_sub_u32 s{sCnt}, 3, s{sMode}")
        A(f"s_cmp_eq_u32 s{sMode}, 2"); A("s_cbranch_scc0 A_p0")
        for i in range(4): A(f"v_mov_b32 v{vDer+i}, v{vDer+8+i}")
    A.label("A_p0")
    A(f"s_cmp_eq_u32 s{sMode}, 0"); A("s_cselect_b32 s57, 1, 0")
    if OPT["tm"]: A("s_movk_i32 s46, 128"); A("s_mov_b32 s58, 1")
    else: A(f"s_cmp_eq_u32 s{sMode}, 0"); A("s_cselect_b32 s46, 0, 128"); A("s_cselect_b32 s58, 64, 1")
    A("v_mov_b32 v160, s46")
    A(f"s_mov_b32 s{sT}, {hex(f2u(8.0))}")
    A(f"s_mov_b32 s{sT2}, {hex(f2u(256.0))}")
    stamp(A, 3)
    if OPT["cut"] == 3: A("s_nop 3"); A("s_branch A_postpass")
    if OPT["cut"] == 4: A("s_endpgm")
    A(".p2align 3")
    A.label("A_pass")
    body = []
    def cexp(dst, t, scale):
        if scale is None:
            return [f"v_exp_f32 v{t}, v{vDer}", f"v_fract_f32 v{t+1}, v{vDer+1}",
                    f"v_cos_f32 v{dst}, v{t+1}", f"v_sin_f32 v{dst+1}, v{t+1}",
                    f"v_pk_mul_f32 {v(dst,2)}, {v(dst,2)}, {v(t,2)} op_sel_hi:[1,0]"]
        return [f"v_mul_f32 v{t}, s{scale}, v{vDer}", f"v_mul_f32 v{t+1}, s{scale}, v{vDer+1}",
                f"v_exp_f32 v{t}, v{t}", f"v_fract_f32 v{t+1}, v{t+1}",
                f"v_cos_f32 v{dst}, v{t+1}", f"v_sin_f32 v{dst+1}, v{t+1}",
                f"v_pk_mul_f32 {v(dst,2)}, {v(dst,2)}, {v(t,2)} op_sel_hi:[1,0]"]
    e1, e2, e3 = cexp(vW, 2, sT), cexp(vZ, 4, None), cexp(vZZ, 6, sT2)
    for i in range(6):
        for e in (e1, e2, e3):
            if i < len(e) - 1: body.append(e[i])
    body.append("s_waitcnt lgkmcnt(0)")
    body.append("s_nop 0")
    body += [e2[-1], e1[-1], e3[-1]]
    def P(k): return vS + 6*k
    C = vDer + 2
    X2, X4, X6 = 8, 10, 12
    s1 = [(vW2, vW, vW, 21+2, 0)] + [(P(0), vW2 if j == 4 else P(0), vW2, 21+j, 0) for j in range(4, 32, 2)]
    s2 = [(vW, None, None, 21+1, 0)] + [(P(1), vW if j == 3 else P(1), vW2, 21+j, 0) for j in range(3, 32, 2)]
    s3 = [(C, None, None, 0, 1), (P(2), C, vZ, 1, 1), (X2, P(2), vZ, 2, 1), (P(2), X2, vZ, 3, 1), (X4, P(2), vZ, 4, 1),
          (P(2), X4, vZ, 5, 1), (X6, P(2), vZ, 6, 1), (P(2), X6, vZ, 7, 1),
          (P(2), X4, vZZ, 10, 1), (P(2), P(2), vZZ, 13, 1), (P(2), P(2), vZZ, 15, 1)]
    s4 = [(P(3), C, vZZ, 8, 1), (P(3), P(3), vZZ, 12, 1), (P(3), P(3), vZZ, 14, 1), (P(3), P(3), vZZ, 16, 1),
          (P(3), P(3), vZZ, 17, 1), (P(3), P(3), vZZ, 18, 1), (P(3), P(3), vZZ, 19, 1), (P(3), P(3), vZZ, 20, 1),
          (P(3), X2, vZZ, 9, 1), (P(3), X6, vZZ, 11, 1)]
    streams = [s1, s2, s3, s4]
    mf = [f"v_mfma_f32_32x32x16_bf16 {v(vAcc,16)}, {v(vFr+8*q,4)}, {v(vFr+8*q+4,4)}, {v(vAcc,16)}" for q in range(8)]
    if OPT["kg"] & 1:
        body = [l for l in body if not l.startswith(("s_waitcnt", "s_nop"))]
        if OPT["peel"]:
            k = A.lines.index("A_pass:") - 1
            A.lines[k:k] = body[:-3] + ["s_branch A_pass2"]
        for n, l in enumerate(body):
            if n == len(body) - 3:
                A(".p2align 3"); A.label("A_pass2")
            A(l)
            if n % 2 == 1 and n//2 < 8:
                q = n//2
                A(f"s_waitcnt lgkmcnt({7-q})"); A(mf[q])
    else:
        for l in body: A(l)
    if OPT['bal']:
        def section(streams):
            pend = []; n = max(len(st) for st in streams)
            for i in range(n):
                ops = [(k, st[i]) for k, st in enumerate(streams) if i < len(st) and st[i] is not None]
                V = []
                for k, (d, sr, m, row, ng) in ops:
                    if sr is not None: V += [f"v_mul_f32 v{P(k)+2}, v{sr+1}, v{m+1}", f"v_mul_f32 v{P(k)+3}, v{sr}, v{m+1}"]
                for k, (d, sr, m, row, ng) in ops:
                    if sr is not None: V += [f"v_fma_f32 v{d}, v{sr}, v{m}, -v{P(k)+2}", f"v_fma_f32 v{d+1}, v{sr+1}, v{m}, v{P(k)+3}"]
                for k, (d, sr, m, row, ng) in ops:
                    V.append(f"v_cvt_pk_bf16_f32 v{P(k)+4+(i&1)}, v{d}, {'-' if ng else ''}v{d+1}")
                for l in V: A(l)
                pend += [f"ds_write_addtid_b32 v{P(k)+4+(i&1)} offset:{row*SROW}" for k, (d, sr, m, row, ng) in ops]
                if i & 1 or i == n-1:
                    for l in pend: A(l)
                    pend = []
        W4 = 78
        r1 = [(P(0), C, vZ, 1, 1), (X2, P(0), vZ, 2, 1), (P(0), X2, vZ, 3, 1), (X4, P(0), vZ, 4, 1), (P(0), X4, vZ, 5, 1), (X6, P(0), vZ, 6, 1), (P(0), X6, vZ, 7, 1)]
        r2 = [(P(1), C, vZZ, 8, 1)] + [(P(1), P(1), vZZ, row, 1) for row in (12, 14, 16, 17, 18, 19, 20)]
        r3 = [(C, None, None, 0, 1), None, (P(2), X2, vZZ, 9, 1), None, (P(2), X4, vZZ, 10, 1), (P(2), P(2), vZZ, 13, 1), (P(2), P(2), vZZ, 15, 1), (P(2), X6, vZZ, 11, 1)]
        c1 = [(vW, None, None, 21+1, 0), None] + [(P(0), vW if j == 5 else P(0), W4, 21+j, 0) for j in range(5, 32, 4)]
        c2 = [(vW2, vW, vW, 21+2, 0), None] + [(P(1), vW2 if j == 6 else P(1), W4, 21+j, 0) for j in range(6, 32, 4)]
        c3 = [None, (P(2), vW2, vW, 21+3, 0)] + [(P(2), P(2), W4, 21+j, 0) for j in range(7, 32, 4)]
        c4 = [None, (W4, vW2, vW2, 21+4, 0)] + [(P(3), W4 if j == 8 else P(3), W4, 21+j, 0) for j in range(8, 32, 4)]
        A("s_cmp_eq_u32 s56, 1"); A("s_cbranch_scc1 A_cols")
        section([r1, r2, r3])
        A("s_cmp_eq_u32 s56, 2"); A("s_cbranch_scc1 A_postpass")
        for q in range(8): A(f"ds_read_b128 {v(vFr+8*q,4)}, v{vFX} offset:{32*q}")
        A.label("A_cols")
        section([c1, c2, c3, c4])
        A("s_cmp_eq_u32 s56, 1"); A("s_cbranch_scc1 A_postpass")
        for q in range(8): A(f"ds_read_b128 {v(vFr+8*q+4,4)}, v{vFX} offset:{32*q+21*SROW}")
        for q in range(8): A(f"v_mov_b32 v{vDer+q}, v{vDer+4+q}")
        A(f"s_mov_b32 s56, s{sMode}")
    else:
        pendw = []
        for i in range(16):
            ops = [(k, st[i]) for k, st in enumerate(streams) if i < len(st)]
            V = []
            if OPT["scalar"]:
                for k, (d, sr, m, row, ng) in ops:
                    if sr is not None: V += [f"v_mul_f32 v{P(k)+2}, v{sr+1}, v{m+1}", f"v_mul_f32 v{P(k)+3}, v{sr}, v{m+1}"]
                for k, (d, sr, m, row, ng) in ops:
                    if sr is not None: V += [f"v_fma_f32 v{d}, v{sr}, v{m}, -v{P(k)+2}", f"v_fma_f32 v{d+1}, v{sr+1}, v{m}, v{P(k)+3}"]
            else:
                for k, (d, sr, m, row, ng) in ops:
                    if sr is not None: V.append(f"v_pk_mul_f32 {v(P(k)+2,2)}, {v(sr,2)}, {v(m,2)} op_sel_hi:[1,0]")
                for k, (d, sr, m, row, ng) in ops:
                    if sr is not None: V.append(f"v_pk_fma_f32 {v(d,2)}, {v(sr,2)}, {v(m,2)}, {v(P(k)+2,2)} op_sel:[1,1,0] op_sel_hi:[0,1,1] neg_lo:[1,0,0]")
            for k, (d, sr, m, row, ng) in ops:
                V.append(f"v_cvt_pk_bf16_f32 v{P(k)+4+(i&1)}, v{d}, {'-' if ng else ''}v{d+1}")
            if i < 8 and not OPT['kg'] & 5: A(mf[i])
            if OPT["l2p"] and i == OPT["l2p"] - 1:
                A(f"s_cmp_eq_u32 s{sCnt}, s57"); A("s_cbranch_scc1 A_pf"); A.label("A_pfr")
            neww = [] if OPT["kg"] & 2 else [f"ds_write_addtid_b32 v{P(k)+4+(i&1)} offset:{row*SROW}" for k, (d, sr, m, row, ng) in ops]
            if OPT["wb"] == 0:
                stp = max(1, len(V)//max(1,len(pendw)))
                for n, l in enumerate(V):
                    A(l)
                    if pendw and n % stp == stp - 1: A(pendw.pop(0))
                for l in pendw: A(l)
                pendw = neww
            elif OPT["wb"] == 1:
                for l in V + neww: A(l)
            elif OPT["wb"] == 2:
                h = len(V)//3
                for l in V[:h] + pendw + V[h:]: A(l)
                pendw = neww
            elif OPT["wb"] == 3:
                for l in V: A(l)
                pendw += neww
                if i & 1:
                    for l in pendw: A(l)
                    pendw = []
            if i >= 12:
                for q in (2*(i-12), 2*(i-12)+1): A(f"ds_read_b128 {v(vFr+8*q,4)}, v{vFX} offset:{32*q}")
        for l in pendw: A(l)
        for q in range(8):
            A(f"ds_read_b128 {v(vFr+8*q+4,4)}, v{vFX} offset:{32*q+21*SROW}")
            if q < 4: A(f"v_pk_mov_b32 {v(vDer+2*q,2)}, {v(vDer+4+2*q,2)}, {v(vDer+4+2*q,2)} op_sel:[0,1]")
    A(f"s_sub_u32 s{sCnt}, s{sCnt}, 1")
    A(f"s_cmp_lg_u32 s{sCnt}, 0")
    A("s_cbranch_scc1 A_pass")
    if OPT["dry"]:
        A("s_cmp_eq_u32 s59, 1"); A("s_cbranch_scc1 A_setup")
    A.label("A_postpass")
    stamp(A, 4)
    if OPT["cut"] == 1: endpgm(A)
    lateu = OPT["tm"] or OPT["t3"] or OPT["lu"]
    if not lateu:
        A("s_cmp_ge_u32 s2, 448"); A("s_cbranch_scc0 A_nofl")
        A(f"global_load_dword v161, v160, {s(S_DBG,2)} sc1")
    A.label("A_nofl")
    A("v_and_b32 v2, 15, v1"); A("v_lshrrev_b32 v3, 4, v1"); A("v_lshlrev_b32 v3, 3, v3")
    A("s_mov_b32 s46, 0x8001"); A("s_movk_i32 s47, 0x3f80")
    for k, m_ in enumerate((0xfe0, 0x1ff0)):
        A(f"v_mov_b32 v4, {m_}"); A("v_lshlrev_b32 v4, v2, v4"); A("v_lshrrev_b32 v4, v3, v4")
        for j in range(4):
            r = 180 + 4*k + j
            A(f"v_bfe_u32 v{r}, v4, {2*j}, 2"); A(f"v_mul_u32_u24 v{r}, s46, v{r}"); A(f"v_and_b32 v{r}, 0x10001, v{r}"); A(f"v_mul_u32_u24 v{r}, s47, v{r}")
    def thr(tag):
        A("s_cmp_eq_u32 s40, 2"); A(f"s_cbranch_scc0 A_nothr{tag}")
        A("s_mov_b64 exec, 1")
        poll(A, 175, S_WS, "v174", 1, vt=6, sleep=4, cmp="ne", spin=48)
        A("s_mov_b64 exec, -1")
        A.label(f"A_nothr{tag}")
    if OPT['bal']:
        A(f"s_cmp_eq_u32 s{sMode}, 0"); A("s_cbranch_scc1 A_m8")
        if OPT["b0"] == 2: A("s_cmp_ge_u32 s2, 384"); A("s_cbranch_scc1 A_nothrb")
        thr("b")
        A(f"s_sub_u32 s46, s{sMain}, s{sBase}"); A(f"s_lshl_b32 s47, s{sMode}, 7"); A("s_add_u32 s46, s46, s47")
        A(f"v_add_u32 v4, s46, v{vFX}")
        A("s_waitcnt lgkmcnt(0)")
        A("s_barrier")
        for q in range(4, 8):
            A(f"ds_read_b128 {v(vFr+8*q,4)}, v4 offset:{32*q-256+2*A_CH}")
        for q in range(4, 8):
            A(f"ds_read_b128 {v(vFr+8*q+4,4)}, v4 offset:{32*q-256+21*SROW}")
        A("s_branch A_m4")
        A.label("A_m8")
        for q in range(8):
            if q == 4: A.label("A_m4")
            A(f"s_waitcnt lgkmcnt({7-q})")
            A(mf[q])
    else:
        if OPT["b0"]:
            if OPT["b0"] == 2: A("s_cmp_ge_u32 s2, 384"); A("s_cbranch_scc1 A_nb0")
            A(f"s_cmp_eq_u32 s{sMode}, 1"); A("s_cbranch_scc0 A_nb0"); A("s_barrier"); A.label("A_nb0")
        for q in range(8):
            A(f"s_waitcnt lgkmcnt({7-q})")
            A(mf[q])
    srd(A, 48, S_WS, WSZ)
    A("v_lshlrev_b32 v7, 4, v1")
    A(f"s_mul_i32 s59, s{sD}, {OPT['rs']}"); A(f"s_add_u32 s59, s59, {WS_UT}")
    A("s_nop 3")
    A(f"s_cmp_eq_u32 s{sMode}, 0"); A("s_cbranch_scc1 A_nox")
    A(f"s_cmp_eq_u32 s{sMode}, 1"); A("s_cselect_b32 s46, 3072, 0"); A("s_sub_u32 s47, 3072, s46"); A("s_add_u32 s46, s46, 11392"); A("s_add_u32 s47, s47, 11392")
    A(f"s_add_u32 s46, s46, s{sAux}"); A(f"s_add_u32 s47, s47, s{sAux}")
    A("v_lshl_add_u32 v4, v1, 4, s46"); A("v_lshl_add_u32 v5, v1, 4, s47")
    for k in range(3): A(f"ds_write_b128 v4, {v(vAcc+4*k,4)} offset:{1024*k}")
    if OPT["uh"] < 448:
        A("s_cmp_eq_u32 s40, 3"); A("s_cbranch_scc0 A_nuh")
        A(f"s_cmp_ge_u32 s2, {OPT['uh']}"); A("s_cbranch_scc0 A_nuh")
        A("s_mov_b64 exec, 1")
        poll(A, 175, S_WS, "v174", 1, vt=6, sleep=8, cmp="ne", spin=32)
        A("s_mov_b64 exec, -1")
        poll(A, 160, S_DBG, 1, 1, vt=161, sleep=8)
        for c in range(2):
            A(f"s_mov_b32 m0, {A_U0 + c*A_CH}")
            A(f"s_sub_u32 s47, s59, {OPT['rs'] * (1-c)}")
            for j in range(4):
                A(f"buffer_load_dwordx4 v7, s[48:51], s47 offen" + (f" offset:{1024*j}" if j else "") + " sc1 lds")
        A.label("A_nuh")
    if not OPT["b0"]: thr("a")
    if OPT["bal"]:
        if OPT["b0"] == 2:
            A("s_cmp_lt_u32 s2, 384"); A("s_cbranch_scc1 A_nothrd"); thr("d")
    elif OPT["b0"]:
        A(f"s_cmp_eq_u32 s{sMode}, 2"); A("s_cbranch_scc0 A_nb00")
        if OPT["rm"] and not OPT["xthr"]: A("s_cmp_ge_u32 s2, 384"); A("s_cbranch_scc1 A_nb00")
        thr("b")
        if OPT["b0"] == 2: A("s_cmp_ge_u32 s2, 384"); A("s_cbranch_scc1 A_nb00")
        A("s_barrier"); A.label("A_nb00")
    A("s_waitcnt lgkmcnt(0)")
    A("s_barrier")
    if OPT["aprio"] and not OPT["rm"]:
        A(f"s_cmp_lt_u32 s2, {384 if OPT['aprio'] == 1 else 0}"); A("s_cbranch_scc1 A_nopr"); A("s_setprio 3"); A.label("A_nopr")
    stamp(A, 9)
    if OPT["ue"]:
        if OPT["uh"] < 448: A(f"s_cmp_ge_u32 s2, {OPT['uh']}"); A("s_cbranch_scc1 A_ue")
        A(f"s_cmp_eq_u32 s{sMode}, 2"); A("s_cbranch_scc0 A_ue")
        A(f"global_load_dword v161, v160, {s(S_DBG,2)} sc1")
        A.label("A_ue")
    else:
        A(f"global_load_dword v161, v160, {s(S_DBG,2)} sc1")
    for k in range(3): A(f"ds_read_b128 {v(vFr+4*k,4)}, v5 offset:{1024*k}")
    for k in range(3):
        A(f"s_waitcnt lgkmcnt({2-k})")
        for i in range(4): A(f"v_add_f32 v{vAcc+4*k+i}, v{vAcc+4*k+i}, v{vFr+4*k+i}")
    A.label("A_nox")
    A(f"v_add_f32 v{vAcc}, v{vAcc}, v{vDsk}")
    A(f"ds_write_b128 v{vTW0}, {v(vAcc,4)}")
    A(f"ds_write_b64 v{vTW1}, {v(vAcc+4,2)}")
    A(f"ds_write_b64 v{vTW2}, {v(vAcc+6,2)}")
    for i in range(4):
        A(f"ds_write_b32 v{vTW3}, v{vAcc+8+i} offset:{128*i}")
    A("v_cmp_eq_u32 vcc, 0, v1"); A(f"s_add_u32 m0, s{sTb}, 2048")
    A(f"v_cndmask_b32 v2, 0, v{vAcc+8}, vcc")
    A("s_mov_b32 exec_hi, 0")
    A("ds_write_addtid_b32 v2")
    A("s_mov_b32 exec_hi, -1")
    if OPT["ue"]:
        if OPT["uh"] < 448: A(f"s_cmp_ge_u32 s2, {OPT['uh']}"); A("s_cbranch_scc1 A_ue2")
        A(f"s_cmp_eq_u32 s{sMode}, 2"); A("s_cbranch_scc0 A_ue2")
        A("s_waitcnt vmcnt(0)")
        A("v_readfirstlane_b32 s46, v161")
        A("s_cmp_ge_u32 s46, 1"); A("s_cbranch_scc1 A_ue1")
        poll(A, 160, S_DBG, "s58", 1, vt=161, sleep=8)
        A.label("A_ue1")
        A(f"s_add_u32 m0, s{sMain}, {A_U0}")
        A("s_nop 0")
        for j in range(4):
            A(f"buffer_load_dwordx4 v7, s[48:51], s59 offen" + (f" offset:{1024*j}" if j else "") + (" sc1 nt lds" if OPT["wnt"] & 4 else " sc1 lds"))
        A.label("A_ue2")
    stamp(A, 5)
    vE, vO = 46, 62
    blkX = [0, 1, 2, 3]; blkY = [4, 5, 6, 7, 8]
    def cv(r2):
        A(f"v_cvt_pk_bf16_f32 v{vE+r2}, v{vFr+3*r2+2}, v{vFr+3*r2+1}")
        A(f"v_cvt_pk_bf16_f32 v{vO+r2}, v{vFr+3*r2+1}, v{vFr+3*r2}")
    def gathers(order):
        for n, rp in enumerate(order):
            beta = 0 if rp < 2 else 1 if rp < 4 else 2 if rp < 8 else 3
            base = [0, 256, 384, 512][beta]; r0 = [0, 2, 4, 8][beta]
            off = 4 * (base + (128 >> beta) * (rp - r0))
            for e in range(3):
                if beta == 0: A(f"ds_read_b32 v{vFr+3*rp+e}, v{vG} offset:{off+4*e}")
                else: A(f"ds_read_b32 v{vFr+3*rp+e}, v{vG+1+3*(beta-1)+e} offset:{off}")
        for n in range(len(order)):
            A(f"s_waitcnt lgkmcnt({3*(len(order)-1-n)})"); cv(order[n])
    vSp = 14
    def cw(rp):
        rho = 8 - rp
        A(f"ds_write_addtid_b32 v{vE+rp} offset:{4+256*rho}")
        A(f"ds_write_addtid_b32 v{vO+rp} offset:{4+A_CS+256*rho}")
        A(f"ds_write_addtid_b32 v{vE+rp} offset:{2*A_CS+256*rho}")
        A(f"ds_write_addtid_b32 v{vO+rp} offset:{3*A_CS+256*rho}")
    def uf(j0):
        poll(A, 160, S_DBG, "s58", 1, vt=161, first_loaded=True, sleep=16)
        A(f"s_add_u32 m0, s{sMain}, {A_U0}")
        A("s_nop 0")
        for j in range(j0, j0+2):
            A(f"buffer_load_dwordx4 v7, s[48:51], s59 offen" + (f" offset:{1024*j}" if j else "") + (" sc1 nt lds" if OPT["wnt"] & 4 else " sc1 lds"))
        A(f"s_add_u32 m0, s{sMain}, 12")
    if OPT["ue"]:
        A(f"s_add_u32 m0, s{sMain}, 12")
    A(f"s_cmp_eq_u32 s{sMode}, 2"); A("s_cbranch_scc1 A_gx")
    gathers(blkY)
    if OPT["ue"]: A(f"s_cmp_eq_u32 s{sMode}, 1"); A("s_cbranch_scc1 A_wy")
    if not lateu:
        A("s_cmp_ge_u32 s2, 448"); A("s_cbranch_scc0 A_gx")
        uf(0)
    A(f"s_cmp_eq_u32 s{sMode}, 1"); A("s_cbranch_scc1 A_wy")
    A.label("A_gx")
    gathers(blkX)
    if lateu: pass
    elif OPT["ue"]:
        A("s_cmp_ge_u32 s2, 448"); A("s_cbranch_scc0 A_uf3")
        n0 = len(A.lines)
        uf(2)
        k = [i for i in range(n0, len(A.lines)) if A.lines[i].startswith("s_add_u32 m0")][0]
        del A.lines[n0:k]
        A.label("A_uf3")
    else:
        A(f"s_cmp_eq_u32 s{sMode}, 0"); A("s_cbranch_scc1 A_uf2")
        n0 = len(A.lines)
        uf(2)
        k = [i for i in range(n0, len(A.lines)) if A.lines[i].startswith("s_add_u32 m0")][0]
        A.lines[k:k] = ["A_uf2:"]
    A(f"v_cmp_eq_u32 vcc, 0, v1")
    A(f"v_cvt_pk_bf16_f32 v2, v{vAcc}, 0")
    A(f"v_mov_b32 v3, 0")
    A(f"v_cndmask_b32 v2, 0, v2, vcc")
    for rp in blkX: cw(rp)
    A("s_mov_b64 exec, 0xff")
    A(f"ds_write_addtid_b32 v2 offset:{4+2304}")
    A(f"ds_write_addtid_b32 v3 offset:{4+A_CS+2304}")
    A(f"ds_write_addtid_b32 v2 offset:{2*A_CS+2304}")
    A(f"ds_write_addtid_b32 v3 offset:{3*A_CS+2304}")
    A("s_mov_b64 exec, -1")
    A(f"s_cmp_eq_u32 s{sMode}, 2"); A("s_cbranch_scc1 A_wd")
    A.label("A_wy")
    for rp in blkY: cw(rp)
    A.label("A_wd")
    if lateu:
        A("s_cmp_ge_u32 s2, 448"); A("s_cbranch_scc0 A_uf4")
        poll(A, 160, S_DBG, "s58", 1, vt=161, sleep=16)
        A(f"s_add_u32 m0, s{sMain}, {A_U0}")
        A("s_nop 0")
        for j in range(4):
            A(f"buffer_load_dwordx4 v7, s[48:51], s59 offen" + (f" offset:{1024*j}" if j else "") + " sc1 lds")
        A.label("A_uf4")
    for tau in range(4):
        for jj in range(4):
            A(f"ds_read_b64 {v(vFr+8*tau+2*jj,2)}, v176 offset:{128*tau+8*(3-jj)}")
    for tau in range(4):
        A(f"s_waitcnt lgkmcnt({12-4*tau})")
        for st in range(2):
            for h in range(2):
                A(f"v_cvt_pk_bf16_f32 v{188+4*tau+2*st+h}, v{vFr+8*tau+4*h+st}, v{vFr+8*tau+4*h+2+st}")
    A(f"s_add_u32 s{sT}, s{sMain}, {A_Z}")
    if OPT["nq"]:
        A("s_cmp_eq_u32 s40, 3"); A("s_cbranch_scc0 A_nk")
        A("s_lshr_b32 s46, s2, 6"); A("s_cmp_eq_u32 s46, 6"); A("s_cbranch_scc0 A_nk")
        A("s_mov_b64 exec, 1")
        poll(A, 175, S_WS, "v174", 1, vt=6, sleep=8, cmp="ne", spin=32)
        A("s_mov_b64 exec, -1")
        A("v_mov_b32 v160, 128")
        poll(A, 160, S_DBG, 1, 1, vt=161, sleep=8)
        for c in range(4):
            A(f"s_mov_b32 m0, {A_U0 + c*A_CH}")
            A(f"s_sub_u32 s47, s59, {OPT['rs'] * (3-c)}")
            for j in range(4):
                A(f"buffer_load_dwordx4 v7, s[48:51], s47 offen" + (f" offset:{1024*j}" if j else "") + " sc1 lds")
        A.label("A_nk")
    stamp(A, 6)
    A("s_waitcnt vmcnt(0) lgkmcnt(0)")
    if OPT["a4t"]:
        A(f"s_cmp_eq_u32 s{sMode}, 0"); A("s_cbranch_scc0 A_nb3"); thr("c"); A.label("A_nb3")
    else:
        A(f"s_cmp_eq_u32 s{sMode}, 0"); A("s_cbranch_scc1 A_nb2")
    A("s_setprio 0")
    A("s_barrier")
    A.label("A_nb2")
    stamp(A, 7)
    if OPT["cut"] == 2: A("s_endpgm")
    if True:
        vY = 128
        def Areg(a, r): return 14 if a == 4 else 96 + 16*(r % 2) + 4*a
        def Breg(b, r): return 44 + 4*(b-5) if b >= 5 else 56 + 20*(r % 2) + 4*b
        def rdA(a, r):
            c_ = 8*a + r
            return [f"ds_read_b64 {v(Areg(a,r),2)}, v{vAA} offset:{64*(32-c_)}", f"ds_read_b64 {v(Areg(a,r)+2,2)}, v{vAA} offset:{64*(32-c_)+8}"]
        def rdB(b, r):
            if b == 0:
                return [f"v_subrev_u32 v{vB0}, {64*(r+1)}, v{vBA}", f"v_max_i32 v{vB0}, s{sT}, v{vB0}", f"ds_read_b128 {v(Breg(0,r),4)}, v{vB0}"]
            return [f"ds_read_b128 {v(Breg(b,r),4)}, v{vBA} offset:{512*(b-1)+64*(7-r)}"]
        issued = []
        def issue(l):
            A(l)
            if l.startswith("ds_read"): issued.append(Ins(l).w)
        done = [0]
        def need_regs(R):
            idx = max([i for i, w in enumerate(issued) if w & R] + [-1])
            if idx >= done[0]:
                n = min(len(issued) - 1 - idx, 15)
                A(f"s_waitcnt lgkmcnt({n})")
                done[0] = len(issued) - n
        def first_reads(r):
            return rdA(0, r) + [l for b in range(7, -1, -1) for l in rdB(b, r)] + [l for a in range(1, 4) for l in rdA(a, r)]
        def far_reads(bbs):
            L = []
            for k, bb in enumerate(bbs):
                for st in range(2):
                    d = v(204+8*k+4*st, 4)
                    if bb == 0: L += [f"v_subrev_u32 v40, {64+16*st}, v{vBA}", f"v_max_i32 v40, s{sT}, v40", f"ds_read_b128 {d}, v40"]
                    else: L.append(f"ds_read_b128 {d}, v{vBA} offset:{512*(bb-1)+448-16*st}")
            return L
        def far1(): return [(204+4*k, f"v_mfma_f32_16x16x32_bf16 {v(220+4*k,4)}, {v(204+4*k,4)}, {v(180+4*(k%2),4)}, 0") for k in range(4)]
        def farc(): return [l for k in range(4) for l in cvt4(220+4*k, 236+2*k)]
        def far2(bbs): return [f"v_mfma_f32_16x16x32_bf16 {v(vY+4*t,4)}, {v(236+4*k,4)}, {v(188+4*(t-bb-4),4)}, {v(vY+4*t,4)}" for k, bb in enumerate(bbs) for t in range(bb+4, 8)]
        A(f"s_cmp_eq_u32 s{sMode}, 2"); A("s_cbranch_scc0 A_c0")
        for l in first_reads(4): A(l)
        for i in range(32): A(f"v_mov_b32 v{vY+i}, 0")
        A("s_waitcnt lgkmcnt(0)")
        A("s_branch A_c4")
        A.label("A_c0")
        for l in first_reads(0) + rdA(4, 0): issue(l)
        for r in range(8):
            if r == 4:
                A(f"s_cmp_eq_u32 s{sMode}, 1"); A("s_cbranch_scc1 A_red0")
                A.label("A_c4")
            bbs = (1, 3) if r < 4 else (0, 2)
            q_ = []
            if r < 7:
                q_ = rdA(0, r+1) + [l for b in (4, 3, 2, 1, 0) for l in rdB(b, r+1)] + [l for a in range(1, 4) for l in rdA(a, r+1)]
            if r % 4 == 0: q_ += far_reads(bbs)
            if r % 4 == 2: q_ += farc()
            if r % 4 == 1:
                for rg, m_ in far1():
                    need_regs(regs(v(rg,4))); A(m_)
                    if q_: issue(q_.pop(0))
            ml = [(a, b) for a in range(4) for b in range(7-a, -1, -1)] + ([(4, b) for b in range(3, -1, -1)] if r == 0 else [])
            for a, b in ml:
                t = a + b
                c_ = "0" if (r == 0 and a == 0) else v(vY+4*t,4)
                need_regs(regs(v(Areg(a,r),4)) | regs(v(Breg(b,r),4)))
                A(f"v_mfma_f32_16x16x32_bf16 {v(vY+4*t,4)}, {v(Areg(a,r),4)}, {v(Breg(b,r),4)}, {c_}")
                if r < 7 and b == 7-a and b >= 5: q_ = rdB(b, r+1) + q_
                if q_: issue(q_.pop(0))
            for l in q_: issue(l)
            if r % 4 == 3:
                for m_ in far2(bbs): A(m_)
        stamp(A, 8)
        def outp(t):
            o = 44 + 2*t
            for l in cvt4(vY+4*t, o) + cvt4(vY+4*t+4, o+2): A(l)
            A(f"v_permlane16_swap_b32 v{o}, v{o+2}")
            A(f"v_permlane16_swap_b32 v{o+1}, v{o+3}")
            A(f"global_store_dwordx4 v{vOA}, {v(o,4)}, {s(S_WS,2)} offset:{512*t} sc1")
        def red(give, keep, og, ok):
            A("s_setprio 3")
            A(f"v_lshl_add_u32 v4, v1, 4, s{sAux}")
            A("s_nop 7")
            for k in range(4): A(f"ds_write_b128 v4, {v(vY+give+4*k,4)} offset:{og+1024*k}")
            A("s_waitcnt lgkmcnt(0)")
            A("s_barrier")
            if OPT["ast"]: stamp(A, 1)
            for k in range(4): A(f"ds_read_b128 {v(96+4*k,4)}, v4 offset:{ok+1024*k}")
            for k in range(4):
                A(f"s_waitcnt lgkmcnt({3-k})")
                for i in range(4): A(f"v_add_f32 v{vY+keep+4*k+i}, v{vY+keep+4*k+i}, v{96+4*k+i}")
        A(f"s_cmp_eq_u32 s{sMode}, 0"); A("s_cbranch_scc1 A_lo")
        red(0, 16, 4096, 0)
        A("s_branch A_hi")
        A.label("A_red0")
        stamp(A, 8)
        red(16, 0, 0, 4096)
        A.label("A_lo")
        outp(0); outp(2)
        A(f"s_cmp_eq_u32 s{sMode}, 1"); A("s_cbranch_scc1 A_sig")
        A.label("A_hi")
        outp(4); outp(6)
    A.label("A_sig")
    A(f"s_lshr_b32 s46, s{sD}, 1"); A("s_lshl_b32 s46, s46, 7"); A(f"s_add_u32 s46, s46, {WS_FA}")
    A("v_lshl_add_u32 v4, v1, 7, s46"); A("v_mov_b32 v5, 1")
    if OPT["ast"]: stamp(A, 2)
    A("s_waitcnt vmcnt(0)")
    if OPT["ast"]: stamp(A, 3)
    A("s_barrier")
    A("s_cmp_lg_u32 s40, 0"); A("s_cbranch_scc1 A_end")
    A(f"s_cmp_eq_u32 s{sMode}, 1"); A("s_cselect_b64 exec, 1, 3")
    A(f"global_store_dword v4, v5, {s(S_WS,2)} sc1")
    A.label("A_end")
    endpgm(A)
    if OPT["l2p"]:
        A.label("A_pf")
        A("s_sub_u32 s46, s7, 56"); A("s_lshl_b32 s46, s46, 2"); A("s_add_u32 s46, s46, s40")
        A("s_lshr_b32 s47, s6, 2")
        A(f"s_mul_i32 s50, s46, {10*3840}"); A("s_mul_i32 s51, s47, 640"); A("s_add_u32 s50, s50, s51"); A(f"s_add_u32 s50, s50, {320*3840}")
        for k in range(3):
            A(f"v_add_u32 v176, {64*k}, v1"); A("v_min_u32 v176, 149, v176")
            A("v_mul_u32_u24 v177, 4370, v176"); A("v_lshrrev_b32 v177, 16, v177")
            A("v_mul_u32_u24 v178, 15, v177"); A("v_sub_u32 v176, v176, v178")
            A("v_mul_u32_u24 v178, 52, v176"); A("v_lshrrev_b32 v178, 8, v178")
            A("v_mul_u32_u24 v177, 3840, v177"); A("v_lshl_add_u32 v177, v176, 7, v177")
            A("v_mul_u32_u24 v178, 640, v178"); A("v_add3_u32 v177, v177, v178, s50")
            A(f"global_load_dword v{180+k}, v177, {s(S_WQKV,2)}")
        A("s_and_b32 s50, s6, 3"); A("s_lshl_b32 s50, s50, 5"); A("s_add_u32 s50, s50, s46"); A(f"s_mul_i32 s50, s50, {16*1280}")
        A("s_lshl_b32 s47, s47, 7"); A("s_add_u32 s50, s50, s47"); A("s_add_u32 s50, s50, 640")
        A("v_and_b32 v176, 15, v1"); A("v_bfe_u32 v177, v1, 4, 1"); A("v_mul_u32_u24 v176, 1280, v176")
        A("v_lshl_add_u32 v176, v177, 8, v176"); A("v_add_u32 v176, s50, v176")
        A(f"global_load_dword v183, v176, {s(S_U,2)}")
        A("s_branch A_pfr")

def T_head(A, sN):
    A("v_lshrrev_b32 v2, 3, v1"); A("v_and_b32 v3, 7, v1")
    A("v_mul_u32_u24 v4, 10240, v2"); A("v_lshl_add_u32 v4, v3, 4, v4")
    A("v_add_u32 v5, 5120, v4")
    A("s_and_b32 s41, s6, 3"); A("s_lshl_b32 s41, s41, 3"); A(f"s_lshr_b32 s54, s{sN}, 3"); A("s_add_u32 s41, s41, s54"); A("s_lshr_b32 s42, s6, 2")
    A("s_lshl_b32 s43, s40, 1"); A("s_add_u32 s53, s43, 6"); A("s_add_u32 s43, s43, s42"); A("s_sub_u32 s53, s53, s42")
    A(f"s_mul_i32 s44, s41, {64*1280}")
    if OPT["tfix"]: A("s_min_u32 s45, s43, 4"); A("s_lshl_b32 s45, s45, 7")
    else: A("s_lshl_b32 s45, s43, 7")
    A("s_add_u32 s45, s44, s45")
    A("s_waitcnt lgkmcnt(0)")
    A(f"s_add_u32 s48, s{S_U}, s45"); A(f"s_addc_u32 s49, s{S_U+1}, 0")
    if OPT["g3"]:
        A("s_cmp_eq_u32 s40, 0"); A("s_cbranch_scc1 T_h0")
        A("v_subrev_u32 v9, 64, v0"); A("v_min_u32 v9, 89, v9"); A("v_lshlrev_b32 v9, 7, v9")
        A(f"s_mul_i32 s54, s{sN}, {3*3840}"); A(f"s_add_u32 s54, s54, {128*3840}"); A("v_add_u32 v9, s54, v9")
        A("s_barrier")
        A(f"global_load_dword v130, v9, {s(S_WQKV,2)}")
        A.label("T_h0")
    for i in range(8):
        A(f"global_load_dwordx4 {v(16+4*i,4)}, v{4 if i<4 else 5}, s[48:49] offset:{1280*(i%4)}")
    A("s_branch T_tr2")

def T_role(A, sN):
    ZW = ZPW * 8 // 64
    A(f"s_mul_i32 s52, s{sN}, {ZW}"); A(f"s_add_u32 s52, s52, {WS_KV}")
    A("v_lshl_add_u32 v8, v1, 4, s52")
    nfull = (ZW//16 - 1)//64
    A(f"v_min_u32 v9, {ZW//16-64*nfull-1}, v1")
    A("v_lshl_add_u32 v9, v9, 4, s52")
    for i in range(4): A(f"v_mov_b32 v{12+i}, 0")
    A("s_waitcnt lgkmcnt(0)")
    for k in range(nfull): A(f"global_store_dwordx4 v8, v[12:15], {s(S_WS,2)} offset:{1024*k} sc1")
    A(f"global_store_dwordx4 v9, v[12:15], {s(S_WS,2)} offset:{1024*nfull} sc1")
    if OPT["g3"]: A("s_barrier"); A("s_barrier")
    A("s_waitcnt vmcnt(0)")
    if OPT["twait"] == 2:
        A(f"s_add_u32 s52, s{sN}, 128"); A("s_lshl_b32 s52, s52, 8"); A(f"s_add_u32 s52, s52, {WS_CP}"); A("v_mov_b32 v16, s52")
        A(f"global_load_dword v17, v16, {s(S_WS,2)} sc1")
    A("v_mov_b32 v10, 0"); A("v_mov_b32 v11, 1")
    A("s_mov_b64 exec, 1")
    if OPT['tm']:
        A(f"global_atomic_add v10, v11, {s(S_DBG,2)} sc1")
        A("s_mov_b64 exec, -1")
        A("s_barrier")
        A(f"global_load_dword v11, v10, {s(S_DBG,2)} sc1")
        A(f"s_mul_i32 s52, s{sN}, 12800"); A("v_min_u32 v8, 49, v1"); A("v_lshl_add_u32 v8, v8, 8, s52")
        A(f"global_load_dword v14, v8, {s(S_WO,2)}")
        A(f"global_load_dword v15, v8, {s(S_WO,2)} offset:128")
        poll(A, 10, S_DBG, 64, 1, vt=11, sleep=16, first_loaded=True)
        A("s_barrier")
        lsignal(A, WS_C2, S_WS, 1, 64, 128, va=10, vd=11, fbase=S_DBG, hint=WS_UH if OPT['uh'] < 448 else None)
    else:
        if OPT["wop"] == 3:
            A("s_mov_b64 exec, -1")
            A(f"s_mul_i32 s52, s{sN}, 12800"); A("v_min_u32 v8, 49, v1"); A("v_lshl_add_u32 v8, v8, 8, s52")
            A(f"global_load_dword v12, v8, {s(S_WO,2)}")
            A(f"global_load_dword v13, v8, {s(S_WO,2)} offset:128")
            A("s_mov_b64 exec, 1")
        A("s_barrier")
        A(f"global_atomic_add v10, v11, {s(S_DBG,2)} sc1")
        A("s_mov_b64 exec, -1")
        A(f"s_mul_i32 s52, s{sN}, 12800"); A("v_min_u32 v8, 49, v1"); A("v_lshl_add_u32 v8, v8, 8, s52")
        if OPT["wop"] == 1: A("s_waitcnt vmcnt(0)")
        if OPT["wop"] < 2:
            A(f"global_load_dword v12, v8, {s(S_WO,2)}")
            A(f"global_load_dword v13, v8, {s(S_WO,2)} offset:128")
        A("s_barrier")
        poll(A, 10, S_DBG, 64, 1, vt=11, sleep=16)
        lsignal(A, WS_C2, S_WS, 1, 64, 128, va=10, vd=11, fbase=S_DBG, hint=WS_UH if OPT['uh'] < 448 else None)
    if OPT["twait"] == 2:
        poll(A, 16, S_WS, "v17", 1, vt=18, sleep=4, cmp="ne", spin=48)
    elif OPT["twait"]:
        A("v_mov_b32 v10, 128")
        poll(A, 10, S_DBG, 1, 1, vt=11, sleep=16)
    A("s_branch T_done")
    A.label("T_tr2")
    A("s_min_u32 s45, s53, 9"); A("s_lshl_b32 s45, s45, 7"); A("s_add_u32 s45, s44, s45")
    A(f"s_add_u32 s48, s{S_U}, s45"); A(f"s_addc_u32 s49, s{S_U+1}, 0")
    A(f"v_mul_u32_u24 v6, {8*OPT['rs']}, v3"); A("v_lshl_add_u32 v6, v2, 4, v6")
    A("s_lshl_b32 s46, s41, 7"); A(f"s_add_u32 s55, s46, {WS_UT}")
    A("s_mov_b32 s46, 0x05040100"); A("s_mov_b32 s47, 0x07060302")
    R2 = 10 - OPT["r1"]
    A(f"v_min_u32 v9, {30*R2-1}, v0"); A("v_lshlrev_b32 v9, 7, v9")
    A(f"s_mul_i32 s54, s{sN}, {R2*3840}"); A(f"s_add_u32 s54, s54, {64*OPT['r1']*3840}"); A("v_add_u32 v9, s54, v9")
    if OPT["gt"]:
        A("s_min_u32 s57, s43, 9"); A("s_lshl_b32 s57, s57, 7"); A("v_lshl_add_u32 v10, v3, 4, s57")
        A(f"global_load_dwordx4 v[132:135], v10, {s(S_GW,2)}")
        A("s_min_u32 s57, s53, 9"); A("s_lshl_b32 s57, s57, 7"); A("v_lshl_add_u32 v10, v3, 4, s57")
        A(f"global_load_dwordx4 v[136:139], v10, {s(S_GW,2)}")
        for i in range(8): A(f"v_mov_b32 v{140+i}, 0")
    stamp(A, 1)
    if OPT["g3"]:
        A("s_cmp_lg_u32 s40, 0"); A("s_cbranch_scc1 T_h1")
        A(f"s_waitcnt vmcnt({OPT['tw']})"); A("s_barrier")
        A.label("T_h1")
    if OPT["g3"] != 2: A("s_waitcnt vmcnt(0)")
    if OPT["g3"]: A("s_barrier")
    stamp(A, 2)
    if OPT['tm']:
        for i in range(8):
            A(f"global_load_dwordx4 {v(80+4*i,4)}, v{4 if i<4 else 5}, s[48:49] offset:{1280*(i%4)}")
        A(f"global_load_dword v129, v9, {s(S_WQKV,2)}")
        A(f"s_waitcnt vmcnt({OPT['tm']-1})")
        A("s_barrier")
        stamp(A, 3)
        A("s_mov_b32 s56, 5")
        A.label("T_loop")
        A("s_cmp_ge_u32 s43, s56"); A("s_cbranch_scc1 T_skip")
        A(f"s_mul_i32 s45, s43, {64*OPT['rs']}"); A("s_add_u32 s45, s45, s55")
        A(f"s_add_u32 s50, s{S_WS}, s45"); A(f"s_addc_u32 s51, s{S_WS+1}, 0")
        for k in range(8):
            for i in range(4):
                A(f"v_perm_b32 v{48+4*k+i}, v{16+8*i+4+k//2}, v{16+8*i+k//2}, s{47 if k%2 else 46}")
            A(f"global_store_dwordx4 v6, {v(48+4*k,4)}, s[50:51] sc1")
            A(f"s_add_u32 s50, s50, {OPT['rs']}"); A("s_addc_u32 s51, s51, 0")
        A.label("T_skip")
        A("s_cmp_eq_u32 s56, 10"); A("s_cbranch_scc1 T_fin")
        A("s_mov_b32 s43, s53"); A("s_mov_b32 s56, 10")
        for i in range(32): A(f"v_mov_b32 v{16+i}, v{80+i}")
        A("s_branch T_loop")
    else:
        A("s_mov_b32 s56, 5")
        if OPT["t3"]:
            for i in range(8):
                A(f"global_load_dwordx4 {v(80+4*i,4)}, v{4 if i<4 else 5}, s[48:49] offset:{1280*(i%4)}")
            A(f"global_load_dword v129, v9, {s(S_WQKV,2)}")
            A("s_waitcnt vmcnt(9)")
        A.label("T_loop")
        A("s_cmp_ge_u32 s43, s56"); A("s_cbranch_scc1 T_skip")
        A(f"s_mul_i32 s45, s43, {64*OPT['rs']}"); A("s_add_u32 s45, s45, s55")
        A(f"s_add_u32 s50, s{S_WS}, s45"); A(f"s_addc_u32 s51, s{S_WS+1}, 0")
        for k in range(8):
            for i in range(4):
                A(f"v_perm_b32 v{48+4*k+i}, v{16+8*i+4+k//2}, v{16+8*i+k//2}, s{47 if k%2 else 46}")
            A(f"global_store_dwordx4 v6, {v(48+4*k,4)}, s[50:51] sc1" + (" nt" if OPT["wnt"] & 1 else ""))
            A(f"s_add_u32 s50, s50, {OPT['rs']}"); A("s_addc_u32 s51, s51, 0")
        if OPT["gt"]:
            for c in range(4):
                for i in range(8): A(f"v_dot2_f32_bf16 v{140+i}, v{16+4*i+c}, v{132+c}, v{140+i}")
        A.label("T_skip")
        if OPT["gt"]:
            for c in range(4): A(f"v_mov_b32 v{132+c}, v{136+c}")
        A("s_cmp_eq_u32 s56, 10"); A("s_cbranch_scc1 T_fin")
        if OPT["t3"]:
            A("s_mov_b32 s43, s53"); A("s_mov_b32 s56, 10")
            A("s_waitcnt vmcnt(0)")
            A("s_barrier")
            stamp(A, 3)
            for i in range(32): A(f"v_mov_b32 v{16+i}, v{80+i}")
            A("s_branch T_loop")
        else:
            for i in range(8):
                A(f"global_load_dwordx4 {v(16+4*i,4)}, v{4 if i<4 else 5}, s[48:49] offset:{1280*(i%4)}")
            A(f"global_load_dword v129, v9, {s(S_WQKV,2)}")
            if OPT["wop"] == 4:
                A(f"s_mul_i32 s52, s{sN}, 12800"); A("v_min_u32 v8, 99, v0"); A("v_lshl_add_u32 v8, v8, 7, s52")
                A(f"global_load_dword v130, v8, {s(S_WO,2)}")
            A("s_mov_b32 s43, s53"); A("s_mov_b32 s56, 10")
            A(f"s_waitcnt vmcnt({10 if OPT['wop'] == 4 else 9})")
            A("s_barrier")
            stamp(A, 3)
            A(f"s_waitcnt vmcnt({2 if OPT['wop'] == 4 else 1})")
            A("s_branch T_loop")
    A.label("T_fin")
    if OPT["gt"]:
        A("s_nop 3")
        for ctl in ("quad_perm:[1,0,3,2]", "quad_perm:[2,3,0,1]", "row_half_mirror"):
            for i in range(8): A(f"v_add_f32_dpp v{140+i}, v{140+i}, v{140+i} {ctl} row_mask:0xf bank_mask:0xf")
        for i in range(1, 8):
            A(f"v_cmp_eq_u32 vcc, {i}, v3"); A(f"v_cndmask_b32 v140, v140, v{140+i}, vcc")
        A("s_lshl_b32 s57, s41, 11"); A("s_lshl_b32 s58, s42, 2"); A("s_add_u32 s58, s58, s40"); A("s_lshl_b32 s58, s58, 2")
        A("s_add_u32 s57, s57, s58"); A(f"s_add_u32 s57, s57, {WS_G}")
        A("v_lshl_add_u32 v10, v1, 5, s57")
        A(f"global_store_dword v10, v140, {s(S_WS,2)} sc1")
    A("s_waitcnt vmcnt(0)")
    A("s_barrier")
    stamp(A, 4)
    A.label("T_done")
    A("s_barrier")
    stamp(A, 5)

F_RB, F_CB, F_X, F_LB, F_SW, F_VA = 16, 17, 18, 19, 12, 220
def F_pre(A, sN):
    A(f"s_and_b32 s20, s{sN}, 7"); A(f"s_lshr_b32 s21, s{sN}, 3")
    A("s_mul_i32 s22, s21, 52"); A("s_lshr_b32 s22, s22, 8")
    A(f"s_lshl_b32 s{F_RB}, s20, 2"); A(f"s_add_u32 s{F_RB}, s{F_RB}, s22")
    A("s_mul_i32 s22, s22, 5"); A(f"s_sub_u32 s{F_CB}, s21, s22")
    if OPT["py"]:
        A(f"s_lshl_b32 s20, s{F_CB}, 2"); A("s_lshr_b32 s20, 0x16420, s20")
        A(f"s_and_b32 s{F_X}, s20, 3"); A("s_bfe_u32 s11, s20, 0x10002")
    else:
        A(f"s_and_b32 s{F_X}, s{F_CB}, 3"); A("s_mov_b32 s11, 0")
    A(f"s_lshl_b32 s{F_LB}, s40, 10")
    srd(A, F_SW, S_WO, 640*1280)
    A(f"v_lshrrev_b32 v{F_VA}, 4, v0"); A(f"v_and_b32 v{F_VA+1}, 15, v0")
    A(f"v_and_b32 v{F_VA+2}, 3, v{F_VA}"); A(f"v_lshlrev_b32 v{F_VA+2}, 2, v{F_VA+2}"); A(f"v_xor_b32 v{F_VA+1}, v{F_VA+1}, v{F_VA+2}")
    A(f"v_mul_u32_u24 v{F_VA}, 1280, v{F_VA}"); A(f"v_lshl_add_u32 v{F_VA}, v{F_VA+1}, 4, v{F_VA}")
    A(f"s_lshl_b32 s20, s{F_CB}, 8"); A(f"v_add_u32 v{F_VA}, s20, v{F_VA}")
    for l in range(4):
        A(f"s_xor_b32 s20, s{F_X}, {l}"); A(f"s_mul_i32 s{26+l}, s20, {160*1280}")
    a, b, c, d = 234, 235, 236, 237
    A(f"v_bfe_u32 v{c}, v1, 2, 2"); A(f"v_lshrrev_b32 v{d}, 5, v1")
    A(f"v_and_b32 v{a}, 1, v1"); A(f"v_bfe_u32 v{b}, v1, 1, 1"); A(f"v_lshl_add_u32 v{a}, v{a}, 1, v{b}")
    A("s_lshl_b32 s20, s40, 6")
    A(f"v_lshl_add_u32 v{a}, v{a}, 3, s20"); A(f"v_bfe_u32 v{b}, v1, 4, 1"); A(f"v_lshl_add_u32 v{a}, v{b}, 5, v{a}")
    A(f"v_lshlrev_b32 v{b}, 6, v{c}"); A(f"v_xor_b32 v{a}, v{a}, v{b}")
    A(f"v_lshl_add_u32 v{a}, v{c}, 8, v{a}")
    A(f"v_mul_u32_u24 v{b}, {20*256}, v{d}"); A(f"v_add_u32 v{b}, {16*256}, v{b}"); A(f"v_add_u32 v{b}, v{b}, v{a}")
    A(f"v_lshl_add_u32 v{a}, v{d}, 10, v{a}")
    A(f"v_add_u32 v{c}, 40960, v{a}"); A(f"v_add_u32 v{d}, 40960, v{b}")
F_QB = [26, 27, 28, 29]
def wo_piece(j, k):
    return [f"s_add_u32 m0, s{F_LB}, {20480*(j%4) + 4096*k}", f"s_add_u32 s20, s{F_QB[j//2]}, {(80*(j%2) + 16*k)*1280}",
            f"buffer_load_dwordx4 v{F_VA}, {s(F_SW,4)}, s20 offen lds"]
def wo_dma(j):
    return [wo_piece(j, k) for k in range(5)]
F_RA = 234
def wo_read(j, ra):
    l, e = divmod(j, 2); b = j % 4; up = 2*(b//2); o = 20480*(b%2)
    R = []
    for p2 in range(2):
        for s_ in range(2):
            for h in range(2):
                R.append(f"ds_read_b64_tr_b16 {v(96+8*(5*l+2*e+p2)+4*s_+2*h, 2)}, v{ra[up]} offset:{o+256*(40*p2+20*h+8*s_)}")
    for s_ in range(2):
        R.append(f"ds_read_b64_tr_b16 {v(96+8*(5*l+4)+4*s_+2*e, 2)}, v{ra[up+1]} offset:{o+256*40*s_}")
    return R

def F_role(A):
    sRB, sCB = F_RB, F_CB
    SS = 52
    vWf = 96
    vAcc = 64
    vGt = 44
    vR1, vR2, vRo, vO, vRd = 2, 3, 4, 5, 46
    def flat(G):
        for g in G:
            for l in g: A(l)
    RA = [2, 3, 6, 7]
    if OPT["fst"] == 2: stamp(A, 1)
    if OPT["gt"]:
        A("v_mov_b32 v44, 128"); A(f"global_load_dword v45, v44, {s(S_DBG,2)} sc1")
    flat(wo_dma(4) + wo_dma(5))
    for k in range(4): A(f"v_mov_b32 v{RA[k]}, v{F_RA+k}")
    A(f"s_mov_b32 s56, s{F_X}"); A("s_lshl_b32 s45, s40, 10")
    A("v_bfe_u32 v10, v1, 2, 2"); A("v_and_b32 v11, 3, v1")
    A("v_bfe_u32 v8, v1, 4, 1"); A("v_lshrrev_b32 v9, 5, v1")
    flat(wo_dma(6))
    srd(A, SS, S_WS, WSZ)
    A(f"v_lshlrev_b32 v{vRd}, 4, v1")
    A(f"s_mul_i32 s41, s{sRB}, 5"); A(f"s_add_u32 s41, s41, s{sCB}"); A(f"s_lshl_b32 s41, s41, {CSH}"); A(f"s_add_u32 s41, s41, {WS_CF}")
    A(f"s_lshl_b32 s42, s{sCB}, 2"); A("s_add_u32 s42, s42, s40"); A("s_lshl_b32 s42, s42, 11"); A(f"s_add_u32 s42, s42, {WS_FA}")
    A("v_min_u32 v20, 15, v1"); A("v_lshl_add_u32 v20, v20, 7, s42")
    A("s_add_u32 s41, s41, s25")
    A("v_mov_b32 v21, s41")
    A("v_lshrrev_b32 v22, 3, v1"); A("v_and_b32 v23, 7, v1")
    A(f"v_mul_u32_u24 v22, {OPT['rs']}, v22"); A("v_lshl_add_u32 v22, v23, 4, v22")
    A(f"s_lshl_b32 s57, s{sCB}, 2"); A("s_add_u32 s57, s57, s40"); A(f"s_mul_i32 s57, s57, {32*OPT['rs']}")
    A(f"s_lshl_b32 s42, s{sRB}, 7"); A("s_add_u32 s57, s57, s42")
    A("s_lshl_b32 s58, s40, 12")
    if OPT["pre"]: A("s_add_u32 s58, s58, 40960")
    if OPT["ra"]: A("s_add_u32 s58, s58, 61440")
    A("v_lshl_add_u32 v23, v9, 3, v10"); A("v_lshlrev_b32 v23, 7, v23"); A("v_lshl_add_u32 v23, v8, 5, v23")
    A("v_lshl_add_u32 v23, v11, 3, v23"); A("s_lshl_b32 s42, s11, 6"); A("s_add_u32 s42, s42, s58"); A("v_add_u32 v23, s42, v23")
    A("v_and_b32 v24, 31, v1"); A(f"s_lshl_b32 s41, s{sRB}, 6"); A("v_add_u32 v24, s41, v24")
    A("s_lshl_b32 s42, s11, 7"); A(f"s_add_u32 s42, s42, {WS_G}"); A(f"v_lshl_add_u32 v25, v24, {5 if OPT['gt'] else 2}, s42")
    A("v_mul_u32_u24 v24, 1280, v24"); A("v_lshl_add_u32 v24, v9, 4, v24")
    A(f"s_lshl_b32 s41, s{sCB}, 8"); A("s_lshl_b32 s42, s40, 6"); A("s_add_u32 s41, s41, s42")
    if not OPT["full"]:
        A(f"v_add_u32 v{vO}, s41, v24"); A(f"v_add_u32 v47, {32*1280}, v{vO}")
    else:
        A("v_and_b32 v24, 31, v1"); A("v_mul_u32_u24 v24, 272, v24"); A("v_lshl_add_u32 v24, v9, 4, v24")
        A("s_add_u32 s42, s42, 20480"); A("v_add_u32 v47, s42, v24")
        A("v_lshrrev_b32 v24, 4, v1"); A("s_lshl_b32 s42, s40, 3"); A("v_add_u32 v24, s42, v24"); A("v_and_b32 v26, 15, v1")
        A("v_mul_u32_u24 v27, 272, v24"); A("v_lshl_add_u32 v27, v26, 4, v27"); A("v_add_u32 v27, 20480, v27")
        A(f"s_lshl_b32 s42, s{sRB}, 6"); A("v_add_u32 v24, s42, v24"); A("v_mul_u32_u24 v24, 1280, v24")
        A("v_lshl_add_u32 v24, v26, 4, v24"); A(f"s_lshl_b32 s41, s{sCB}, 8"); A(f"v_add_u32 v{vO}, s41, v24")

    A("v_and_b32 v24, 15, v1"); A("v_lshl_add_u32 v24, v9, 4, v24"); A("v_lshlrev_b32 v24, 4, v24")
    A(f"v_lshl_add_u32 v{vRo}, v8, 12, v24")
    if OPT["gt"]: A("v_lshl_add_u32 v24, v8, 3, v24"); A("v_mov_b32 v26, v24")
    else:
        A("s_and_b32 s41, s56, 1"); A("v_xor_b32 v26, s41, v8")
        A("v_lshl_add_u32 v24, v26, 3, v24"); A("v_xor_b32 v26, 8, v24")
    A(f"s_lshl_b32 s47, s{sRB}, 1"); A("s_add_u32 s47, s47, s11"); A("s_mul_i32 s47, s47, 40960"); A(f"s_add_u32 s47, s47, {WS_OF}")
    A("s_mul_i32 s43, s11, 81920"); A("s_sub_u32 s43, 40960, s43")
    for l in range(4):
        A(f"s_xor_b32 s41, s56, {l}"); A("s_mul_i32 s41, s41, 10240"); A("s_add_u32 s41, s41, s47"); A(f"s_add_u32 s{60+l}, s41, s45")
        if l & 1: A(f"s_sub_u32 s{60+l}, s{60+l}, 10240")
    A("s_cmp_lt_u32 s40, 2"); A("s_cselect_b32 s64, s60, s61"); A("s_cselect_b32 s65, s62, s63")
    def fin_sig():
        A("s_cmp_eq_u32 s10, 0"); A("s_cbranch_scc1 F_nofin")
        msignal(A, 63, 16, vd=62)
        A.label("F_nofin")
    A("s_waitcnt vmcnt(15)"); A("s_barrier")
    if OPT["fst"] == 2: stamp(A, 2)
    for l in wo_read(3, RA): A(l)
    A("s_waitcnt vmcnt(10) lgkmcnt(0)"); A("s_barrier")
    if OPT["fst"] == 2: stamp(A, 3)
    flat(wo_dma(7))
    if OPT["ks"]: fin_sig()
    for l in wo_read(4, RA): A(l)
    A(f"s_waitcnt vmcnt({6 if OPT['ks'] else 5})") if False else A("s_waitcnt vmcnt(5)")
    A("s_barrier")
    if OPT["fst"] == 2: stamp(A, 4)
    for l in wo_read(5, RA) + wo_read(6, RA): A(l)
    if OPT["ks"]:
        A("s_cmp_eq_u32 s10, 0"); A("s_cbranch_scc1 F_w0")
        A("s_waitcnt vmcnt(1)"); A("s_branch F_w1")
        A.label("F_w0"); A("s_waitcnt vmcnt(0)"); A.label("F_w1")
    else: A("s_waitcnt vmcnt(0)")
    A("s_barrier")
    if OPT["fst"] == 2: stamp(A, 5)
    if OPT["gt"]:
        A("v_readfirstlane_b32 s42, v45")
        A("s_cmp_ge_u32 s42, 1"); A("s_cbranch_scc1 F_gok")
        poll(A, 44, S_DBG, 1, 1, vt=45, sleep=8)
        A.label("F_gok")
        for P in range(2):
            for h in range(2): A(f"global_load_dwordx3 {v(64+8*P+4*h,3)}, v25, {s(S_WS,2)} offset:{1024*P+16*h} sc1")
    for l in wo_read(7, RA): A(l)
    A("s_waitcnt lgkmcnt(0)")
    stamp(A, 7)
    vAt = 48
    A(f"s_mul_i32 s41, s11, {32*1280}"); A(f"s_sub_u32 s42, {32*1280}, s41")
    A(f"v_add_u32 v2, s42, v{vO}"); A(f"v_add_u32 v{vO}, s41, v{vO}")
    A(f"v_add_u32 v7, {4*1280}, v{vO}"); A(f"v_add_u32 v3, {4*1280}, v2")
    atd = [[f"s_add_u32 m0, s58, {1024*j}", f"s_add_u32 s42, s57, {8*OPT['rs']*j}", f"buffer_load_dwordx4 v22, {s(SS,4)}, s42 offen sc1 lds"] for j in range(4)]
    atr = [[f"ds_read_b64_tr_b16 {v(vAt+8*P+2*qd,2)}, v23 offset:{2048*(qd//2)+512*(qd%2)}" for qd in range(4)] + (["v_xor_b32 v23, 64, v23"] if P == 0 else []) for P in range(2)]
    if OPT["pre"]:
        poll(A, 20, S_WS, 1, "0xffff", vt=6, sleep=3)
        flat(atd)
        A("s_waitcnt vmcnt(0)")
        flat(atr)
        A("s_waitcnt lgkmcnt(0)")
    if OPT["fst"] == 3: stamp(A, 1)
    A("s_cmp_lg_u32 s40, 0"); A("s_cbranch_scc1 F_go")
    A("s_mov_b64 exec, 1")
    if OPT["fp"]: fpoll(A, 21, S_WS, 8, 60, OPT["fp"], OPT["gap"])
    else: poll(A, 21, S_WS, 8, 1, vt=6, sleep=OPT["fs"], first_loaded=bool(OPT["ep"]))
    A("s_mov_b64 exec, -1")
    A.label("F_go")
    A("s_barrier")
    stamp(A, 8)
    def odma(gi):
        G = []
        for m in range(5):
            sb = 60+2*(gi%2) if m < 2 else 61+2*(gi%2) if m > 2 else 64+(gi%2)
            pre = [f"s_add_u32 s{sb}, s{sb}, s43"] if (gi >= 2 and m in (0, 2, 3)) else []
            G.append(pre + [f"s_add_u32 m0, s45, {(0 if (gi == 3 and OPT['ra']) else 20480*gi) + 4096*m}", f"s_add_u32 s42, s{sb}, {4096*m}",
                      f"buffer_load_dwordx4 v{vRd}, {s(SS,4)}, s42 offen sc1 lds"])
        return G
    for g in odma(0) + odma(1)[:2]:
        for l in g: A(l)
    if OPT["gt"]:
        A("s_waitcnt vmcnt(7)")
        for P in range(2):
            b = 64 + 8*P
            A(f"v_add_f32 v{b}, v{b}, v{b+1}"); A(f"v_add_f32 v{b+2}, v{b+2}, v{b+4}"); A(f"v_add_f32 v{b+5}, v{b+5}, v{b+6}")
            A(f"v_add_f32 v{b}, v{b}, v{b+2}"); A(f"v_add_f32 v{b}, v{b}, v{b+5}")
            A(f"v_mul_f32 v{b}, {hex(f2u(-LOG2E))}, v{b}"); A(f"v_exp_f32 v{b}, v{b}"); A(f"v_add_f32 v{b}, 1.0, v{b}"); A(f"v_rcp_f32 v{vGt+P}, v{b}")
    if OPT["fst"] == 1: stamp(A, 1)
    fr = [28, 32, 36, 40, 8, 12, 16, 48, 52, 56, 60][:OPT["nr"]]
    NR = len(fr); LOOK = NR - 2
    seq = [(n, k) for n in range(8) for k in range(10)]
    def rd(i):
        n, k = seq[i]; s_, ph = k % 2, k // 2; r = fr[i % NR]
        if OPT["ra"] and n >= 6: n -= 2
        if ph < 4: return [f"ds_read_b128 {v(r,4)}, v{vRo} offset:{10240*(n%4) + 512*s_ + 1024*ph}"]
        return [f"ds_read_b64 {v(r+2*c,2)}, v{[24,26][n&1]} offset:{10240*(n%4) + 8192 + 1024*c + 512*s_}" for c in range(2)]
    issued = []; done = [0]
    def issue(i):
        if i == 40:
            for r in (vRo, 24, 26): A(f"v_add_u32 v{r}, 40960, v{r}")
        if i == 60 and OPT["ra"]:
            for r in (vRo, 24, 26): A(f"v_subrev_u32 v{r}, 40960, v{r}")
        for l in rd(i):
            A(l); issued.append(i)
    def need_i(i):
        idx = max(j for j, x in enumerate(issued) if x == i)
        if idx >= done[0]:
            n = min(15, len(issued) - 1 - idx)
            A(f"s_waitcnt lgkmcnt({n})"); done[0] = len(issued) - n
    if OPT["two"]: OPT["lp"] = [0,1,2] + [OPT["ls"] + k for k in (0,1,2,3,4, 6,8,10,12,14)]
    if OPT["ra"]:
        fl_ = [f"global_load_dword v6, v20, {s(S_WS,2)} sc1"]
        if OPT["flp"] < 0: A(fl_[0])
        late = [(g, p) for g, p in zip(odma(1)[2:], [0,1,2])]
        if OPT["flp"] >= 0: late.insert(0, (fl_, OPT["flp"]))
        late += [(g, OPT["ls"] + k) for k, g in enumerate(odma(2))]
        c_ = OPT["ra"]
        chk = [f"s_waitcnt vmcnt({3 + sum(1 for k in range(5) if OPT['ls'] + k < c_)})", "v_cmp_le_u32 vcc, 1, v6", "s_cmp_eq_u32 vcc_lo, -1", "s_cbranch_scc0 F_slow", "F_at:"]
        assert c_ >= OPT["ls"] + 5
        late += [((chk if j == 0 else []) + g, c_ + j) for j, g in enumerate(atd)]
        late += [(g, max(25, c_ + 4) + k) for k, g in enumerate(odma(3))]
        needn = {0: 3, 10: 5, 20: 9, 30: 11, 40: 14, 50: 16, 60: 23, 70: 25}
    else:
        late = [(g, p) for g, p in zip(odma(1)[2:] + odma(2) + odma(3), OPT["lp"])]
        if not OPT["gt"]: late += [([f"global_load_dword v{vGt+P}, v25, {s(S_WS,2)} sc1"] + (["v_xor_b32 v25, 128, v25"] if P == 0 else []), OPT["lp"][-1]+1+P) for P in range(2)]
        needn = {0: 3, 10: 5, 20: 8, 30: 10, 40: 13, 50: 15, 60: 20}
        if not OPT["pre"]:
            if OPT["fl0"]:
                A(f"global_load_dword v6, v20, {s(S_WS,2)} sc1")
                for n in needn:
                    if n >= 20: needn[n] += 1
            else:
                k = needn[OPT["ca"]] - 7
                late.insert(k, ([f"global_load_dword v6, v20, {s(S_WS,2)} sc1"], late[k-1][1] + 1))
                for n in needn:
                    if n >= OPT["ca"]: needn[n] += 1
    vOm = 22 if OPT['ra'] else 160; vT = 96
    def ga(P):
        V = []
        for qd in range(4):
            tm = vT + 16*P + 4*qd; a_ = vAt + 8*P + 2*qd
            V += [f"v_lshlrev_b32 v{tm}, 16, v{a_}", f"v_and_b32 v{tm+1}, 0xffff0000, v{a_}",
                  f"v_lshlrev_b32 v{tm+2}, 16, v{a_+1}", f"v_and_b32 v{tm+3}, 0xffff0000, v{a_+1}"]
            V += [f"v_mul_f32 v{tm+k}, v{tm+k}, v{vGt+P}" for k in range(4)]
        return V
    def fin(P):
        V = []; o = 128 + 8*P
        for qd in range(4):
            tm = vT + 16*P + 4*qd; ac = vAcc + 16*P + 4*qd
            V += [f"v_fmac_f32 v{tm+k}, v{ac+k}, v{vOm+P}" for k in range(4)]
            V += cvt4(tm, o+2*qd)
            if qd & 1 and OPT["full"]: V.append(f"ds_write_b128 v47, {v(o+2*qd-2,4)} offset:{10240*P+16*(qd-1)}")
            elif qd & 1: V.append(f"global_store_dwordx4 v{[vO,47][P]}, {v(o+2*qd-2,4)}, {s(S_OUT,2)} offset:{16*(qd-1)}" + ["", " nt", " sc1", " sc0 sc1"][OPT["ont"]])
        return V
    g0 = ga(0)
    epi = [l for l in g0 if not l.startswith("v_mul")] + ([] if OPT["gt"] else ["s_waitcnt vmcnt(0)"]) + [f"v_sub_f32 v{vOm+P}, 1.0, v{vGt+P}" for P in range(2)] + [l for l in g0 if l.startswith("v_mul")] + fin(0) + ga(1)
    if OPT["hk"]:
        fin_ = fin
        def fin(P): return [l for l in fin_(P) if not l.startswith("v_fmac")]
        dm_ = lambda P: [f"v_cndmask_b32 v{96+k}, 0, v44, s[62:63]" for k in range(8)] + [f"v_mfma_f32_32x32x16_bf16 {v(vAcc+16*P,16)}, {v(48+4*k,4)}, {v(96+4*k,4)}, {v(vAcc+16*P,16)}" for k in range(2)]
        epi = dm_(0) + dm_(1) + fin(0)
    if OPT["spec"]: epi = [f"v_cmp_u_f32 s[60:61], v{vAcc}, v{vAcc}", "s_lshl_b32 s42, s40, 2", "v_mov_b32 v20, s42", "v_mov_b32 v25, 0"] + epi
    E0 = OPT['e0']
    fl = ["", " nt", " sc1", " sc0 sc1", " sc1 nt"][OPT["ont"]]
    def rd2(P): return [f"ds_read_b128 {v(144+8*P+4*j,4)}, v27 offset:{10240*P+4*272*j}" for j in range(2)]
    def st2(P): return [f"global_store_dwordx4 v{[vO,7,2,3][2*P+j]}, {v(144+8*P+4*j,4)}, {s(S_OUT,2)}{fl}" for j in range(2)]
    nvm = 7 + (1 if ((OPT['fl0'] and not OPT['pre']) or (OPT['ra'] and OPT['flp'] < 0)) else 0)
    nxt = 0
    for i in range(80):
        while nxt < 80 and nxt <= i + LOOK and (nxt < 10 or i >= 2) and not (OPT['pw'] and i >= E0 and i % 2 == 1):
            if nxt in needn:
                A(f"s_waitcnt vmcnt({nvm - needn[nxt]})")
                assert nvm - needn[nxt] >= 0
                A("s_barrier")
                if OPT["fst"] == 1: stamp(A, min(6, 1 + list(needn).index(nxt)))
                if nxt == OPT["ca"] and not OPT["pre"] and not OPT["ra"]:
                    A("v_cmp_le_u32 vcc, 1, v6")
                    A("s_cmp_eq_u32 vcc_lo, -1")
                    A("s_cbranch_scc0 F_slow")
                    A.label("F_at")
                    late += [(g, max(i, late[-1][1]+1 if late else 0)+j) for j, g in enumerate(atd)]
            issue(nxt); nxt += 1
        if not OPT["pre"]:
            if i == E0 - 3:
                A(f"s_waitcnt vmcnt({5 if OPT['ra'] else 0})")
            if i == OPT["fchk"] and OPT["ks"]:
                A("v_or_b32 v21, 8, v21"); A(f"global_load_dwordx2 v[162:163], v21, {s(S_WS,2)} sc1")
            if E0 - 3 <= i < E0 - 1:
                for l in atr[i-(E0-3)]:
                    A(l)
                    if l.startswith("ds_"): issued.append(-1-(i-(E0-3)))
        if OPT["fst"] == 4 and i in (56, 58, 62, 68, 74, 77): stamp(A, 1 + (56, 58, 62, 68, 74, 77).index(i))
        n, k = seq[i]; s_, ph = k % 2, k // 2
        need_i(min(79, i+1) if (OPT['pw'] and i >= E0 and i % 2 == 0) else i)
        d = v(vAcc + 16*((i%2) if (OPT['alt'] and i < 56) else (n//4)), 16)
        A(f"v_mfma_f32_32x32x16_bf16 {d}, {v(vWf+8*(5*(n%4)+ph)+4*s_,4)}, {v(fr[i%NR],4)}, {'0' if i % 40 == 0 else d}")
        while late and late[0][1] <= i:
            for l in late.pop(0)[0]: A(l)
            nvm += 1
        if i == E0 and not OPT['pre']: need_i(-2)
        if i >= E0 and not OPT['fx'] & 4:
            for _ in range(OPT['epg'] if i < OPT['epx'] else OPT['ep2']):
                if epi:
                    if epi[0].startswith("ds_"): issued.append(-3)
                    A(epi.pop(0))
        if OPT["full"] and i == OPT["tb"] and OPT["mg"] != 1:
            assert issued.count(-3) == 2
            need_i(-3)
            if not OPT["fx"] & 8: A("s_barrier")
            for l in rd2(0): A(l); issued.append(-4)
        if OPT["full"] and i == OPT["tb"] + 3 and OPT["mg"] == 0:
            need_i(-4)
            if not OPT["fx"] & 16:
                for l in st2(0): A(l)
    assert not late
    stamp(A, 9)
    for l in epi + fin(1): A(l)
    sp = OPT["spec"]
    if OPT["fst"] == 5: stamp(A, 1)
    if sp:
        A(f"v_cmp_u_f32 vcc, v{vAcc+16}, v{vAcc+16}")
        A("s_or_b64 vcc, vcc, s[60:61]"); A("s_or_b32 s42, vcc_lo, vcc_hi")
        A("v_mov_b32 v6, s42")
        A("ds_write_b32 v20, v6 offset:40000")
    if OPT["mg"] == 2:
        A(f"s_waitcnt lgkmcnt({2+sp})")
        for l in st2(0): A(l)
    A("s_waitcnt lgkmcnt(0)"); A("s_barrier")
    if OPT["fst"] == 5: stamp(A, 2)
    RD = rd2(1) + (rd2(0) if OPT["mg"] == 1 else []); ST = st2(1) + (st2(0) if OPT["mg"] == 1 else [])
    for l in RD: A(l)
    if sp: A("ds_read_b128 v[8:11], v25 offset:40000")
    if OPT["mg"] == 3:
        for l in st2(0): A(l)
    for j, l in enumerate(ST):
        A(f"s_waitcnt lgkmcnt({len(ST)-1-j+sp})"); A(l)
    if OPT["fst"] == 5: stamp(A, 3)
    if sp:
        A("s_waitcnt lgkmcnt(0)")
        A("v_or3_b32 v8, v8, v9, v10"); A("v_or_b32 v8, v8, v11")
        A("v_readfirstlane_b32 s42, v8")
        if OPT["ks"]:
            A(f"s_mov_b32 s66, {OPT['spin']}")
            A("s_waitcnt vmcnt(4)")
            A.label("F_fchk")
            A("v_readfirstlane_b32 s44, v162"); A("v_readfirstlane_b32 s45, v163")
            A("s_cmp_ge_u32 s44, 8"); A("s_cbranch_scc1 F_fok")
            A("s_sleep 4")
            A(f"global_load_dwordx2 v[162:163], v21, {s(S_WS,2)} sc1")
            A("s_waitcnt vmcnt(0)")
            A("s_sub_u32 s66, s66, 1"); A("s_cmp_lg_u32 s66, 0"); A("s_cbranch_scc1 F_fchk")
            A.label("F_fok")
            A("s_or_b32 s42, s42, s45")
        A("s_cmp_eq_u32 s42, 0"); A("s_cbranch_scc1 F_end")
        A("s_cmp_lg_u32 s25, 0"); A("s_cbranch_scc1 F_end")
        A(f"s_mov_b32 s25, {8 if OPT['ks'] else 4}")
        A("s_waitcnt vmcnt(0)"); A("s_barrier")
        A("s_branch F_redo")
        A.label("F_end")
    if OPT["endw"] and gen.STAMPS: A("s_waitcnt vmcnt(0)")
    if OPT["hold"]:
        if OPT["dith"]:
            A("s_lshr_b32 s60, s68, 12"); A("s_mul_i32 s60, s60, 0x9E3779B1"); A("s_lshr_b32 s60, s60, 16"); A("s_mul_i32 s60, s60, 10000"); A("s_lshr_b32 s60, s60, 16")
            A("s_add_u32 s68, s68, s60"); A("s_mul_i32 s60, s25, 2500"); A("s_add_u32 s68, s68, s60")
        A(f"s_add_u32 s68, s68, {OPT['hold']}")
        A.label("F_hold")
        A("s_memrealtime s[60:61]"); A("s_waitcnt lgkmcnt(0)")
        A("s_sub_u32 s60, s60, s68"); A("s_cmp_lt_i32 s60, 0"); A("s_cbranch_scc1 F_hold")
    endpgm(A)
    if not OPT["pre"]:
        A.label("F_slow")
        if OPT["fst"] == 1: stamp(A, 7)
        poll(A, 20, S_WS, 1, "0xffff", vt=6, sleep=5)
        A("s_branch F_at")

def unpack(lines):
    out = []
    def half(op, hi):
        m = re.match(r"([vs])\[(\d+):(\d+)\]", op)
        return f"{m.group(1)}{int(m.group(2))+hi}"
    for l in lines:
        if not l.startswith("v_pk_"):
            out.append(l); continue
        i = Ins(l); n = len(i.ops) - 1
        def mod(name, dflt):
            m = re.search(name + r":\[([01,]+)\]", i.mods)
            return [int(x) for x in m.group(1).split(",")] if m else [dflt]*n
        sel, selh, nl, nh = mod("op_sel", 0), mod("op_sel_hi", 1), mod("neg_lo", 0), mod("neg_hi", 0)
        if i.op == "v_pk_mov_b32":
            out += [f"v_mov_b32 {half(i.ops[0],0)}, {half(i.ops[1],sel[0])}", f"v_mov_b32 {half(i.ops[0],1)}, {half(i.ops[2],sel[1])}"]
            continue
        base = {"v_pk_mul_f32": "v_mul_f32", "v_pk_add_f32": "v_add_f32", "v_pk_fma_f32": "v_fma_f32"}[i.op]
        two = []
        for hi, (se, ng) in enumerate(((sel, nl), (selh, nh))):
            srcs = [half(i.ops[1+k], se[k]) for k in range(n)]
            if n == 2:
                if base == "v_add_f32" and ng[1] and not ng[0]:
                    two.append(f"v_sub_f32 {half(i.ops[0],hi)}, {srcs[0]}, {srcs[1]}"); continue
                assert not any(ng)
                if srcs[1].startswith("s"): srcs = srcs[::-1]
            else:
                srcs = [("-" if ng[k] else "") + srcs[k] for k in range(n)]
            two.append(f"{base} {half(i.ops[0],hi)}, " + ", ".join(srcs))
        assert not (Ins(two[0]).w & Ins(two[1]).r), l
        out += two
    return out

def build(path):
    _lab[0] = 0
    A = Asm(); prologue(A)
    if OPT["hold"] and not gen.STAMPS: A("s_memrealtime s[68:69]")
    if OPT["nq"]:
        A("s_cmp_ge_u32 s2, 448"); A("s_cbranch_scc1 X_exit")
        A("s_lshr_b32 s3, s2, 4"); A("s_and_b32 s3, s3, 28"); A("s_lshr_b32 s3, 0x7462310, s3"); A("s_and_b32 s3, s3, 7"); A("s_lshl_b32 s3, s3, 6")
        A("s_andn2_b32 s2, s2, 0x1c0"); A("s_or_b32 s2, s2, s3")
        if gen.STAMPS: A("s_mov_b32 s67, s2")
    if OPT["rm"]:
        A("s_lshr_b32 s3, s2, 4"); A("s_and_b32 s3, s3, 28"); A("s_lshr_b32 s3, 0x72546310, s3"); A("s_and_b32 s3, s3, 7"); A("s_lshl_b32 s3, s3, 6")
        A("s_andn2_b32 s2, s2, 0x1c0"); A("s_or_b32 s2, s2, s3")
        if gen.STAMPS: A("s_mov_b32 s67, s2")
    A("s_sub_u32 s3, s2, 192"); A("s_cmp_ge_u32 s3, 16"); A("s_cbranch_scc1 nocpf")
    A("s_getpc_b64 s[44:45]")
    A("s_and_b32 s3, s3, 8"); A("s_lshl_b32 s3, s3, 12")
    A("v_lshl_add_u32 v3, v0, 7, s3")
    A("s_and_b32 s44, s44, 0xffffff00")
    A("v_min_u32 v3, X_exit-KERNEL, v3")
    A("global_load_dword v128, v3, s[44:45]")
    A.label("nocpf")
    A("v_and_b32 v1, 63, v0")
    A("v_lshrrev_b32 v2, 6, v0")
    A("v_readfirstlane_b32 s40, v2")
    A("s_and_b32 s6, s2, 7"); A("s_lshr_b32 s7, s2, 3")
    A("s_cmp_lt_u32 s2, 256"); A("s_cbranch_scc1 notA")
    A("s_setprio 3")
    A("s_cmp_ge_u32 s2, " + str({0: 512, 1: 0}.get(OPT["noA"], 512))); A("s_cbranch_scc1 X_exit")
    if OPT["noA"] == 2: A("s_cmp_lt_u32 s2, 448"); A("s_cbranch_scc1 X_exit")
    if OPT['nq']:
        A("s_lshr_b32 s60, s40, 1"); A("s_add_u32 s60, s60, 1"); A("s_and_b32 s43, s40, 1")
        A("s_lshl_b32 s42, s2, 1"); A("s_add_u32 s42, s42, s43")
        A("s_xor_b32 s43, s2, 448"); A("s_lshl_b32 s43, s43, 2"); A("s_add_u32 s43, s43, s40")
        A("s_cmp_ge_u32 s2, 384"); A("s_cselect_b32 s60, 0, s60"); A("s_cselect_b32 s41, s43, s42")
    else:
        A("s_lshr_b32 s60, s40, 1"); A("s_add_u32 s60, s60, 1"); A("s_and_b32 s43, s40, 1")
        A("s_lshl_b32 s42, s2, 1"); A("s_sub_u32 s42, s42, 256"); A("s_add_u32 s42, s42, s43")
        A("s_lshl_b32 s43, s2, 2"); A(f"s_sub_u32 s43, s43, {4*448}"); A("s_add_u32 s43, s43, s40")
        A("s_cmp_ge_u32 s2, 448"); A("s_cselect_b32 s60, 0, s60"); A("s_cselect_b32 s41, s43, s42")
    A_head(A)
    A.label("notA")
    if OPT["onlyA4"]: A("s_endpgm")
    A("s_cmp_lt_u32 s2, 192"); A("s_cbranch_scc1 isG")
    A("s_setprio 2")
    A("s_sub_u32 s5, s2, 192")
    A("s_cmp_eq_u32 s40, 3"); A("s_cbranch_scc1 notG")
    T_head(A, 5)
    A.label("isG")
    if OPT["noQ"]: A("s_cmp_ge_u32 s2, 128"); A("s_cbranch_scc1 X_exit")
    A("s_cmp_ge_u32 s2, 128"); A("s_cselect_b32 s63, 1, 0")
    A("s_and_b32 s41, s7, 3"); A("s_and_b32 s3, s6, 3"); A("s_lshl_b32 s3, s3, 2"); A("s_add_u32 s3, s3, s41")
    A("s_lshr_b32 s42, s7, 2")
    A("s_lshr_b32 s43, s6, 2"); A("s_sub_u32 s44, 2, s63"); A("s_lshl_b32 s43, s43, s44")
    A("s_and_b32 s4, s42, 3"); A("s_add_u32 s4, s4, s43")
    if OPT["grp"]:
        R1 = OPT["r1"]; R2 = 10 - R1
        A("s_add_u32 s5, s42, s41"); A("s_and_b32 s41, s6, 3"); A("s_add_u32 s5, s5, s41")
        A("s_lshr_b32 s41, s6, 2"); A("s_lshl_b32 s41, s41, 1"); A("s_add_u32 s5, s5, s41")
        def rotm(R, base, dst):
            mul = -(-256 // R)
            assert all((e*mul >> 8) == e // R for e in range(14))
            A(f"s_mul_i32 s41, s5, {mul}"); A("s_lshr_b32 s41, s41, 8"); A(f"s_mul_i32 s41, s41, {R}"); A("s_sub_u32 s41, s5, s41")
            A("s_lshl_b32 s41, s41, 2")
            pat = sum((base + k % R) << (4*k) for k in range(2*R-1))
            A(f"s_mov_b32 s{dst}, {hex(pat & 0xffffffff)}"); A(f"s_mov_b32 s{dst+1}, {hex(pat >> 32)}")
            A(f"s_lshr_b64 s[{dst}:{dst+1}], s[{dst}:{dst+1}], s41"); A(f"s_and_b32 s{dst}, s{dst}, {hex((1 << 4*R) - 1)}")
        if OPT["g3"]:
            rotm(3, 2, 64)
            A("s_lshl_b32 s64, s64, 8"); A("s_bitcmp1_b32 s5, 0"); A("s_cselect_b32 s41, 1, 16"); A("s_or_b32 s64, s64, s41")
        else: rotm(R1, 0, 64)
        if OPT["rev"]:
            A("s_and_b32 s41, s7, 3"); A("s_sub_u32 s5, s5, s41"); A(f"s_add_u32 s41, s41, {OPT['rev']}"); A("s_and_b32 s41, s41, 3"); A("s_add_u32 s5, s5, s41")
            rotm(R2, R1, 60)
        elif R1 == 5: A("s_add_u32 s60, s64, 0x55555")
        else: rotm(R2, R1, 60)
        A(f"s_lshr_b32 s65, s60, {32 - 4*R1}"); A(f"s_lshl_b32 s60, s60, {4*R1}"); A("s_or_b32 s64, s64, s60")
    else:
        A("s_mul_i32 s41, s41, 5"); A("s_add_u32 s41, s41, 1"); A("s_lshr_b32 s41, s41, 1")
        A("s_lshl_b32 s5, s42, 1"); A("s_add_u32 s5, s5, s41")
        A("s_and_b32 s41, s6, 3"); A("s_add_u32 s5, s5, s41"); A("s_lshr_b32 s41, s6, 2"); A("s_add_u32 s5, s5, s41")
        A("s_cmp_ge_u32 s5, 20"); A("s_cselect_b32 s41, 10, 0"); A("s_sub_u32 s5, s5, s41")
        A("s_cmp_ge_u32 s5, 10"); A("s_cselect_b32 s41, 10, 0"); A("s_sub_u32 s5, s5, s41")
        A("s_lshl_b32 s5, s5, 2")
        A("s_mov_b32 s64, 0x76543210"); A("s_mov_b32 s65, 0x98")
        A("s_sub_u32 s41, 40, s5"); A("s_lshl_b64 s[60:61], s[64:65], s41"); A("s_lshr_b64 s[64:65], s[64:65], s5"); A("s_or_b64 s[64:65], s[64:65], s[60:61]")
    A("s_setprio 2")
    G_start(A, 3, 4, 63, 5)
    A("s_cmp_eq_u32 s63, 1"); A("s_cbranch_scc1 Q_comp")
    G_compute(A, False, 3, 4, 5, "KV")
    A.label("Q_comp")
    G_compute(A, True, 3, 4, 5, "Q")
    A.label("notG")
    if OPT["noT"]: A("s_branch X_exit")
    T_role(A, 5)
    A("s_cmp_ge_u32 s2, 224"); A("s_cbranch_scc1 T_exit")
    A("s_sub_u32 s24, s2, 64"); A("s_mov_b32 s25, 0")
    A.label("F_redo")
    A("s_mov_b32 s10, 0"); A("v_mov_b32 v63, 0")
    F_pre(A, 24)
    for g in wo_dma(0) + wo_dma(1) + wo_dma(2) + wo_dma(3):
        for l in g: A(l)
    A("s_waitcnt vmcnt(5)"); A("s_barrier")
    for j in range(3):
        for l in wo_read(j, [234, 235, 236, 237]): A(l)
    A("s_waitcnt lgkmcnt(0)"); A("s_barrier")
    A.label("F_entry")
    F_role(A)
    A.label("T_exit")
    A("s_sub_u32 s41, s7, 28"); A("s_mul_i32 s41, s41, 160")
    A("v_lshrrev_b32 v2, 1, v0"); A("v_and_b32 v3, 1, v0"); A("v_add_u32 v2, s41, v2")
    A("v_mul_u32_u24 v2, 1280, v2"); A("v_lshl_add_u32 v2, v3, 7, v2")
    A(f"global_load_dword v4, v2, {s(S_WO,2)}")
    A(f"v_add_u32 v2, {32*1280}, v2")
    A("s_cmp_lt_u32 s40, 3"); A("s_cbranch_scc1 T_exit2")
    A(f"global_load_dword v5, v2, {s(S_WO,2)}")
    A.label("T_exit2")
    endpgm(A)
    A_chan(A)
    A.label("X_exit"); A("s_endpgm")
    kn = NAME + "_kernel"
    if OPT["nopk"]:
        if OPT["scalar"]: A.lines = unpack(A.lines)
        else:
            p0 = A.lines.index("A_pass:"); p1 = A.lines.index("s_cbranch_scc1 A_pass")
            A.lines = unpack(A.lines[:p0]) + A.lines[p0:p1] + unpack(A.lines[p1:])
    A.lines = [l.replace("CODE_END_OFF", f"X_exit-{kn}").replace("KERNEL", kn) for l in A.lines]
    emit([kernel_text(kn, A, 256)], [(kn, 448 if OPT['nq'] else 512, 256, LDS)], path)

if __name__ == "__main__":
    for a in sys.argv[1:]:
        k, val = a.split("="); OPT[k] = int(val)
    build("u.s"); gen.STAMPS = True; build("us.s")
```

```python
import sys, gen, re
from gen import *
from genG import srd, setexec
from g2 import phi4, cvt4

FULL = (1<<64)-1
KVH = 1680
KVG = 6784
CSH = int([a.split("=")[1] for a in sys.argv if a.startswith("csh=")][0]) if any(a.startswith("csh=") for a in sys.argv) else 8
WS_CQ = WS_KV + 8*KVG
WS_CF = WS_CQ + (64<<CSH)
WS_CA = WS_CF + (160<<CSH)
WS_FA = WS_CA
WS_CP = 0x680000
WS_UH = WS_CP + 200*256
WS_C2 = WS_FA + 324*128
ZPW = (8*KVG + (224<<CSH) + 328*128) // 8
WS_UT = 0 if 'al=1' in sys.argv else 0x900000
WSZ = 0xC00000
LDS = 81920
SPIN = 300000
OPT = dict(codepf=False, rot=2, l2pf=False, tpf=3, nopk=1, wh=0, ra=0, flp=-1, ep2=5, epx=74, mg=0, hk=0, lu=1, wop=0, sa=0, qd=1, gt=1, al=1, ex=0, mo=0, nq=0, pl=0, g3=0, pw=1, uh=448, oo=1, ov=1, tmg=1, kw=8, wd=1333, a4w=0, ep=0, pft=1, pfe=3, rm=0, xthr=0, finl=1, fchk=67, ks=1, kforce=0, t3=0, bal=0, tm=0, l2p=0, rev=1, wnt=0, tfix=1, a4d=0, sst=0, sig4=0, safe0=0, dith=0, sp=3, two=2, ls=10, w1=6, w1c=20, nb=4, cw=1, dofs=1, rc=1, peel=1, wb=3, kg=1, onlyA4=0, conv=0, ue=1, b0=2, a4t=1, noQ=0, fl0=0, py=0, la=2, spec=1, force=0, pre=0, ca=30, wsig=1, ast=0, lp=[0,1,2,3,5,7,9,11,13,15,17,19,21], aprio=1, epg=4, tb=76, fp=0, qs=2, e0=60, fs=1, gap=2, nq0=5, twait=0, wfirst=0, r1=5, pk=0, pq=0, full=1, endw=1, hold=0, tp=0, cadir=0, fx=0, alt=0, nr=7, ont=2, rs=4352, tw=0, gst=0, rtail=2, early=0, grp=1, thr=3, big=0, cut=0, dry=0, fst=0, osc1=1, nt=4, noA=0, noT=0, spin=300000, tdelay=0, scalar=True, sleep=2)

_lab = [0]
def poll(A, vaddr, sbase, vexp, mask, vt=2, first_loaded=False, sleep=None, cmp='le', spin=None):
    _lab[0] += 1; L = f"poll{_lab[0]}"
    A(f"s_mov_b32 s66, {spin or OPT['spin']}")
    if first_loaded: A(f"s_branch {L}c")
    A.label(L)
    A(f"global_load_dword v{vt}, v{vaddr}, {s(sbase,2)} sc1")
    A.label(L + "c")
    A("s_waitcnt vmcnt(0)")
    A(f"v_cmp_{cmp}_u32 vcc, {vexp}, v{vt}")
    A(f"s_and_b32 vcc_lo, vcc_lo, {mask}")
    A(f"s_cmp_eq_u32 vcc_lo, {mask}")
    A(f"s_cbranch_scc1 {L}d")
    A(f"s_sleep {sleep or OPT['sleep']}")
    A("s_sub_u32 s66, s66, 1")
    A("s_cmp_lg_u32 s66, 0")
    A(f"s_cbranch_scc1 {L}")
    A.label(L + "d")

def fpoll(A, vaddr, sbase, exp, vt, depth=3, gap=2):
    _lab[0] += 1; L = f"fp{_lab[0]}"
    A(f"s_mov_b32 s66, {OPT['spin']}")
    for k in range(depth-1):
        A(f"global_load_dword v{vt+k}, v{vaddr}, {s(sbase,2)} sc1"); A(f"s_sleep {gap}")
    A.label(L)
    for k in range(depth):
        A(f"global_load_dword v{vt+(k+depth-1)%depth}, v{vaddr}, {s(sbase,2)} sc1")
        A(f"s_waitcnt vmcnt({depth-1})")
        A(f"v_cmp_le_u32 vcc, {exp}, v{vt+k}")
        A(f"s_cbranch_vccnz {L}d")
        A(f"s_sleep {gap}")
    A("s_sub_u32 s66, s66, 1"); A("s_cmp_lg_u32 s66, 0"); A(f"s_cbranch_scc1 {L}")
    A.label(L + "d")

def signal(A, soff, base=S_WS, va=3, vd=2, val="1"):
    A("s_mov_b64 exec, 1")
    A(f"v_mov_b32 v{va}, s{soff}")
    A(f"v_mov_b32 v{vd}, {val}")
    A(f"global_atomic_add v{va}, v{vd}, {s(base,2)} sc1")
    A("s_mov_b64 exec, -1")

def lsignal(A, soff, base, val, total, flagoff, va=3, vd=2, fbase=None, hint=None):
    _lab[0] += 1; L = f"ls{_lab[0]}"
    A("s_mov_b64 exec, 1")
    A(f"v_mov_b32 v{va}, {soff}")
    A(f"v_mov_b32 v{vd}, {val}")
    A(f"global_atomic_add v{vd+2}, v{va}, v{vd}, {s(base,2)} sc0 sc1")
    A(f"v_add_u32 v{va}, {flagoff}, v{va}" if fbase is None else f"v_mov_b32 v{va}, {flagoff}")
    A("s_waitcnt vmcnt(0)")
    A(f"v_add_u32 v{vd+2}, v{vd+2}, v{vd}")
    A(f"v_cmp_eq_u32 vcc, {total}, v{vd+2}")
    A("s_and_b64 exec, exec, vcc")
    A(f"s_cbranch_execz {L}")
    A(f"global_store_dword v{va}, v{vd}, {s(base if fbase is None else fbase,2)} sc1")
    if hint:
        A(f"v_mov_b32 v{vd+2}, {hint}"); A("s_waitcnt vmcnt(0)")
        A(f"global_atomic_add v{vd+2}, v{vd}, {s(S_WS,2)} sc1")
    A.label(L)
    A("s_mov_b64 exec, -1")

def pflag(A, va, vd):
    A("s_lshl_b32 s58, s2, 8"); A(f"s_add_u32 s58, s58, {WS_CP}")
    A(f"v_mov_b32 v{va}, s58"); A(f"v_mov_b32 v{vd}, 1")
    A("s_mov_b64 exec, 1")
    A(f"global_atomic_add v{va}, v{vd}, {s(S_WS,2)} sc1")
    A("s_mov_b64 exec, -1")

def msignal(A, vaddr, nl, vd=2):
    A(f"v_mov_b32 v{vd}, 1")
    A(f"s_mov_b64 exec, {(1<<nl)-1}")
    A(f"global_atomic_add v{vaddr}, v{vd}, {s(S_WS,2)} sc1")
    A("s_mov_b64 exec, -1")

def spread(A, ms, fl, lead=0, tail=0):
    n = len(ms) - lead - tail
    for k, m_ in enumerate(ms):
        A(m_)
        kk = k - lead
        if 0 <= kk < n:
            for g in fl[(kk*len(fl))//n : ((kk+1)*len(fl))//n]:
                for l in ([g] if isinstance(g, str) else g): A(l)

G_X = 0; G_W = 32768; G_WS = 10240; G_GW = G_W + 4*G_WS
sKx, sKw, sMx, sMw = 43, 44, 46, 47
SX, SWq = 48, 52
vXA, vWA = 8, 12
def dmaX(j, slot):
    return [f"s_add_u32 m0, s{sMx}, {G_X + 16384*slot + 4096*j}", f"buffer_load_dwordx4 v{vXA+j}, {s(SX,4)}, s{sKx} offen lds"]
def dmaW(m, slot):
    return [f"s_add_u32 m0, s{sMw}, {2*G_WS*slot + 4096*m}", f"buffer_load_dwordx4 v{vWA+m}, {s(SWq,4)}, s{sKw} offen lds"]
sTab = 64
advK = [f"s_and_b32 s{sKw}, s{sTab}, 15", f"s_lshr_b64 s[{sTab}:{sTab+1}], s[{sTab}:{sTab+1}], 4",
        f"s_lshl_b32 s{sKx}, s{sKw}, 7", f"s_mul_i32 s{sKw}, s{sKw}, {64*3840}"]
def dma_even(slot): return [dmaX(0,slot), dmaW(0,slot), dmaX(1,slot), dmaW(1,slot), dmaX(2,slot)]
def dma_odd(slot): return [dmaW(2,slot), dmaX(3,slot), dmaW(3,slot), dmaW(4,slot) + advK]

def ntify(A, n0, n1=None):
    A.lines[n0:n1] = [(l.replace(" lds", " nt lds") if l.endswith(" lds") else l + " nt") if (l.startswith(("buffer_load", "global_load")) and "sc1" not in l) else l for l in A.lines[n0:n1]]

def G_start(A, sRB, sCG, sQ, sRot):
    n0 = len(A.lines)
    A("v_lshrrev_b32 v3, 3, v1")
    A("v_and_b32 v4, 7, v1")
    A("v_lshrrev_b32 v5, 4, v1")
    A("v_xor_b32 v4, v4, v5")
    A("v_mul_u32_u24 v3, 1280, v3")
    A("v_lshl_add_u32 v6, v4, 4, v3")
    A("s_and_b32 s57, s40, 1"); A("s_lshr_b32 s56, s40, 1")
    A("s_lshl_b32 s41, s57, 6"); A(f"s_mul_i32 s58, s57, {8*1280}")
    A("v_xor_b32 v6, s41, v6")
    A("s_mov_b32 s42, 0") if OPT["gt"] else A(f"s_and_b32 s42, s{sCG}, s{sQ}")
    A("s_xor_b32 s42, s42, s56")
    A(f"s_mul_i32 s41, s{sRB}, {128*1280}"); A("s_add_u32 s41, s41, s58")
    for j in range(4):
        A(f"s_xor_b32 s58, s42, {2*j}")
        A(f"s_mul_i32 s58, s58, {16*1280}")
        A("s_add_u32 s58, s58, s41")
        A(f"v_add_u32 v{vXA+j}, s58, v6")
    A(f"s_lshl_b32 s{sMx}, s40, 10"); A(f"s_add_u32 s{sMw}, s{sMx}, {G_W}")
    A(f"s_mov_b64 s[60:61], s[{sTab}:{sTab+1}]")
    for l in advK: A(l)
    wf = OPT["wfirst"]
    def xs():
        srd(A, SX, S_U, 2048*1280)
        if OPT["qd"]: A(f"s_cmp_eq_u32 s{sQ}, 1"); A("s_cbranch_scc1 G_nx")
        for j in range(4):
            for l in dmaX(j, 0): A(l)
        if OPT["qd"]: A.label("G_nx")
    if not wf:
        if OPT["sst"]: stamp(A, 7)
        A("s_waitcnt lgkmcnt(0)")
        if OPT["sst"]: stamp(A, 8)
        if not OPT['gt']:
            A(f"s_cmp_eq_u32 s{sQ}, 0"); A("s_cbranch_scc1 G_nogl")
            A("v_min_u32 v40, 79, v0")
            A("v_lshrrev_b32 v41, 3, v40"); A("v_lshlrev_b32 v41, 2, v41")
            A("v_lshrrev_b64 v[42:43], v41, s[60:61]")
            A("v_and_b32 v42, 15, v42"); A("v_and_b32 v40, 7, v40")
            A("v_lshlrev_b32 v40, 4, v40"); A("v_lshl_add_u32 v40, v42, 7, v40")
            A(f"global_load_dwordx4 v[24:27], v40, {s(S_GW,2)}")
            A.label("G_nogl")
        xs()
        srd(A, SWq, S_WQKV, 640*3840)
    A(f"s_cmp_eq_u32 s{sQ}, 1")
    A(f"s_cselect_b32 s59, 0, 1280"); A(f"s_cselect_b32 s62, 0, 1120"); A(f"s_lshl_b32 s58, 160, s{sQ}")
    A(f"s_mul_i32 s58, s58, s{sCG}"); A("s_add_u32 s58, s58, s59")
    A("v_mov_b32 v7, s62")
    for m in range(5):
        if m: A(f"v_add_u32 v3, {256*m}, v0")
        src = "v3" if m else "v0"
        A(f"v_mul_u32_u24 v4, 3277, {src}")
        A("v_lshrrev_b32 v4, 16, v4")
        A("v_mul_u32_u24 v5, 20, v4")
        A(f"v_sub_u32 v3, {src}, v5")
        A("v_lshrrev_b32 v5, 2, v4")
        A("v_and_b32 v5, 2, v5")
        A("v_xor_b32 v3, v3, v5")
        A("v_cmp_lt_u32 vcc, 9, v3")
        A("v_mul_u32_u24 v4, 3840, v4")
        A("v_lshl_add_u32 v4, v3, 4, v4")
        A("v_cndmask_b32 v5, 0, v7, vcc")
        A(f"v_add3_u32 v{vWA+m}, v4, v5, s58")
        if not wf:
            if OPT["qd"]: A(f"s_cmp_eq_u32 s{sQ}, 1"); A(f"s_cbranch_scc1 G_nw{m}")
            for l in dmaW(m, 0): A(l)
            if OPT["qd"]: A.label(f"G_nw{m}")
    if wf:
        A("s_waitcnt lgkmcnt(0)")
        if not OPT['gt']:
            A(f"s_cmp_eq_u32 s{sQ}, 0"); A("s_cbranch_scc1 G_nogl")
            A("v_min_u32 v40, 79, v0")
            A("v_lshrrev_b32 v41, 3, v40"); A("v_lshlrev_b32 v41, 2, v41")
            A("v_lshrrev_b64 v[42:43], v41, s[60:61]")
            A("v_and_b32 v42, 15, v42"); A("v_and_b32 v40, 7, v40")
            A("v_lshlrev_b32 v40, 4, v40"); A("v_lshl_add_u32 v40, v42, 7, v40")
            A(f"global_load_dwordx4 v[24:27], v40, {s(S_GW,2)}")
            A.label("G_nogl")
        srd(A, SWq, S_WQKV, 640*3840)
        for l in dmaW(2, 0): A(l)
        A(f"s_bitcmp1_b32 s{sRB}, {1 if OPT['g3'] else 0}"); A("s_cbranch_scc1 G_desc")
        for m in (0, 1):
            for l in dmaW(m, 0): A(l)
        A.label("G_desc")
        for m in (3, 4):
            for l in dmaW(m, 0): A(l)
        A(f"s_bitcmp1_b32 s{sRB}, {1 if OPT['g3'] else 0}"); A("s_cbranch_scc0 G_asc")
        for m in (0, 1):
            for l in dmaW(m, 0): A(l)
        A.label("G_asc")
        xs()
    if not OPT["qd"]:
        for l in advK: A(l)
    if OPT["sst"]: stamp(A, 9)

def G_compute(A, q, sRB, sCG, sRot, L):
    qg = q and not OPT['gt']
    sW, sT, sT2, sRH, sCH, sCnt = 40, 41, 42, 56, 57, 45
    vRA = 2; vRB = 17; vGA = 22; vGF = 24; vGacc = 32; vB = 36; vA = 76; vAcc = 140
    A(f"v_and_b32 v42, 15, v1")
    A(f"v_lshrrev_b32 v43, 4, v1")
    A(f"v_lshrrev_b32 v44, 1, v42")
    A(f"v_xor_b32 v44, v44, v43")
    A(f"v_lshlrev_b32 v45, 7, v42")
    A(f"s_lshl_b32 s{sT}, s{sRH}, 13")
    A(f"v_add_u32 v45, s{sT}, v45")
    A(f"v_lshl_add_u32 v{vRA}, v44, 4, v45")
    A(f"v_xor_b32 v{vRA+1}, 64, v{vRA}")
    A(f"v_lshrrev_b32 v44, 2, v42")
    A(f"v_and_b32 v45, 3, v42")
    A(f"v_lshl_add_u32 v44, v43, 3, v44")
    A(f"v_mul_u32_u24 v44, 320, v44")
    A(f"v_add_u32 v44, {G_W}, v44")
    A(f"v_and_b32 v46, 1, v43"); A(f"v_lshlrev_b32 v46, 5, v46")
    A(f"s_mul_i32 s{sT}, s{sCH}, {160 if q else 80}")
    toff = [0, 40, 80, 120] if q else [0, 40, 160, 200]
    for t in range(5):
        if t < 4:
            A(f"s_add_u32 s{sT2}, s{sT}, {toff[t]}")
            A(f"v_lshl_add_u32 v47, v45, 3, s{sT2}")
        else:
            A(f"s_add_u32 s{sT2}, s{sT}, 32")
            A(f"v_mul_u32_u24 v47, 40, v45")
            if not q:
                A(f"v_lshrrev_b32 v48, 1, v45"); A(f"v_mul_u32_u24 v48, 80, v48"); A(f"v_add_u32 v47, v47, v48")
            A(f"v_add_u32 v47, s{sT2}, v47")
        A(f"v_xor_b32 v47, v47, v46")
        A(f"v_add_u32 v{vRB+t}, v47, v44")
    A("v_mov_b32 v4, 0"); A("v_mov_b32 v5, 0")
    for i in range(0, 80, 2): A(f"v_pk_mov_b32 {v(vAcc+i,2)}, v[4:5], v[4:5]")
    if qg:
        for i in range(0, 4, 2):
            A(f"v_pk_mov_b32 {v(vGacc+i,2)}, v[4:5], v[4:5]"); A(f"v_pk_mov_b32 {v(230+i,2)}, v[4:5], v[4:5]")
        A(f"s_mov_b32 s{sT}, {G_GW}")
        A(f"v_lshl_add_u32 v{vGA}, v43, 4, s{sT}")
        A(f"v_lshlrev_b32 v40, 4, v0")
        A(f"v_add_u32 v40, {G_GW}, v40")
    HS = 6912
    vSt = 236; vMk = 242
    if q:
        A(f"s_lshl_b32 s{sT}, s{sRB}, 1"); A(f"s_add_u32 s{sT}, s{sT}, s{sRH}"); A(f"s_lshl_b32 s{sT}, s{sT}, 2")
        A(f"s_and_b32 s{sT2}, s{sCG}, 1"); A(f"s_add_u32 s{sT2}, s{sT2}, s{sT}"); A(f"s_lshl_b32 s{sT2}, s{sT2}, 6"); A(f"s_add_u32 s{sT2}, s{sT2}, {WS_G}")
        A(f"v_lshl_add_u32 v226, v42, 2, s{sT2}"); A("v_lshrrev_b32 v44, 5, v1"); A("v_lshl_add_u32 v226, v44, 7, v226")
        A(f"s_mul_i32 s{sT2}, s{sCH}, {KVG}")
        A("v_mul_u32_u24 v220, 80, v42"); A(f"v_add_u32 v220, s{sT2}, v220")
        A("v_lshl_add_u32 v221, v43, 4, v220")
        A("v_lshrrev_b32 v44, 2, v42"); A("v_and_b32 v45, 3, v42")
        A(f"v_mul_u32_u24 v222, {KVH}, v44"); A("v_mul_u32_u24 v223, 80, v45")
        A(f"v_add3_u32 v222, v222, v223, s{sT2}"); A("v_lshl_add_u32 v223, v43, 4, v222")
        A(f"v_mul_u32_u24 v224, {KVH}, v45"); A(f"v_add_u32 v224, s{sT2}, v224"); A("v_lshl_add_u32 v225, v43, 4, v224")
        A(f"s_mul_i32 s20, s{sCG}, 10240"); A(f"s_add_u32 s20, s20, {WS_OF}")
        A(f"s_mul_i32 s21, s{sT}, 20480"); A("s_add_u32 s20, s20, s21")
        A(f"s_lshl_b32 s21, s{sCH}, 11"); A("s_add_u32 s21, s21, s20")
        A("v_lshl_add_u32 v46, v1, 4, s21")
        A(f"s_lshl_b32 s21, s{sCH}, 10"); A("s_add_u32 s21, s21, s20"); A("s_add_u32 s21, s21, 8192")
        A("v_lshl_add_u32 v47, v1, 4, s21")
        A(f"s_and_b32 s20, s{sCG}, {0 if OPT['gt'] else 1}"); A("s_lshl_b32 s20, s20, 12"); A("s_sub_u32 s21, 4096, s20")
        for nt in range(4):
            if nt < 2: A(f"v_add_u32 v{vSt+nt}, s{20+nt}, v46")
            else: A(f"v_add_u32 v{vSt+nt}, 40960, v{vSt+nt-2}")
            if nt & 1: A(f"v_add_u32 v{vSt+4+nt//2}, {40960*(nt//2)}, v47")
        mk = [(43, h) for h in range(4)] + [(45, h) for h in range(4)] + [(44, h) for h in range(4)] + [(45, "v43"), (44, "v43")]
        for i, (r, c) in enumerate(mk):
            A(f"v_cmp_eq_u32 s[{20+2*(i%2)}:{21+2*(i%2)}], {c}, v{r}")
            if i: A(f"v_cndmask_b32 v{vMk+i-1}, 0, -1, s[{20+2*((i-1)%2)}:{21+2*((i-1)%2)}]")
        A(f"v_cndmask_b32 v{vMk+13}, 0, -1, s[22:23]")
        A(f"s_lshl_b32 s20, s{sRB}, 2"); A(f"s_add_u32 s20, s20, s{sCG}"); A(f"s_lshl_b32 s20, s20, {CSH}"); A(f"s_add_u32 s20, s20, {WS_CQ}")
        A("v_mov_b32 v227, s20")
        A(f"s_mul_i32 s20, s{sT}, {(5<<CSH)//4}"); A(f"s_add_u32 s20, s20, {WS_CF}")
        A(f"v_lshl_add_u32 v228, v1, {CSH}, s20")
        A("v_lshlrev_b32 v229, 4, v1")
    if not q:
        A("s_mov_b32 s24, s2"); A("s_mov_b32 s25, 0"); A("s_mov_b32 s10, 0")
        F_pre(A, 2)
        A(f"s_mul_i32 s{sT}, s{sRH}, {HS}"); A(f"s_mul_i32 s{sT2}, s{sCH}, {2*KVH}"); A(f"s_add_u32 s{sT}, s{sT}, s{sT2}"); A(f"s_add_u32 s{sT}, s{sT}, 61440")
        A("v_mul_u32_u24 v224, 80, v42"); A(f"v_add_u32 v224, s{sT}, v224")
        A("v_lshl_add_u32 v225, v43, 4, v224")
        A(f"v_mul_u32_u24 v228, {KVH}, v43")
        A("v_add_u32 v224, v224, v228")
        A("v_and_b32 v226, 3, v42"); A("v_add_u32 v226, 16, v226")
        A("v_cmp_eq_u32 vcc, 0, v42"); A("v_mov_b32 v227, 20"); A("v_cndmask_b32 v226, v226, v227, vcc")
        A("v_mul_u32_u24 v226, 80, v226"); A(f"v_add_u32 v226, s{sT}, v226")
        A("v_lshl_add_u32 v227, v43, 4, v226")
        A("v_add_u32 v228, v228, v226")
        A("v_lshlrev_b32 v229, 2, v0")
        A(f"s_mul_i32 s{sT}, s{sCG}, {KVG}"); A(f"s_add_u32 s{sT}, s{sT}, {WS_KV}")
        A(f"v_add_u32 v230, s{sT}, v229"); A("v_add_u32 v231, 4096, v230"); A("v_add_u32 v229, 61440, v229")
        A("v_mov_b32 v232, 0x3f803f80")
        if OPT["sa"]:
            A(f"v_cmp_le_u32 vcc, {420-256}, v0"); A("v_mov_b32 v238, 1680"); A("v_cndmask_b32 v238, 0, v238, vcc")
            A("v_add_u32 v239, v238, v230"); A("v_add_u32 v238, v238, v229")
            A(f"v_cmp_gt_u32 vcc, {840-768}, v0"); A("s_mov_b64 s[8:9], vcc")
        A("s_mov_b32 s22, 0xffff0000"); A("s_mov_b32 s23, 0")
    A("s_lshl_b32 s60, s2, 8"); A(f"s_add_u32 s60, s60, {WS_CP}")
    if OPT["nq"] and not q:
        A("v_mov_b32 v233, s60"); A("s_cmp_lt_u32 s2, 64"); A("s_cselect_b32 s61, 0x10000, 0"); A("s_add_u32 s60, s60, s61")
    A("v_mov_b32 v4, s60"); A("v_mov_b32 v5, 1"); A("v_mov_b32 v6, 0")
    A(f"s_mov_b32 s60, {hex(f2u(LOG2E))}"); A(f"s_mov_b32 s61, {hex(f2u(LOG2E))}")
    A(f"s_mov_b32 s62, {hex(f2u(1e-6))}")
    order = [0, 1, 4, 2, 3] if q else [4, 2, 3, 0, 1]
    def reads(i):
        bs = vB + 20*(i % 2)
        R = [f"ds_read_b64_tr_b16 {v(bs+4*t+2*h,2)}, v{vRB+t} offset:{G_WS*(i%4)+1280*h}" for t in order for h in range(2)]
        RA = []
        if i % 2 == 0:
            j = (i//2) % 2
            RA = [f"ds_read_b128 {v(vA+32*j+16*ks+4*mt,4)}, v{vRA+ks} offset:{G_X+16384*j+2048*mt}" for ks in range(2) for mt in range(4)]
        RG = [f"ds_read_b128 {v(vGF+4*(i%2),4)}, v{vGA} offset:{64*i}"] if qg else []
        if OPT["big"] == 1: R = R + R[:2]
        if OPT["big"] == 2: R = R + R; RA = RA[:4]
        return RA[:4] + R + RG + RA[4:]
    def mfmas(i):
        M = []
        bs = vB + 20*(i % 2); aa = vA + 32*((i//2) % 2) + 16*(i % 2)
        seq_ = [(t, mt) for k, t in enumerate(order) for mt in (range(4) if (k % 2 == 0 or OPT["mo"] != 1) else range(3, -1, -1))]
        if OPT["mo"] == 2: seq_ = seq_[:4] + [(t, mt) for k, mt in enumerate((3, 2, 1, 0)) for t in (order[1:] if k % 2 == 0 else order[:0:-1])]
        for t, mt in seq_:
            if True:
                d = v(vAcc + 20*mt + 4*t, 4)
                x, y = v(aa+4*mt,4), v(bs+4*t,4)
                M.append(f"v_mfma_f32_16x16x32_bf16 {d}, {y}, {x}, {d}" if q else f"v_mfma_f32_16x16x32_bf16 {d}, {x}, {y}, {d}")
        if OPT["big"]:
            M = [f"v_mfma_f32_32x32x16_bf16 {v(vAcc+16*t,16)}, {v(aa+4*k,4)}, {v(bs+4*t,4)}, {v(vAcc+16*t,16)}" for k in range(2) for t in range(5)]
        if qg: M.append(f"v_mfma_f32_16x16x32_bf16 {v(230,4)}, {v(vGF+4*(i%2),4)}, {v(aa+8,4)}, {v(230,4)}")
        if qg: M.append(f"v_mfma_f32_16x16x32_bf16 {v(vGacc,4)}, {v(vGF+4*(i%2),4)}, {v(aa,4)}, {v(vGacc,4)}")
        return M
    def step(i, dma, nwait, last=False, dm=None, latebar=None, fill=None):
        M = mfmas(i)
        if OPT["ex"] == 2 and dma: M = ["s_nop 3"] * len(M)
        NB = OPT["nb"]
        if OPT["cw"]:
            nrd = len(reads(i)); first = (4 if i % 2 == 0 else 0) + 2*((NB+3)//4)
            A(f"s_waitcnt lgkmcnt({nrd - first})")
        else: A("s_waitcnt lgkmcnt(0)")
        for k in range(NB): A(M[k])
        M = [None, None] + M[NB:]
        if not last and latebar is None:
            if nwait is not None: A(f"s_waitcnt vmcnt({nwait})" + (" lgkmcnt(0)" if OPT["cw"] else ""))
            A("s_barrier")
        elif OPT["cw"]:
            A("s_waitcnt lgkmcnt(0)")
            if last and not q: A("s_barrier")
        rd = [] if (last or latebar is not None) else reads(i+1)
        if OPT["ex"] == 1 and dma: rd = ["s_nop 0"] * len(rd)
        if OPT["ex"] == 3 and dma: dm = [["s_nop 0", "s_nop 7"]] * 4
        if dm is None: dm = (dma_even((i//2) % 2) if i % 2 == 0 else dma_odd((i//2) % 2)) if dma else []
        n = len(M) - 2
        nr = n - OPT["rtail"]
        rc = OPT["rc"]
        grp_ = [rd[k:k+rc] for k in range(0, len(rd), rc)]
        for mi in range(n):
            if mi < nr:
                for g_ in grp_[-(-mi*len(grp_)//nr) : -(-(mi+1)*len(grp_)//nr)] if rc > 1 else [rd[(mi*len(rd))//nr : ((mi+1)*len(rd))//nr]]:
                    for l in g_: A(l)
            g = None
            for k in range(len(dm)):
                if mi == (k*n)//len(dm) + OPT['dofs']: g = dm[k]
            if g: A(g[0])
            A(M[2+mi])
            if g:
                for l in g[1:]: A(l)
            elif fill and mi >= 3:
                for _ in range(2): A(fill.pop(0))
        if latebar is not None:
            A(f"s_waitcnt vmcnt({nwait})")
            A("s_barrier")
            for l in reads(i+1): A(l)
            for g in latebar:
                for l in g: A(l)
    if OPT["sst"]: stamp(A, 6)
    pl0 = [(vSt+nt, o_) for nt in range(4) for o_ in (0, 1024)] + [(vSt+4, 0), (vSt+5, 0)]
    if OPT["qd"]:
        if q:
            for i in range(4): A(f"v_mov_b32 v{36+i}, -1")
            for k in range(OPT["qd"] - 1):
                a_, o_ = pl0.pop()
                A(f"global_store_dwordx4 v{a_}, v[36:39], {s(S_WS,2)} offset:{o_} sc1")
            A("s_waitcnt vmcnt(0)")
            for g in [dmaX(j, 0) for j in range(4)] + [dmaW(m, 0) for m in range(5)]:
                for l in g: A(l)
        for l in advK: A(l)
    for g in dma_even(1) + ([] if OPT["early"] else dma_odd(1)):
        for l in g: A(l)
    stamp(A, 1)
    nb = 5 if OPT["early"] else 9
    if qg:
        A(f"v_cmp_gt_u32 vcc, 80, v0")
        A(f"s_waitcnt vmcnt(18)")
        A(f"s_and_saveexec_b64 s[58:59], vcc")
        A(f"ds_write_b128 v40, {v(vGF,4)}")
        A(f"s_mov_b64 exec, -1")
    A(f"s_waitcnt vmcnt({5 if OPT['early'] else 9 if OPT['wfirst'] else 11}) lgkmcnt(0)")
    A("s_barrier")
    stamp(A, 2)
    if OPT["wh"]: A("s_memrealtime s[70:71]")
    if OPT["sst"]: endpgm(A)
    for l in reads(0): A(l)
    A(f"s_mov_b32 s{sCnt}, 4")
    if OPT["early"]:
        step(0, True, None, dm=dma_odd(1))
        step(1, True, 7, dm=dma_even(0), latebar=dma_odd(0))
        A(f"s_branch {L}_mid")
    A(".p2align 3")
    A.label(f"{L}_loop")
    for i in range(4):
        if i == 2: A.label(f"{L}_mid")
        if OPT["gst"] and gen.STAMPS and i % 2 == 0:
            for k in range(1, 9): A(f"s_mov_b32 s{70+2*k}, s{72+2*k}")
            A("s_memtime s[88:89]")
        step(i, True, 9 if i % 2 == 0 else 7)
    if qg: A(f"v_add_u32 v{vGA}, 256, v{vGA}")
    A(f"s_sub_u32 s{sCnt}, s{sCnt}, 1")
    A(f"s_cmp_lg_u32 s{sCnt}, 0")
    A(f"s_cbranch_scc1 {L}_loop")
    if OPT["gst"]:
        A("s_waitcnt vmcnt(0) lgkmcnt(0)"); endpgm(A)
    stamp(A, 3)
    def pf():
        A("s_mov_b64 exec, 1")
        A(f"global_atomic_add v4, v5, {s(S_WS,2)} sc1")
        A("s_mov_b64 exec, -1")
    pp = max(0, OPT["pq"]) if q else OPT["pk"]
    pl = pl0
    k_ = OPT["pft"] if q else 0
    wl = [wo_piece(*x) for x in ((0,0),(0,1),(0,2),(0,3),(1,3),(1,4),(2,0),(2,1),(2,2),(0,4),(1,0),(1,1),(1,2),(2,3),(2,4))]
    wd = [int(c) for c in ("%04d" % OPT["wd"])]
    assert wd[0] <= 6 and wd[0] + wd[1] <= 9
    cum = [k_, 2*k_] if q else [wd[0], wd[0]+wd[1]]
    def pst():
        if not q:
            n = wd.pop(0); G = wl[:n]; del wl[:n]
            return G
        G = [["s_nop 0", f"global_store_dwordx4 v{a}, v[8:11], {s(S_WS,2)} offset:{o_} sc1"] for a, o_ in pl[:k_]]
        del pl[:k_]
        return G
    if k_ and q:
        for i in range(4): A(f"v_mov_b32 v{8+i}, -1")
    if pp == 0: pf()
    step(0, False, 9 + (pp < 1), dm=pst())
    if pp == 1: pf()
    step(1, False, 2 + (pp < 2) + cum[0], dm=pst())
    if pp == 2: pf()
    A(f"global_load_dword v7, v6, {s(S_DBG,2)} sc1")
    step(2, False, 1 + (pp < 3) + cum[1], dm=pst())
    if pp == 3: pf()
    acc = lambda mt, t: vAcc + 20*mt + 4*t
    V0 = None
    if not q:
        op = lambda nm, p: 36 + 8*["K0","K1","V0","V1","TA","TB"].index(nm) + 4*p
        tmp = [112, 116]
        def ph(nm, t_, p): return phi4(acc(2*p,t_), op(nm,p), tmp[0]) + phi4(acc(2*p+1,t_), op(nm,p)+2, tmp[1])
        def vs(p):
            V = []
            for half in range(2):
                mt = 2*p + half
                V += cvt4(acc(mt,4), op("TB",p)+2*half)
                V += [f"v_cndmask_b32 v{op('TB',p)+2*half+kk}, v{op('TB',p)+2*half+kk}, v232, vcc" for kk in range(2)]
            return V
        def vv(p): return [l for half in range(2) for l in cvt4(acc(2*p+half,2), op("V0",p)+2*half) + cvt4(acc(2*p+half,3), op("V1",p)+2*half)]
        if OPT["tmg"]:
            mg = [f"v_mov_b32_dpp v{acc(h,4)+k}, v{acc(h+2,4)+k} row_shr:8 row_mask:0xf bank_mask:0xc" for h in range(2) for k in range(4)]
            um = [f"v_mov_b32_dpp v{op('TA',1)+k}, v{op('TA',0)+k} row_ror:8 row_mask:0xf bank_mask:0xf" for k in range(4)]
            V0 = vs(0) + vs(1) + mg + ph("TA",4,0) + vv(0) + um + vv(1)
        else:
            V0 = vs(0) + vs(1) + ph("TA",4,0) + vv(0) + ph("TA",4,1) + vv(1)
        V0 = unpack(V0)
        A(f"s_mov_b32 vcc_lo, 0x00ff00ff"); A(f"s_mov_b32 vcc_hi, 0x00ff00ff")
    step(3, False, 0, last=True, dm=pst(), fill=V0 if OPT["ov"] else None)
    stamp(A, 4)
    acc = lambda mt, t: vAcc + 20*mt + 4*t
    if not q:
        op = lambda nm, p: 36 + 8*["K0","K1","V0","V1","TA","TB"].index(nm) + 4*p
        vPp = 84; tmp = [112, 116]
        prods = [("K0","V0"),("K1","V1"),("K0","TB"),("K1","TB"),("TA","V0"),("TA","V1"),("TA","TB")]
        pm = lambda n, p: f"v_mfma_f32_16x16x32_bf16 {v(vPp+4*n,4)}, {v(op(prods[n][0],p),4)}, {v(op(prods[n][1],p),4)}, {'0' if p==0 else v(vPp+4*n,4)}"
        def wv(V, ms):
            ms = list(ms); st = max(1, len(V)//(len(ms)+1))
            for n, l in enumerate(V):
                A(l)
                if ms and n % st == st-1:
                    g = ms.pop(0)
                    for x in ([g] if isinstance(g, str) else g): A(x)
            for g in ms:
                for x in ([g] if isinstance(g, str) else g): A(x)
        def ph(nm, t_, p): return phi4(acc(2*p,t_), op(nm,p), tmp[0]) + phi4(acc(2*p+1,t_), op(nm,p)+2, tmp[1])
        def vs(p):
            V = []
            for half in range(2):
                mt = 2*p + half
                V += cvt4(acc(mt,4), op("TB",p)+2*half)
                V += [f"v_cndmask_b32 v{op('TB',p)+2*half+kk}, v{op('TB',p)+2*half+kk}, v232, vcc" for kk in range(2)]
            return V
        def vv(p): return [l for half in range(2) for l in cvt4(acc(2*p+half,2), op("V0",p)+2*half) + cvt4(acc(2*p+half,3), op("V1",p)+2*half)]
        mrg = lambda d, s_, m: [f"v_cndmask_b32 v{vPp+4*d+k}, v{vPp+4*d+k}, v{vPp+4*s_+k}, s[{m}:{m+1}]" for k in range(4)]
        def wr(a, n, lo, hi, off=0):
            return [f"s_mov_b32 exec_lo, {lo}", f"s_mov_b32 exec_hi, {hi}", f"ds_write_b128 v{a}, {v(vPp+4*n,4)} offset:{off}", "s_mov_b64 exec, -1"]
        lb = [[l for g in wl[k:k+3] for l in g] for k in range(0, len(wl), 3)]
        def late():
            A("s_cmp_ge_u32 s2, 64"); A("s_cbranch_scc1 KV_nl"); A("s_cmp_lg_u32 s40, 0"); A("s_cbranch_scc1 KV_nl")
            A("s_mov_b64 exec, 1"); A(f"global_atomic_add v233, v5, {s(S_WS,2)} sc1"); A("s_mov_b64 exec, -1")
            A.label("KV_nl")
        if OPT["nq"] and OPT["pl"] == 0: late()
        wv(V0, lb)
        if OPT["nq"] and OPT["pl"] == 1: late()
        wv(ph("K0",0,0), [pm(4,0), pm(5,0), pm(6,0), pm(4,1), pm(5,1), pm(6,1)])
        wv(ph("K0",0,1), [pm(0,0), pm(2,0), mrg(4,5,22), wr(228,6,"0xf0010f01",0,64)])
        if OPT['sa']:
            def rds(hb): return [f"ds_read_b32 v{12+2*k+c}, v{238 if k == 1 else 229} offset:{1024*k + (1680 if k > 1 else 0) + hb*KVH + c*HS}" for k in range(4) for c in range(2)]
            def ats(hb, tag):
                G = []
                for k in range(4):
                    g = [f"v_add_f32 v{12+2*k}, v{12+2*k}, v{13+2*k}"]
                    o_ = 1024*k + (1680 if k > 1 else 0) + hb*KVH
                    a_ = 239 if k == 1 else (230 if o_ < 4096 else 231)
                    if a_ == 231: o_ -= 4096
                    at = f"global_atomic_add_f32 v{a_}, v{12+2*k}, {s(S_WS,2)} offset:{o_}"
                    g += ["s_mov_b64 exec, s[8:9]", f"s_cbranch_execz {tag}", at] + ([f"{tag}:", "s_mov_b64 exec, -1"] if hb == 0 else []) if k == 3 else [at]
                    G.append(g)
                return G
            wv(ph("K1",1,0), [pm(0,1), pm(2,1), wr(224,4,-1,0,64), f"ds_write_b128 v225, {v(vPp,4)}", wr(227,2,"0x0f010f01","0x0f010f01")])
            poll(A, 6, S_DBG, 64, 1, vt=7, first_loaded=True)
            A("s_waitcnt lgkmcnt(0)")
            A("s_barrier")
            for l in rds(0): A(l)
            a0 = ats(0, "KV_sk0")
            wv(ph("K1",1,1), [pm(1,0), pm(3,0), ["s_waitcnt lgkmcnt(0)"] + a0[0] + a0[1], a0[2] + a0[3]])
            A(pm(1,1)); A(pm(3,1))
            stamp(A, 5)
            A(f"ds_write_b128 v225, {v(vPp+4,4)} offset:{KVH}")
            for l in wr(227,3,"0xf001f001","0xf001f001",KVH): A(l)
            A("s_waitcnt lgkmcnt(0)")
            A("s_barrier")
            if OPT["kforce"]:
                A(f"s_lshr_b32 s{sT}, s{sCG}, 1"); A(f"s_lshl_b32 s{sT}, s{sT}, {CSH}"); A(f"s_add_u32 s{sT}, s{sT}, {WS_CQ}")
                A(f"v_lshl_add_u32 v5, v1, {CSH+2}, s{sT}")
                A("s_cmp_lg_u32 s40, 0"); A("s_cbranch_scc1 KV_nf"); msignal(A, 5, 16); A.label("KV_nf")
                A("s_sleep 40")
            for l in rds(1): A(l)
            for k, g in enumerate(ats(1, f"{L}_skip")):
                A(f"s_waitcnt lgkmcnt({6-2*k})")
                for l in g: A(l)
        else:
            wv(ph("K1",1,0), [pm(0,1), pm(2,1), wr(224,4,-1,0,64)])
            wv(ph("K1",1,1), [pm(1,0), pm(3,0), f"ds_write_b128 v225, {v(vPp,4)}", wr(227,2,"0x0f010f01","0x0f010f01")])
            A(pm(1,1)); A(pm(3,1))
            stamp(A, 5)
            poll(A, 6, S_DBG, 64, 1, vt=7, first_loaded=True)
            A(f"ds_write_b128 v225, {v(vPp+4,4)} offset:{KVH}")
            for l in wr(227,3,"0xf001f001","0xf001f001",KVH): A(l)
            A(f"v_cmp_gt_u32 vcc, {1680-1536}, v0")
            A("s_waitcnt lgkmcnt(0)")
            A("s_barrier")
            if OPT["kforce"]:
                A(f"s_lshr_b32 s{sT}, s{sCG}, 1"); A(f"s_lshl_b32 s{sT}, s{sT}, {CSH}"); A(f"s_add_u32 s{sT}, s{sT}, {WS_CQ}")
                A(f"v_lshl_add_u32 v5, v1, {CSH+2}, s{sT}")
                A("s_cmp_lg_u32 s40, 0"); A("s_cbranch_scc1 KV_nf"); msignal(A, 5, 16); A.label("KV_nf")
                A("s_sleep 40")
            for k in range(7):
                A(f"ds_read2st64_b32 {v(12+2*k,2)}, v229 offset0:{4*k} offset1:{4*k+HS//256}")
            for k in range(7):
                A(f"s_waitcnt lgkmcnt({6-k})")
                A(f"v_add_f32 v{12+2*k}, v{12+2*k}, v{13+2*k}")
                if k == 6:
                    A("s_and_saveexec_b64 s[58:59], vcc")
                    A(f"s_cbranch_execz {L}_skip")
                A(f"global_atomic_add_f32 v{230 if k<4 else 231}, v{12+2*k}, {s(S_WS,2)} offset:{1024*(k%4)}")
        A.label(f"{L}_skip")
        A("s_mov_b64 exec, -1")
        A(f"s_lshr_b32 s{sT}, s{sCG}, 1"); A(f"s_lshl_b32 s{sT}, s{sT}, {CSH}"); A(f"s_add_u32 s{sT}, s{sT}, {WS_CQ}")
        if OPT["sig4"]:
            A(f"s_lshl_b32 s{sT2}, s40, {CSH+4}"); A(f"s_add_u32 s{sT}, s{sT}, s{sT2}")
        A(f"v_lshl_add_u32 v5, v1, {CSH+2}, s{sT}")
        rd3 = [l for j in range(3) for l in wo_read(j, [234, 235, 236, 237])]
        if OPT["ks"]:
            if OPT["kw"] < 9:
                for l in rd3: A(l)
                A(f"s_waitcnt vmcnt({OPT['kw']}) lgkmcnt(0)")
            A("s_barrier")
            A("s_cmp_lg_u32 s40, 3"); A("s_cbranch_scc1 KV_nosig")
            if not OPT["kforce"]: msignal(A, 5, 16)
            A("s_mov_b32 s10, 1")
            A("v_add_u32 v63, 128, v5")
            A.label("KV_nosig")
            stamp(A, 6)
            for g in wo_dma(3):
                for l in g: A(l)
            if OPT["kw"] == 9:
                for l in rd3: A(l)
                A("s_waitcnt lgkmcnt(0)"); A("s_barrier")
        else:
            for l in rd3: A(l)
            A("s_waitcnt lgkmcnt(0)"); A("s_barrier")
            for g in wo_dma(3):
                for l in g: A(l)
            A("s_waitcnt vmcnt(5)")
            A("s_barrier")
            A("s_cmp_lg_u32 s40, 0"); A("s_cbranch_scc1 KV_nosig")
            msignal(A, 5, 16)
            A.label("KV_nosig")
            stamp(A, 6)
        A("s_branch F_entry")
    else:
        vQ = 36
        vAN = 84; vAD = 100; vAM = 112; vEps = 124; vK = 132; vD = 180; vN = 196
        for i in range(4): A(f"v_mov_b32 v{20+i}, -1")
        srd(A, SX, S_WS, WSZ)
        A("s_mov_b32 s44, 0xffff0000"); A("s_mov_b32 s45, 0xffff0000"); A("s_mov_b32 s46, 0"); A("s_mov_b32 s47, -1")
        if qg:
            A(f"v_cndmask_b32 v4, v{vGacc}, v230, s[46:47]")
            A(f"v_mul_f32 v4, {hex(f2u(-LOG2E))}, v4")
            A("v_exp_f32 v4, v4"); A("v_add_f32 v4, 1.0, v4"); A("v_rcp_f32 v4, v4")
            A(f"global_store_dword v226, v4, {s(S_WS,2)} sc1")
        A(f"s_mul_i32 s43, s{sCG}, {2*KVG}"); A(f"s_add_u32 s43, s43, {WS_KV}")
        pf_ = lambda a, o_: A(f"global_store_dwordx4 v{a}, v[20:23], {s(S_WS,2)} offset:{o_} sc1" + (" nt" if OPT["wnt"] & 2 else "")) if OPT["spec"] else None
        if OPT['pfe']:
            def pfs(n):
                for _ in range(n):
                    if pl: pf_(*pl.pop(0))
            for nt in range(4):
                b = vQ + 12*nt
                for t_, o_, tm in ((0, 0, 24), (4, 2, 28), (1, 4, 24), (2, 6, 28), (3, 10, 24)):
                    if OPT["pfe"] < 3 or t_ in (0, 1): pfs(OPT["pfe"] % 3 or 1) if OPT["pfe"] < 3 else pfs(1)
                    for l in phi4(acc(nt,t_), b+o_, tm): A(l)
                A(f"v_pk_mov_b32 {v(b+8,2)}, {v(b+2,2)}, {v(b+2,2)} op_sel:[0,1]")
        else:
            for nt in range(4):
                b = vQ + 12*nt
                pf_(vSt+nt, 0)
                for l in phi4(acc(nt,0), b, 24): A(l)
                for l in phi4(acc(nt,4), b+2, 28): A(l)
                pf_(vSt+nt, 1024)
                for l in phi4(acc(nt,1), b+4, 24): A(l)
                if nt % 2 == 0: pf_(vSt+4+nt//2, 0)
                for l in phi4(acc(nt,2), b+6, 28): A(l)
                A(f"v_pk_mov_b32 {v(b+8,2)}, {v(b+2,2)}, {v(b+2,2)} op_sel:[0,1]")
                for l in phi4(acc(nt,3), b+10, 24): A(l)
        for r in (vAD+8, vAD+9, vAM+8, vAM+9): A(f"v_mov_b32 v{r}, 0")
        for i in range(4): A(f"v_mov_b32 v{vEps+i}, s62")
        A("v_mov_b32 v19, v228")
        for i in range(6): A(f"v_mov_b32 v{8+i}, v{220+i}")
        A("v_add_u32 v14, 128, v227"); A("v_mov_b32 v15, v229"); A("s_mov_b32 s41, 0")
        poll(A, 6, S_DBG, 64, 1, vt=7, first_loaded=True)
        stamp(A, 5)
        A("s_cmp_lg_u32 s40, 0"); A("s_cbranch_scc1 Q_nopoll")
        A("s_mov_b64 exec, 1")
        A("s_mov_b32 m0, 0")
        if OPT["fp"]: fpoll(A, 227, S_WS, 32, 128, OPT["fp"], OPT["gap"])
        else: poll(A, 227, S_WS, 32, 1, vt=7, sleep=OPT["qs"])
        A("s_mov_b64 exec, -1")
        stamp(A, 6)
        for gq in range(2):
            for j in range(7):
                if j % 4 == 0 and (gq or j):
                    A(f"s_mov_b32 m0, {KVG*gq + 1024*j}")
                    A(f"s_add_u32 s58, s43, {KVG*gq + 1024*j}")
                A(f"buffer_load_dwordx4 v229, {s(SX,4)}, s{58 if (gq or j>=4) else 43} offen" + (f" offset:{1024*(j%4)}" if j%4 else "") + " sc1 lds")
        A("s_waitcnt vmcnt(0)")
        A.label("Q_nopoll")
        A("s_barrier")
        stamp(A, 7)
        A.label("Q_o")
        A(f"ds_read_b128 {v(vK+40,4)}, v13 offset:1600")
        A(f"ds_read_b128 {v(vK+44,4)}, v12 offset:{1600+64}")
        for h in range(4):
            A(f"ds_read_b128 {v(vK+8*h,4)}, v9 offset:{KVH*h}")
            A(f"ds_read_b128 {v(vK+8*h+4,4)}, v8 offset:{KVH*h+64}")
        A(f"ds_read_b128 {v(vK+32,4)}, v11 offset:1280")
        A(f"ds_read_b128 {v(vK+36,4)}, v10 offset:{1280+64}")
        mo = lambda h: 0 if h % 2 == 0 else 2
        to = lambda h: 2 - mo(h)
        bq = lambda nt, h: vQ + 12*nt + [0, 2, 6, 8][h]
        def tri(raw, dst, mbase, mt):
            V = cvt4(raw, raw) + cvt4(raw+4, raw+4)
            for k in range(2): V.append(f"v_and_b32 v{dst+k}, v{raw+k}, v{mbase}")
            for k in range(2): V.append(f"v_and_b32 v{dst+2+k}, v{raw+4+k}, v{mt}")
            for h, o in ((1, 4), (2, 6), (3, 10)):
                for k in range(2): V.append(f"v_and_b32 v{dst+o+k}, v{raw+k}, v{mbase+h}")
            return V
        def trim(dreg, frag, nt, c0):
            return [f"v_mfma_f32_16x16x32_bf16 {v(dreg,4)}, {v(frag+4*k,4)}, {v(vQ+12*nt+4*k,4)}, {c0 if k==0 else v(dreg,4)}" for k in range(3)]
        def weave(ms, V, lead=0):
            ms = list(ms)
            for l in ms[:lead]: A(l)
            ms = ms[lead:]
            n = len(ms)
            pos = [(k*len(V))//max(1,n) for k in range(n)]
            for i_, l in enumerate(V):
                while pos and pos[0] == i_:
                    A(ms.pop(0)); pos.pop(0)
                A(l)
            for l in ms: A(l)
        if OPT["force"]: msignal(A, 19, 5)
        A("s_waitcnt lgkmcnt(10)")
        for l in tri(vK+40, vAD, vMk+4, vMk+12): A(l)
        dm = [trim(vD+4*nt, vAD, nt, v(vEps,4)) for nt in range(4)]
        dl = [dm[nt][k] for k in range(3) for nt in (2, 3)] if OPT["oo"] else []
        dm = [dm[nt][k] for k in range(3) for nt in ((0, 1) if OPT["oo"] else range(4))]
        VA = []
        for h in range(4):
            VA.append(f"s_waitcnt lgkmcnt({8-2*h})")
            VA += cvt4(vK+8*h, vAN+4*h+mo(h)) + cvt4(vK+8*h+4, vK+8*h+4)
            VA += [f"v_and_b32 v{vAN+4*h+to(h)+k}, v{vK+8*h+4+k}, v{vMk+h}" for k in range(2)]
        weave(dm, VA)
        def Nreg(nt, h): return vN + 20*(nt % 2) + 4*h
        def Mreg(nt): return vN + 20*(nt % 2) + 16
        def mn(nt): return [f"v_mfma_f32_16x16x32_bf16 {v(Nreg(nt,h),4)}, {v(vAN+4*h,4)}, {v(bq(nt,h),4)}, 0" for h in range(4)]
        def mm(nt): return trim(Mreg(nt), vAM, nt, "0")
        def rcp(nt): return [f"v_rcp_f32 v{vD+4*nt+i}, v{vD+4*nt+i}" for i in range(4)]
        def post(nt):
            V = []
            d = vD + 4*nt
            o = vK + 8*nt
            for h in range(4):
                n = Nreg(nt,h)
                V += [f"v_mul_f32 v{n+k}, v{n+k}, v{d+h}" for k in range(4)]
                V += cvt4(n, o+2*h)
                if h & 1: V.append(f"global_store_dwordx4 v{vSt+nt}, {v(o+2*h-2,4)}, {s(S_WS,2)} offset:{512*(h-1)} sc1")
            V.append(f"v_cndmask_b32 v16, v{d}, v{d+1}, s[44:45]")
            V.append(f"v_cndmask_b32 v17, v{d+2}, v{d+3}, s[44:45]")
            V.append(f"v_cndmask_b32 v16, v16, v17, s[46:47]")
            m_ = Mreg(nt)
            V += [f"v_mul_f32 v{m_+k}, v{m_+k}, v16" for k in range(4)]
            t4 = 20 + 4*(nt >> 1)
            V += cvt4(m_, t4 + 2*(nt & 1))
            if nt & 1: V.append(f"global_store_dwordx4 v{vSt+4+nt//2}, {v(t4,4)}, {s(S_WS,2)} sc1")
            return V
        A("s_waitcnt lgkmcnt(0)")
        weave(mn(0) + mn(1), tri(vK+32, vAM, vMk+8, vMk+13) + rcp(0))
        if OPT["two"] and OPT["sp"] == 0: msignal(A, 19, 5)
        weave(mm(0) + mm(1), post(0)[:20])
        if OPT["two"] and OPT["sp"] == 1: msignal(A, 19, 5)
        for l in post(0)[20:] + rcp(1): A(l)
        if OPT["two"] and OPT["sp"] == 2: msignal(A, 19, 5)
        if OPT['oo']:
            p1 = post(1)
            for l in p1[:-9]: A(l)
            weave(dl[:4], p1[-9:])
            msignal(A, 19, 5)
            for l in dl[4:] + mn(2) + mm(2) + mn(3)[:2]: A(l)
            for l in rcp(2): A(l)
            weave(mn(3)[2:] + mm(3), post(2)[:28])
        else:
            weave(mn(2) + mm(2), post(1)[:28])
            for l in post(1)[28:]: A(l)
            if OPT["two"] and OPT["sp"] == 3: msignal(A, 19, 5)
            for l in rcp(2): A(l)
            weave(mn(3) + mm(3), post(2)[:28])
        for l in post(2)[28:] + rcp(3): A(l)
        if OPT["two"] and OPT["sp"] == 4:
            A("s_waitcnt vmcnt(2)"); msignal(A, 19, 5)
        for l in post(3): A(l)
        if OPT['ks']:
            stamp(A, 8)
            A("s_cmp_lg_u32 s41, 0"); A("s_cbranch_scc1 Q_fin")
            A("s_cmp_lg_u32 s40, 0"); A("s_cbranch_scc1 Q_nopoll2")
            A("s_mov_b64 exec, 1")
            poll(A, 14, S_WS, 32, 1, vt=7, sleep=4)
            A("s_mov_b64 exec, -1")
            for gq in range(2):
                for j in range(7):
                    if j % 4 == 0:
                        A(f"s_mov_b32 m0, {16384 + KVG*gq + 1024*j}")
                        A(f"s_add_u32 s58, s43, {KVG*gq + 1024*j}")
                    A(f"buffer_load_dwordx4 v15, {s(SX,4)}, s58 offen" + (f" offset:{1024*(j%4)}" if j%4 else "") + " sc1 lds")
            A.label("Q_nopoll2")
            A("v_add_u32 v3, 768, v0"); A(f"v_min_u32 v3, {(KVG+6720)//16-1}, v3"); A("v_lshlrev_b32 v3, 4, v3"); A("v_lshlrev_b32 v4, 4, v0")
            A("s_lshl_b32 s42, s40, 2"); A("v_mov_b32 v5, s42"); A("v_mov_b32 v6, 0")
            A("s_waitcnt vmcnt(0)")
            A("s_barrier")
            for k in range(4):
                for c in range(2):
                    A(f"ds_read_b128 {v(vN+8*k+4*c,4)}, v{4 if k<3 else 3} offset:{(4096*k if k<3 else 0) + 16384*c}")
            for k in range(4):
                A(f"s_waitcnt lgkmcnt({6-2*k})")
                for i in range(4): A(f"v_xor_b32 v{vN+8*k+i}, v{vN+8*k+i}, v{vN+8*k+4+i}")
                A(f"v_or3_b32 v6, v6, v{vN+8*k}, v{vN+8*k+1}"); A(f"v_or3_b32 v6, v6, v{vN+8*k+2}, v{vN+8*k+3}")
            A("v_cmp_ne_u32 vcc, 0, v6")
            A("s_or_b32 s42, vcc_lo, vcc_hi")
            A("v_mov_b32 v6, s42"); A("v_mov_b32 v7, 0")
            A("ds_write_b32 v5, v6 offset:32000")
            A("s_waitcnt lgkmcnt(0)"); A("s_barrier")
            A(f"ds_read_b128 {v(vN,4)}, v7 offset:32000")
            A("s_waitcnt lgkmcnt(0)")
            A(f"v_or3_b32 v6, v{vN}, v{vN+1}, v{vN+2}"); A(f"v_or_b32 v6, v6, v{vN+3}")
            A("v_readfirstlane_b32 s41, v6")
            A("s_cmp_eq_u32 s41, 0"); A("s_cbranch_scc1 Q_fin")
            for i in range(6): A(f"v_add_u32 v{8+i}, 16384, v{8+i}")
            A("v_add_u32 v3, 12, v19")
            msignal(A, 3, 5)
            A("s_branch Q_o")
            A.label("Q_fin")
            A("v_add_u32 v19, 8, v19")
            A("s_waitcnt vmcnt(0)")
            msignal(A, 19, 5)
        else:
            stamp(A, 8)
            if OPT["spec"]:
                if OPT["two"] and OPT["sp"] == 5:
                    A("s_waitcnt vmcnt(5)"); msignal(A, 19, 5)
                if not OPT["two"]: msignal(A, 19, 5)
                A("v_add_u32 v19, 4, v19")
                A(f"s_waitcnt vmcnt({0 if OPT['two'] else 1})")
            else: A("s_waitcnt vmcnt(0)")
            msignal(A, 19, 5)
        endpgm(A)

A_CS = 2368
A_Z = 16240
A_U0 = A_Z + 16
A_CH = A_U0 + 4096
SROW = 272

def A_head(A):
    sD, sT, vP = 41, 42, 162
    A(f"s_mul_i32 s{sT}, s{sD}, 384")
    A(f"v_lshl_add_u32 v2, v1, 2, s{sT}")
    A(f"v_lshl_add_u32 v3, v1, 1, s{sT}")
    A(f"s_lshl_b32 s{sT}, s{sD}, 1"); A(f"s_and_b32 s{sT}, s{sT}, 0xfffffffc")
    nt = " nt" if OPT["nt"] & 4 else ""
    if OPT["nq"]:
        A("s_and_b32 s43, s2, 127"); A("s_cmp_lt_u32 s2, 384")
        A("s_cselect_b32 s44, 64, 0"); A("s_add_u32 s43, s43, s44"); A("s_add_u32 s43, s43, 256")
    elif OPT["rm"]: A("s_and_b32 s43, s2, 127"); A("s_add_u32 s43, s43, 256")
    else: A("s_cmp_ge_u32 s2, 448"); A(f"s_cselect_b32 s43, {64 if OPT['a4w'] else 192}, 0"); A("s_sub_u32 s43, s2, s43")
    A("s_lshl_b32 s43, s43, 8"); A(f"s_add_u32 s43, s43, {WS_CP - 256*256}")
    if OPT["uh"] < 448: A("s_cmp_eq_u32 s40, 3"); A(f"s_cselect_b32 s43, {WS_UH}, s43")
    A("v_mov_b32 v175, s43")
    A("s_waitcnt lgkmcnt(0)")
    if OPT["a4d"]:
        A("s_cmp_lg_u32 s60, 0"); A("s_cbranch_scc1 A_h1")
        for k in range(OPT["a4d"]):
            A(f"global_load_dword v174, v175, {s(S_WS,2)} offset:{128*k} sc1"); A("s_waitcnt vmcnt(0)")
        A.label("A_h1")
    if not OPT["bal"]: A("s_cmp_eq_u32 s60, 2"); A("s_cbranch_scc1 A_h2")
    for i, sp in enumerate((S_ARE, S_AIM, S_BRE, S_BIM, S_CRE, S_CIM)):
        A(f"global_load_dword v{vP+i}, v2, {s(sp,2)}{nt}")
    if not OPT["bal"]: A("s_cmp_eq_u32 s60, 1"); A("s_cbranch_scc1 A_h3")
    A.label("A_h2")
    for i, sp in enumerate((S_ARE, S_AIM, S_BRE, S_BIM, S_CRE, S_CIM)):
        A(f"global_load_ushort v{vP+6+i}, v3, {s(sp,2)} offset:256{nt}")
    A(f"global_load_dword v174, v175, {s(S_WS,2)} sc1")
    A.label("A_h3")
    A(f"s_load_dword s64, {s(S_LDT,2)}, s{sT}")
    A(f"s_load_dword s65, {s(S_DSK,2)}, s{sT}")
    A("s_setprio 0")
    A("s_branch A_body")

def A_chan(A):
    sW, sD, sT, sBase, sCnt, sT2 = 40, 41, 42, 43, 44, 45
    vP = 88
    vDer = 14
    vG = 26
    vAA, vBA, vB0, vOA = 36, 37, 38, 39
    vFX, vTW1, vTW2, vTW3, vTW0, vDsk = 40, 41, 42, 43, 44, 45
    vZ, vW, vW2, vZZ = 46, 48, 50, 52
    vS = 54
    vP = 162
    vAcc = 80
    vFr = 96
    A.label("A_body")
    A(f"s_mul_i32 s{sBase}, s{sW}, {A_CH}")
    sMode, sMain, sAux, sTb = 60, 61, 62, 63
    if OPT["dry"]:
        A("s_mov_b32 s59, 0")
        A(f"s_cmp_eq_u32 s{sMode}, 2"); A("s_cbranch_scc0 A_setup")
        A("s_mov_b32 s59, 1"); A(f"s_mov_b32 s{sCnt}, 1"); A(f"s_mov_b32 m0, s{sBase}"); A(f"v_mov_b32 v{vFX}, s{sBase}")
        A(f"v_mov_b32 v{vOA}, 0"); A("v_mov_b32 v160, 128")
        A("s_branch A_pass")
        A.label("A_setup")
        A("s_mov_b32 s59, 0")
        A("s_waitcnt lgkmcnt(0)")
    A(f"s_cmp_eq_u32 s{sMode}, 2"); A(f"s_cselect_b32 s{sT}, {2*A_CH}, 0"); A(f"s_sub_u32 s{sMain}, s{sBase}, s{sT}")
    A(f"s_add_u32 s{sAux}, s{sMain}, {2*A_CH}")
    A(f"s_mul_i32 s{sTb}, s{sMode}, 3328"); A(f"s_add_u32 s{sTb}, s{sTb}, s{sAux}"); A(f"s_add_u32 s{sT}, s{sBase}, 9600")
    A(f"s_cmp_eq_u32 s{sMode}, 0"); A(f"s_cselect_b32 s{sTb}, s{sT}, s{sTb}")
    A(f"v_sub_u32 v2, 63, v1")
    A(f"v_lshlrev_b32 v2, 1, v2")
    A(f"v_lshl_add_u32 v{vG}, v2, 2, s{sTb}")
    for beta in (1, 2, 3):
        for e in range(3):
            r = vG + 1 + 3*(beta-1) + e
            A(f"v_add_u32 v3, {e}, v2")
            A(f"v_bfe_u32 v4, v3, {beta}, 1")
            A(f"v_add3_u32 v3, v3, v4, {(1<<(beta-1))-1}")
            A(f"v_lshrrev_b32 v3, {beta}, v3")
            A(f"v_lshl_add_u32 v{r}, v3, 2, s{sTb}")
    A(f"v_and_b32 v2, 15, v1")
    A(f"v_lshrrev_b32 v3, 4, v1")
    A(f"v_sub_u32 v4, 0, v2")
    A(f"v_and_b32 v4, 3, v4")
    A(f"v_mul_u32_u24 v5, {A_CS}, v4")
    A(f"v_add_u32 v6, v2, v4")
    A(f"v_sub_u32 v6, 112, v6")
    A(f"v_lshl_add_u32 v6, v3, 3, v6")
    A(f"v_lshl_add_u32 v5, v6, 1, v5")
    A(f"v_add3_u32 v{vAA}, v5, s{sMain}, 16")
    A("v_lshlrev_b32 v5, 2, v3"); A("v_sub_u32 v5, v2, v5")
    A(f"s_add_u32 s{sT}, s{sTb}, {4*(544-6)}")
    A(f"v_lshl_add_u32 v176, v5, 3, s{sT}")
    A(f"v_lshlrev_b32 v5, 5, v2")
    A(f"v_lshl_add_u32 v6, v3, 4, v5")
    A(f"s_add_u32 s{sT}, s{sMain}, {A_U0+32}")
    A(f"v_add_u32 v{vBA}, s{sT}, v6")
    A(f"v_and_b32 v6, 1, v3"); A(f"v_lshl_add_u32 v5, v6, {10 if OPT['conv'] else 9}, v5")
    A(f"v_lshrrev_b32 v6, 1, v3"); A(f"v_lshl_add_u32 v6, v6, 4, v5")
    A(f"s_mul_i32 s{sT}, s{sD}, {OPT['rs']}")
    A(f"v_add_u32 v{vOA}, s{sT}, v6")
    A(f"v_and_b32 v2, 31, v1")
    A(f"v_lshrrev_b32 v3, 5, v1")
    A(f"v_mul_u32_u24 v4, {SROW}, v2")
    A(f"v_lshl_add_u32 v4, v3, 4, v4")
    A(f"v_add_u32 v{vFX}, s{sBase}, v4")
    A(f"v_lshlrev_b32 v4, 5, v2")
    A(f"v_lshl_add_u32 v4, v3, 4, v4")
    A(f"v_add_u32 v{vTW0}, s{sTb}, v4")
    A(f"v_cmp_eq_u32 vcc, 0, v3")
    A(f"v_lshlrev_b32 v4, 4, v2")
    A(f"v_lshlrev_b32 v5, 3, v2")
    A(f"v_add_u32 v6, 1024, v4")
    A(f"v_add_u32 v7, 1536, v5")
    A(f"v_cndmask_b32 v6, v7, v6, vcc")
    A(f"v_add_u32 v{vTW1}, s{sTb}, v6")
    A(f"v_add_u32 v6, 1032, v4")
    A(f"v_add_u32 v7, 1792, v5")
    A(f"v_cndmask_b32 v6, v7, v6, vcc")
    A(f"v_add_u32 v{vTW2}, s{sTb}, v6")
    A(f"v_lshlrev_b32 v4, 2, v2")
    A(f"v_lshl_add_u32 v4, v3, 9, v4")
    A(f"s_add_u32 s{sT}, s{sTb}, {2048+124}")
    A(f"v_add_u32 v{vTW3}, s{sT}, v4")
    A(f"v_mov_b32 v2, 0")
    A(f"v_mov_b32 v3, 0")
    A(f"s_mov_b32 m0, s{sMain}")
    A("s_mov_b64 exec, 15")
    A(f"ds_write_addtid_b32 v2 offset:{A_Z}")
    A("s_mov_b64 exec, -1")
    A(f"s_mov_b32 m0, s{sBase}")
    A(f"v_mov_b32 v5, 0x3f80")
    A(f"ds_write_addtid_b32 v5 offset:{21*SROW}")
    for i in range(0, 16 if OPT["peel"] else 80, 2):
        A(f"v_pk_mov_b32 {v(vAcc+i,2)}, v[2:3], v[2:3]")
    stamp(A, 1)
    A("s_waitcnt lgkmcnt(0)")
    A(f"s_bitcmp1_b32 s{sD}, 0"); A("s_cselect_b32 s46, 0, 16")
    A("s_lshl_b32 s64, s64, s46"); A("s_lshl_b32 s65, s65, s46")
    A("s_and_b32 s64, s64, 0xffff0000"); A("s_and_b32 s65, s65, 0xffff0000")
    A(f"v_mov_b32 v2, {hex(f2u(LOG2E))}")
    A(f"v_mul_f32 v2, s64, v2")
    A(f"v_exp_f32 v2, v2")
    A(f"v_cmp_eq_u32 vcc, 0, v1")
    A(f"v_mov_b32 v3, s65")
    A(f"v_cvt_pk_bf16_f32 v2, v2, v2")
    A(f"v_cndmask_b32 v{vDsk}, 0, v3, vcc")
    A(f"v_and_b32 v2, 0xffff0000, v2")
    A("s_waitcnt vmcnt(0)")
    stamp(A, 2)
    for p in range(3):
        for i in range(6):
            src = vP + i if p < 2 else vP + 6 + i
            if p == 1: A(f"v_and_b32 v{4+i}, 0xffff0000, v{src}")
            else:      A(f"v_lshlrev_b32 v{4+i}, 16, v{src}")
        d = vDer + 4*p
        A(f"v_pk_mul_f32 v[4:5], v[4:5], v[2:3] op_sel_hi:[1,0]")
        A(f"v_pk_mul_f32 v[6:7], v[6:7], v[2:3] op_sel_hi:[1,0]")
        A(f"v_mul_f32 v{d}, {hex(f2u(LOG2E))}, v4")
        A(f"v_mul_f32 v{d+1}, 0.15915494, v5")
        A(f"v_pk_mul_f32 v[10:11], v[8:9], v[6:7] op_sel_hi:[1,0]")
        A(f"v_pk_fma_f32 {v(d+2,2)}, v[8:9], v[6:7], v[10:11] op_sel:[1,1,0] op_sel_hi:[0,1,1] neg_lo:[1,0,0]")
    if OPT["bal"]:
        A(f"s_mov_b32 s{sCnt}, 3"); A("s_mov_b32 s56, 0")
        A(f"s_cmp_eq_u32 s{sMode}, 0"); A("s_cbranch_scc1 A_p0")
        A(f"s_mov_b32 s{sCnt}, 2")
        A(f"s_cmp_eq_u32 s{sMode}, 1"); A("s_cbranch_scc1 A_p1")
        for i in range(4): A(f"v_mov_b32 v{vDer+i}, v{vDer+4+i}")
        A.label("A_p1")
        for i in range(4): A(f"v_mov_b32 v{vDer+4+i}, v{vDer+8+i}")
    else:
        A(f"s_sub_u32 s{sCnt}, 3, s{sMode}")
        A(f"s_cmp_eq_u32 s{sMode}, 2"); A("s_cbranch_scc0 A_p0")
        for i in range(4): A(f"v_mov_b32 v{vDer+i}, v{vDer+8+i}")
    A.label("A_p0")
    A(f"s_cmp_eq_u32 s{sMode}, 0"); A("s_cselect_b32 s57, 1, 0")
    if OPT["tm"]: A("s_movk_i32 s46, 128"); A("s_mov_b32 s58, 1")
    else: A(f"s_cmp_eq_u32 s{sMode}, 0"); A("s_cselect_b32 s46, 0, 128"); A("s_cselect_b32 s58, 64, 1")
    A("v_mov_b32 v160, s46")
    A(f"s_mov_b32 s{sT}, {hex(f2u(8.0))}")
    A(f"s_mov_b32 s{sT2}, {hex(f2u(256.0))}")
    stamp(A, 3)
    if OPT["cut"] == 3: A("s_nop 3"); A("s_branch A_postpass")
    if OPT["cut"] == 4: A("s_endpgm")
    A(".p2align 3")
    A.label("A_pass")
    body = []
    def cexp(dst, t, scale):
        if scale is None:
            return [f"v_exp_f32 v{t}, v{vDer}", f"v_fract_f32 v{t+1}, v{vDer+1}",
                    f"v_cos_f32 v{dst}, v{t+1}", f"v_sin_f32 v{dst+1}, v{t+1}",
                    f"v_pk_mul_f32 {v(dst,2)}, {v(dst,2)}, {v(t,2)} op_sel_hi:[1,0]"]
        return [f"v_mul_f32 v{t}, s{scale}, v{vDer}", f"v_mul_f32 v{t+1}, s{scale}, v{vDer+1}",
                f"v_exp_f32 v{t}, v{t}", f"v_fract_f32 v{t+1}, v{t+1}",
                f"v_cos_f32 v{dst}, v{t+1}", f"v_sin_f32 v{dst+1}, v{t+1}",
                f"v_pk_mul_f32 {v(dst,2)}, {v(dst,2)}, {v(t,2)} op_sel_hi:[1,0]"]
    e1, e2, e3 = cexp(vW, 2, sT), cexp(vZ, 4, None), cexp(vZZ, 6, sT2)
    for i in range(6):
        for e in (e1, e2, e3):
            if i < len(e) - 1: body.append(e[i])
    body.append("s_waitcnt lgkmcnt(0)")
    body.append("s_nop 0")
    body += [e2[-1], e1[-1], e3[-1]]
    def P(k): return vS + 6*k
    C = vDer + 2
    X2, X4, X6 = 8, 10, 12
    s1 = [(vW2, vW, vW, 21+2, 0)] + [(P(0), vW2 if j == 4 else P(0), vW2, 21+j, 0) for j in range(4, 32, 2)]
    s2 = [(vW, None, None, 21+1, 0)] + [(P(1), vW if j == 3 else P(1), vW2, 21+j, 0) for j in range(3, 32, 2)]
    s3 = [(C, None, None, 0, 1), (P(2), C, vZ, 1, 1), (X2, P(2), vZ, 2, 1), (P(2), X2, vZ, 3, 1), (X4, P(2), vZ, 4, 1),
          (P(2), X4, vZ, 5, 1), (X6, P(2), vZ, 6, 1), (P(2), X6, vZ, 7, 1),
          (P(2), X4, vZZ, 10, 1), (P(2), P(2), vZZ, 13, 1), (P(2), P(2), vZZ, 15, 1)]
    s4 = [(P(3), C, vZZ, 8, 1), (P(3), P(3), vZZ, 12, 1), (P(3), P(3), vZZ, 14, 1), (P(3), P(3), vZZ, 16, 1),
          (P(3), P(3), vZZ, 17, 1), (P(3), P(3), vZZ, 18, 1), (P(3), P(3), vZZ, 19, 1), (P(3), P(3), vZZ, 20, 1),
          (P(3), X2, vZZ, 9, 1), (P(3), X6, vZZ, 11, 1)]
    streams = [s1, s2, s3, s4]
    mf = [f"v_mfma_f32_32x32x16_bf16 {v(vAcc,16)}, {v(vFr+8*q,4)}, {v(vFr+8*q+4,4)}, {v(vAcc,16)}" for q in range(8)]
    if OPT["kg"] & 1:
        body = [l for l in body if not l.startswith(("s_waitcnt", "s_nop"))]
        if OPT["peel"]:
            k = A.lines.index("A_pass:") - 1
            A.lines[k:k] = body[:-3] + ["s_branch A_pass2"]
        for n, l in enumerate(body):
            if n == len(body) - 3:
                A(".p2align 3"); A.label("A_pass2")
            A(l)
            if n % 2 == 1 and n//2 < 8:
                q = n//2
                A(f"s_waitcnt lgkmcnt({7-q})"); A(mf[q])
    else:
        for l in body: A(l)
    if OPT['bal']:
        def section(streams):
            pend = []; n = max(len(st) for st in streams)
            for i in range(n):
                ops = [(k, st[i]) for k, st in enumerate(streams) if i < len(st) and st[i] is not None]
                V = []
                for k, (d, sr, m, row, ng) in ops:
                    if sr is not None: V += [f"v_mul_f32 v{P(k)+2}, v{sr+1}, v{m+1}", f"v_mul_f32 v{P(k)+3}, v{sr}, v{m+1}"]
                for k, (d, sr, m, row, ng) in ops:
                    if sr is not None: V += [f"v_fma_f32 v{d}, v{sr}, v{m}, -v{P(k)+2}", f"v_fma_f32 v{d+1}, v{sr+1}, v{m}, v{P(k)+3}"]
                for k, (d, sr, m, row, ng) in ops:
                    V.append(f"v_cvt_pk_bf16_f32 v{P(k)+4+(i&1)}, v{d}, {'-' if ng else ''}v{d+1}")
                for l in V: A(l)
                pend += [f"ds_write_addtid_b32 v{P(k)+4+(i&1)} offset:{row*SROW}" for k, (d, sr, m, row, ng) in ops]
                if i & 1 or i == n-1:
                    for l in pend: A(l)
                    pend = []
        W4 = 78
        r1 = [(P(0), C, vZ, 1, 1), (X2, P(0), vZ, 2, 1), (P(0), X2, vZ, 3, 1), (X4, P(0), vZ, 4, 1), (P(0), X4, vZ, 5, 1), (X6, P(0), vZ, 6, 1), (P(0), X6, vZ, 7, 1)]
        r2 = [(P(1), C, vZZ, 8, 1)] + [(P(1), P(1), vZZ, row, 1) for row in (12, 14, 16, 17, 18, 19, 20)]
        r3 = [(C, None, None, 0, 1), None, (P(2), X2, vZZ, 9, 1), None, (P(2), X4, vZZ, 10, 1), (P(2), P(2), vZZ, 13, 1), (P(2), P(2), vZZ, 15, 1), (P(2), X6, vZZ, 11, 1)]
        c1 = [(vW, None, None, 21+1, 0), None] + [(P(0), vW if j == 5 else P(0), W4, 21+j, 0) for j in range(5, 32, 4)]
        c2 = [(vW2, vW, vW, 21+2, 0), None] + [(P(1), vW2 if j == 6 else P(1), W4, 21+j, 0) for j in range(6, 32, 4)]
        c3 = [None, (P(2), vW2, vW, 21+3, 0)] + [(P(2), P(2), W4, 21+j, 0) for j in range(7, 32, 4)]
        c4 = [None, (W4, vW2, vW2, 21+4, 0)] + [(P(3), W4 if j == 8 else P(3), W4, 21+j, 0) for j in range(8, 32, 4)]
        A("s_cmp_eq_u32 s56, 1"); A("s_cbranch_scc1 A_cols")
        section([r1, r2, r3])
        A("s_cmp_eq_u32 s56, 2"); A("s_cbranch_scc1 A_postpass")
        for q in range(8): A(f"ds_read_b128 {v(vFr+8*q,4)}, v{vFX} offset:{32*q}")
        A.label("A_cols")
        section([c1, c2, c3, c4])
        A("s_cmp_eq_u32 s56, 1"); A("s_cbranch_scc1 A_postpass")
        for q in range(8): A(f"ds_read_b128 {v(vFr+8*q+4,4)}, v{vFX} offset:{32*q+21*SROW}")
        for q in range(8): A(f"v_mov_b32 v{vDer+q}, v{vDer+4+q}")
        A(f"s_mov_b32 s56, s{sMode}")
    else:
        pendw = []
        for i in range(16):
            ops = [(k, st[i]) for k, st in enumerate(streams) if i < len(st)]
            V = []
            if OPT["scalar"]:
                for k, (d, sr, m, row, ng) in ops:
                    if sr is not None: V += [f"v_mul_f32 v{P(k)+2}, v{sr+1}, v{m+1}", f"v_mul_f32 v{P(k)+3}, v{sr}, v{m+1}"]
                for k, (d, sr, m, row, ng) in ops:
                    if sr is not None: V += [f"v_fma_f32 v{d}, v{sr}, v{m}, -v{P(k)+2}", f"v_fma_f32 v{d+1}, v{sr+1}, v{m}, v{P(k)+3}"]
            else:
                for k, (d, sr, m, row, ng) in ops:
                    if sr is not None: V.append(f"v_pk_mul_f32 {v(P(k)+2,2)}, {v(sr,2)}, {v(m,2)} op_sel_hi:[1,0]")
                for k, (d, sr, m, row, ng) in ops:
                    if sr is not None: V.append(f"v_pk_fma_f32 {v(d,2)}, {v(sr,2)}, {v(m,2)}, {v(P(k)+2,2)} op_sel:[1,1,0] op_sel_hi:[0,1,1] neg_lo:[1,0,0]")
            for k, (d, sr, m, row, ng) in ops:
                V.append(f"v_cvt_pk_bf16_f32 v{P(k)+4+(i&1)}, v{d}, {'-' if ng else ''}v{d+1}")
            if i < 8 and not OPT['kg'] & 5: A(mf[i])
            if OPT["l2p"] and i == OPT["l2p"] - 1:
                A(f"s_cmp_eq_u32 s{sCnt}, s57"); A("s_cbranch_scc1 A_pf"); A.label("A_pfr")
            neww = [] if OPT["kg"] & 2 else [f"ds_write_addtid_b32 v{P(k)+4+(i&1)} offset:{row*SROW}" for k, (d, sr, m, row, ng) in ops]
            if OPT["wb"] == 0:
                stp = max(1, len(V)//max(1,len(pendw)))
                for n, l in enumerate(V):
                    A(l)
                    if pendw and n % stp == stp - 1: A(pendw.pop(0))
                for l in pendw: A(l)
                pendw = neww
            elif OPT["wb"] == 1:
                for l in V + neww: A(l)
            elif OPT["wb"] == 2:
                h = len(V)//3
                for l in V[:h] + pendw + V[h:]: A(l)
                pendw = neww
            elif OPT["wb"] == 3:
                for l in V: A(l)
                pendw += neww
                if i & 1:
                    for l in pendw: A(l)
                    pendw = []
            if i >= 12:
                for q in (2*(i-12), 2*(i-12)+1): A(f"ds_read_b128 {v(vFr+8*q,4)}, v{vFX} offset:{32*q}")
        for l in pendw: A(l)
        for q in range(8):
            A(f"ds_read_b128 {v(vFr+8*q+4,4)}, v{vFX} offset:{32*q+21*SROW}")
            if q < 4: A(f"v_pk_mov_b32 {v(vDer+2*q,2)}, {v(vDer+4+2*q,2)}, {v(vDer+4+2*q,2)} op_sel:[0,1]")
    A(f"s_sub_u32 s{sCnt}, s{sCnt}, 1")
    A(f"s_cmp_lg_u32 s{sCnt}, 0")
    A("s_cbranch_scc1 A_pass")
    if OPT["dry"]:
        A("s_cmp_eq_u32 s59, 1"); A("s_cbranch_scc1 A_setup")
    A.label("A_postpass")
    stamp(A, 4)
    if OPT["cut"] == 1: endpgm(A)
    lateu = OPT["tm"] or OPT["t3"] or OPT["lu"]
    if not lateu:
        A("s_cmp_ge_u32 s2, 448"); A("s_cbranch_scc0 A_nofl")
        A(f"global_load_dword v161, v160, {s(S_DBG,2)} sc1")
    A.label("A_nofl")
    A("v_and_b32 v2, 15, v1"); A("v_lshrrev_b32 v3, 4, v1"); A("v_lshlrev_b32 v3, 3, v3")
    A("s_mov_b32 s46, 0x8001"); A("s_movk_i32 s47, 0x3f80")
    for k, m_ in enumerate((0xfe0, 0x1ff0)):
        A(f"v_mov_b32 v4, {m_}"); A("v_lshlrev_b32 v4, v2, v4"); A("v_lshrrev_b32 v4, v3, v4")
        for j in range(4):
            r = 180 + 4*k + j
            A(f"v_bfe_u32 v{r}, v4, {2*j}, 2"); A(f"v_mul_u32_u24 v{r}, s46, v{r}"); A(f"v_and_b32 v{r}, 0x10001, v{r}"); A(f"v_mul_u32_u24 v{r}, s47, v{r}")
    def thr(tag):
        A("s_cmp_eq_u32 s40, 2"); A(f"s_cbranch_scc0 A_nothr{tag}")
        A("s_mov_b64 exec, 1")
        poll(A, 175, S_WS, "v174", 1, vt=6, sleep=4, cmp="ne", spin=48)
        A("s_mov_b64 exec, -1")
        A.label(f"A_nothr{tag}")
    if OPT['bal']:
        A(f"s_cmp_eq_u32 s{sMode}, 0"); A("s_cbranch_scc1 A_m8")
        if OPT["b0"] == 2: A("s_cmp_ge_u32 s2, 384"); A("s_cbranch_scc1 A_nothrb")
        thr("b")
        A(f"s_sub_u32 s46, s{sMain}, s{sBase}"); A(f"s_lshl_b32 s47, s{sMode}, 7"); A("s_add_u32 s46, s46, s47")
        A(f"v_add_u32 v4, s46, v{vFX}")
        A("s_waitcnt lgkmcnt(0)")
        A("s_barrier")
        for q in range(4, 8):
            A(f"ds_read_b128 {v(vFr+8*q,4)}, v4 offset:{32*q-256+2*A_CH}")
        for q in range(4, 8):
            A(f"ds_read_b128 {v(vFr+8*q+4,4)}, v4 offset:{32*q-256+21*SROW}")
        A("s_branch A_m4")
        A.label("A_m8")
        for q in range(8):
            if q == 4: A.label("A_m4")
            A(f"s_waitcnt lgkmcnt({7-q})")
            A(mf[q])
    else:
        if OPT["b0"]:
            if OPT["b0"] == 2: A("s_cmp_ge_u32 s2, 384"); A("s_cbranch_scc1 A_nb0")
            A(f"s_cmp_eq_u32 s{sMode}, 1"); A("s_cbranch_scc0 A_nb0"); A("s_barrier"); A.label("A_nb0")
        for q in range(8):
            A(f"s_waitcnt lgkmcnt({7-q})")
            A(mf[q])
    srd(A, 48, S_WS, WSZ)
    A("v_lshlrev_b32 v7, 4, v1")
    A(f"s_mul_i32 s59, s{sD}, {OPT['rs']}"); A(f"s_add_u32 s59, s59, {WS_UT}")
    A("s_nop 3")
    A(f"s_cmp_eq_u32 s{sMode}, 0"); A("s_cbranch_scc1 A_nox")
    A(f"s_cmp_eq_u32 s{sMode}, 1"); A("s_cselect_b32 s46, 3072, 0"); A("s_sub_u32 s47, 3072, s46"); A("s_add_u32 s46, s46, 11392"); A("s_add_u32 s47, s47, 11392")
    A(f"s_add_u32 s46, s46, s{sAux}"); A(f"s_add_u32 s47, s47, s{sAux}")
    A("v_lshl_add_u32 v4, v1, 4, s46"); A("v_lshl_add_u32 v5, v1, 4, s47")
    for k in range(3): A(f"ds_write_b128 v4, {v(vAcc+4*k,4)} offset:{1024*k}")
    if OPT["uh"] < 448:
        A("s_cmp_eq_u32 s40, 3"); A("s_cbranch_scc0 A_nuh")
        A(f"s_cmp_ge_u32 s2, {OPT['uh']}"); A("s_cbranch_scc0 A_nuh")
        A("s_mov_b64 exec, 1")
        poll(A, 175, S_WS, "v174", 1, vt=6, sleep=8, cmp="ne", spin=32)
        A("s_mov_b64 exec, -1")
        poll(A, 160, S_DBG, 1, 1, vt=161, sleep=8)
        for c in range(2):
            A(f"s_mov_b32 m0, {A_U0 + c*A_CH}")
            A(f"s_sub_u32 s47, s59, {OPT['rs'] * (1-c)}")
            for j in range(4):
                A(f"buffer_load_dwordx4 v7, s[48:51], s47 offen" + (f" offset:{1024*j}" if j else "") + " sc1 lds")
        A.label("A_nuh")
    if not OPT["b0"]: thr("a")
    if OPT["bal"]:
        if OPT["b0"] == 2:
            A("s_cmp_lt_u32 s2, 384"); A("s_cbranch_scc1 A_nothrd"); thr("d")
    elif OPT["b0"]:
        A(f"s_cmp_eq_u32 s{sMode}, 2"); A("s_cbranch_scc0 A_nb00")
        if OPT["rm"] and not OPT["xthr"]: A("s_cmp_ge_u32 s2, 384"); A("s_cbranch_scc1 A_nb00")
        thr("b")
        if OPT["b0"] == 2: A("s_cmp_ge_u32 s2, 384"); A("s_cbranch_scc1 A_nb00")
        A("s_barrier"); A.label("A_nb00")
    A("s_waitcnt lgkmcnt(0)")
    A("s_barrier")
    if OPT["aprio"] and not OPT["rm"]:
        A(f"s_cmp_lt_u32 s2, {384 if OPT['aprio'] == 1 else 0}"); A("s_cbranch_scc1 A_nopr"); A("s_setprio 3"); A.label("A_nopr")
    stamp(A, 9)
    if OPT["ue"]:
        if OPT["uh"] < 448: A(f"s_cmp_ge_u32 s2, {OPT['uh']}"); A("s_cbranch_scc1 A_ue")
        A(f"s_cmp_eq_u32 s{sMode}, 2"); A("s_cbranch_scc0 A_ue")
        A(f"global_load_dword v161, v160, {s(S_DBG,2)} sc1")
        A.label("A_ue")
    else:
        A(f"global_load_dword v161, v160, {s(S_DBG,2)} sc1")
    for k in range(3): A(f"ds_read_b128 {v(vFr+4*k,4)}, v5 offset:{1024*k}")
    for k in range(3):
        A(f"s_waitcnt lgkmcnt({2-k})")
        for i in range(4): A(f"v_add_f32 v{vAcc+4*k+i}, v{vAcc+4*k+i}, v{vFr+4*k+i}")
    A.label("A_nox")
    A(f"v_add_f32 v{vAcc}, v{vAcc}, v{vDsk}")
    A(f"ds_write_b128 v{vTW0}, {v(vAcc,4)}")
    A(f"ds_write_b64 v{vTW1}, {v(vAcc+4,2)}")
    A(f"ds_write_b64 v{vTW2}, {v(vAcc+6,2)}")
    for i in range(4):
        A(f"ds_write_b32 v{vTW3}, v{vAcc+8+i} offset:{128*i}")
    A("v_cmp_eq_u32 vcc, 0, v1"); A(f"s_add_u32 m0, s{sTb}, 2048")
    A(f"v_cndmask_b32 v2, 0, v{vAcc+8}, vcc")
    A("s_mov_b32 exec_hi, 0")
    A("ds_write_addtid_b32 v2")
    A("s_mov_b32 exec_hi, -1")
    if OPT["ue"]:
        if OPT["uh"] < 448: A(f"s_cmp_ge_u32 s2, {OPT['uh']}"); A("s_cbranch_scc1 A_ue2")
        A(f"s_cmp_eq_u32 s{sMode}, 2"); A("s_cbranch_scc0 A_ue2")
        A("s_waitcnt vmcnt(0)")
        A("v_readfirstlane_b32 s46, v161")
        A("s_cmp_ge_u32 s46, 1"); A("s_cbranch_scc1 A_ue1")
        poll(A, 160, S_DBG, "s58", 1, vt=161, sleep=8)
        A.label("A_ue1")
        A(f"s_add_u32 m0, s{sMain}, {A_U0}")
        A("s_nop 0")
        for j in range(4):
            A(f"buffer_load_dwordx4 v7, s[48:51], s59 offen" + (f" offset:{1024*j}" if j else "") + (" sc1 nt lds" if OPT["wnt"] & 4 else " sc1 lds"))
        A.label("A_ue2")
    stamp(A, 5)
    vE, vO = 46, 62
    blkX = [0, 1, 2, 3]; blkY = [4, 5, 6, 7, 8]
    def cv(r2):
        A(f"v_cvt_pk_bf16_f32 v{vE+r2}, v{vFr+3*r2+2}, v{vFr+3*r2+1}")
        A(f"v_cvt_pk_bf16_f32 v{vO+r2}, v{vFr+3*r2+1}, v{vFr+3*r2}")
    def gathers(order):
        for n, rp in enumerate(order):
            beta = 0 if rp < 2 else 1 if rp < 4 else 2 if rp < 8 else 3
            base = [0, 256, 384, 512][beta]; r0 = [0, 2, 4, 8][beta]
            off = 4 * (base + (128 >> beta) * (rp - r0))
            for e in range(3):
                if beta == 0: A(f"ds_read_b32 v{vFr+3*rp+e}, v{vG} offset:{off+4*e}")
                else: A(f"ds_read_b32 v{vFr+3*rp+e}, v{vG+1+3*(beta-1)+e} offset:{off}")
        for n in range(len(order)):
            A(f"s_waitcnt lgkmcnt({3*(len(order)-1-n)})"); cv(order[n])
    vSp = 14
    def cw(rp):
        rho = 8 - rp
        A(f"ds_write_addtid_b32 v{vE+rp} offset:{4+256*rho}")
        A(f"ds_write_addtid_b32 v{vO+rp} offset:{4+A_CS+256*rho}")
        A(f"ds_write_addtid_b32 v{vE+rp} offset:{2*A_CS+256*rho}")
        A(f"ds_write_addtid_b32 v{vO+rp} offset:{3*A_CS+256*rho}")
    def uf(j0):
        poll(A, 160, S_DBG, "s58", 1, vt=161, first_loaded=True, sleep=16)
        A(f"s_add_u32 m0, s{sMain}, {A_U0}")
        A("s_nop 0")
        for j in range(j0, j0+2):
            A(f"buffer_load_dwordx4 v7, s[48:51], s59 offen" + (f" offset:{1024*j}" if j else "") + (" sc1 nt lds" if OPT["wnt"] & 4 else " sc1 lds"))
        A(f"s_add_u32 m0, s{sMain}, 12")
    if OPT["ue"]:
        A(f"s_add_u32 m0, s{sMain}, 12")
    A(f"s_cmp_eq_u32 s{sMode}, 2"); A("s_cbranch_scc1 A_gx")
    gathers(blkY)
    if OPT["ue"]: A(f"s_cmp_eq_u32 s{sMode}, 1"); A("s_cbranch_scc1 A_wy")
    if not lateu:
        A("s_cmp_ge_u32 s2, 448"); A("s_cbranch_scc0 A_gx")
        uf(0)
    A(f"s_cmp_eq_u32 s{sMode}, 1"); A("s_cbranch_scc1 A_wy")
    A.label("A_gx")
    gathers(blkX)
    if lateu: pass
    elif OPT["ue"]:
        A("s_cmp_ge_u32 s2, 448"); A("s_cbranch_scc0 A_uf3")
        n0 = len(A.lines)
        uf(2)
        k = [i for i in range(n0, len(A.lines)) if A.lines[i].startswith("s_add_u32 m0")][0]
        del A.lines[n0:k]
        A.label("A_uf3")
    else:
        A(f"s_cmp_eq_u32 s{sMode}, 0"); A("s_cbranch_scc1 A_uf2")
        n0 = len(A.lines)
        uf(2)
        k = [i for i in range(n0, len(A.lines)) if A.lines[i].startswith("s_add_u32 m0")][0]
        A.lines[k:k] = ["A_uf2:"]
    A(f"v_cmp_eq_u32 vcc, 0, v1")
    A(f"v_cvt_pk_bf16_f32 v2, v{vAcc}, 0")
    A(f"v_mov_b32 v3, 0")
    A(f"v_cndmask_b32 v2, 0, v2, vcc")
    for rp in blkX: cw(rp)
    A("s_mov_b64 exec, 0xff")
    A(f"ds_write_addtid_b32 v2 offset:{4+2304}")
    A(f"ds_write_addtid_b32 v3 offset:{4+A_CS+2304}")
    A(f"ds_write_addtid_b32 v2 offset:{2*A_CS+2304}")
    A(f"ds_write_addtid_b32 v3 offset:{3*A_CS+2304}")
    A("s_mov_b64 exec, -1")
    A(f"s_cmp_eq_u32 s{sMode}, 2"); A("s_cbranch_scc1 A_wd")
    A.label("A_wy")
    for rp in blkY: cw(rp)
    A.label("A_wd")
    if lateu:
        A("s_cmp_ge_u32 s2, 448"); A("s_cbranch_scc0 A_uf4")
        poll(A, 160, S_DBG, "s58", 1, vt=161, sleep=16)
        A(f"s_add_u32 m0, s{sMain}, {A_U0}")
        A("s_nop 0")
        for j in range(4):
            A(f"buffer_load_dwordx4 v7, s[48:51], s59 offen" + (f" offset:{1024*j}" if j else "") + " sc1 lds")
        A.label("A_uf4")
    for tau in range(4):
        for jj in range(4):
            A(f"ds_read_b64 {v(vFr+8*tau+2*jj,2)}, v176 offset:{128*tau+8*(3-jj)}")
    for tau in range(4):
        A(f"s_waitcnt lgkmcnt({12-4*tau})")
        for st in range(2):
            for h in range(2):
                A(f"v_cvt_pk_bf16_f32 v{188+4*tau+2*st+h}, v{vFr+8*tau+4*h+st}, v{vFr+8*tau+4*h+2+st}")
    A(f"s_add_u32 s{sT}, s{sMain}, {A_Z}")
    if OPT["nq"]:
        A("s_cmp_eq_u32 s40, 3"); A("s_cbranch_scc0 A_nk")
        A("s_lshr_b32 s46, s2, 6"); A("s_cmp_eq_u32 s46, 6"); A("s_cbranch_scc0 A_nk")
        A("s_mov_b64 exec, 1")
        poll(A, 175, S_WS, "v174", 1, vt=6, sleep=8, cmp="ne", spin=32)
        A("s_mov_b64 exec, -1")
        A("v_mov_b32 v160, 128")
        poll(A, 160, S_DBG, 1, 1, vt=161, sleep=8)
        for c in range(4):
            A(f"s_mov_b32 m0, {A_U0 + c*A_CH}")
            A(f"s_sub_u32 s47, s59, {OPT['rs'] * (3-c)}")
            for j in range(4):
                A(f"buffer_load_dwordx4 v7, s[48:51], s47 offen" + (f" offset:{1024*j}" if j else "") + " sc1 lds")
        A.label("A_nk")
    stamp(A, 6)
    A("s_waitcnt vmcnt(0) lgkmcnt(0)")
    if OPT["a4t"]:
        A(f"s_cmp_eq_u32 s{sMode}, 0"); A("s_cbranch_scc0 A_nb3"); thr("c"); A.label("A_nb3")
    else:
        A(f"s_cmp_eq_u32 s{sMode}, 0"); A("s_cbranch_scc1 A_nb2")
    A("s_setprio 0")
    A("s_barrier")
    A.label("A_nb2")
    stamp(A, 7)
    if OPT["cut"] == 2: A("s_endpgm")
    if True:
        vY = 128
        def Areg(a, r): return 14 if a == 4 else 96 + 16*(r % 2) + 4*a
        def Breg(b, r): return 44 + 4*(b-5) if b >= 5 else 56 + 20*(r % 2) + 4*b
        def rdA(a, r):
            c_ = 8*a + r
            return [f"ds_read_b64 {v(Areg(a,r),2)}, v{vAA} offset:{64*(32-c_)}", f"ds_read_b64 {v(Areg(a,r)+2,2)}, v{vAA} offset:{64*(32-c_)+8}"]
        def rdB(b, r):
            if b == 0:
                return [f"v_subrev_u32 v{vB0}, {64*(r+1)}, v{vBA}", f"v_max_i32 v{vB0}, s{sT}, v{vB0}", f"ds_read_b128 {v(Breg(0,r),4)}, v{vB0}"]
            return [f"ds_read_b128 {v(Breg(b,r),4)}, v{vBA} offset:{512*(b-1)+64*(7-r)}"]
        issued = []
        def issue(l):
            A(l)
            if l.startswith("ds_read"): issued.append(Ins(l).w)
        done = [0]
        def need_regs(R):
            idx = max([i for i, w in enumerate(issued) if w & R] + [-1])
            if idx >= done[0]:
                n = min(len(issued) - 1 - idx, 15)
                A(f"s_waitcnt lgkmcnt({n})")
                done[0] = len(issued) - n
        def first_reads(r):
            return rdA(0, r) + [l for b in range(7, -1, -1) for l in rdB(b, r)] + [l for a in range(1, 4) for l in rdA(a, r)]
        def far_reads(bbs):
            L = []
            for k, bb in enumerate(bbs):
                for st in range(2):
                    d = v(204+8*k+4*st, 4)
                    if bb == 0: L += [f"v_subrev_u32 v40, {64+16*st}, v{vBA}", f"v_max_i32 v40, s{sT}, v40", f"ds_read_b128 {d}, v40"]
                    else: L.append(f"ds_read_b128 {d}, v{vBA} offset:{512*(bb-1)+448-16*st}")
            return L
        def far1(): return [(204+4*k, f"v_mfma_f32_16x16x32_bf16 {v(220+4*k,4)}, {v(204+4*k,4)}, {v(180+4*(k%2),4)}, 0") for k in range(4)]
        def farc(): return [l for k in range(4) for l in cvt4(220+4*k, 236+2*k)]
        def far2(bbs): return [f"v_mfma_f32_16x16x32_bf16 {v(vY+4*t,4)}, {v(236+4*k,4)}, {v(188+4*(t-bb-4),4)}, {v(vY+4*t,4)}" for k, bb in enumerate(bbs) for t in range(bb+4, 8)]
        A(f"s_cmp_eq_u32 s{sMode}, 2"); A("s_cbranch_scc0 A_c0")
        for l in first_reads(4): A(l)
        for i in range(32): A(f"v_mov_b32 v{vY+i}, 0")
        A("s_waitcnt lgkmcnt(0)")
        A("s_branch A_c4")
        A.label("A_c0")
        for l in first_reads(0) + rdA(4, 0): issue(l)
        for r in range(8):
            if r == 4:
                A(f"s_cmp_eq_u32 s{sMode}, 1"); A("s_cbranch_scc1 A_red0")
                A.label("A_c4")
            bbs = (1, 3) if r < 4 else (0, 2)
            q_ = []
            if r < 7:
                q_ = rdA(0, r+1) + [l for b in (4, 3, 2, 1, 0) for l in rdB(b, r+1)] + [l for a in range(1, 4) for l in rdA(a, r+1)]
            if r % 4 == 0: q_ += far_reads(bbs)
            if r % 4 == 2: q_ += farc()
            if r % 4 == 1:
                for rg, m_ in far1():
                    need_regs(regs(v(rg,4))); A(m_)
                    if q_: issue(q_.pop(0))
            ml = [(a, b) for a in range(4) for b in range(7-a, -1, -1)] + ([(4, b) for b in range(3, -1, -1)] if r == 0 else [])
            for a, b in ml:
                t = a + b
                c_ = "0" if (r == 0 and a == 0) else v(vY+4*t,4)
                need_regs(regs(v(Areg(a,r),4)) | regs(v(Breg(b,r),4)))
                A(f"v_mfma_f32_16x16x32_bf16 {v(vY+4*t,4)}, {v(Areg(a,r),4)}, {v(Breg(b,r),4)}, {c_}")
                if r < 7 and b == 7-a and b >= 5: q_ = rdB(b, r+1) + q_
                if q_: issue(q_.pop(0))
            for l in q_: issue(l)
            if r % 4 == 3:
                for m_ in far2(bbs): A(m_)
        stamp(A, 8)
        def outp(t):
            o = 44 + 2*t
            for l in cvt4(vY+4*t, o) + cvt4(vY+4*t+4, o+2): A(l)
            A(f"v_permlane16_swap_b32 v{o}, v{o+2}")
            A(f"v_permlane16_swap_b32 v{o+1}, v{o+3}")
            A(f"global_store_dwordx4 v{vOA}, {v(o,4)}, {s(S_WS,2)} offset:{512*t} sc1")
        def red(give, keep, og, ok):
            A("s_setprio 3")
            A(f"v_lshl_add_u32 v4, v1, 4, s{sAux}")
            A("s_nop 7")
            for k in range(4): A(f"ds_write_b128 v4, {v(vY+give+4*k,4)} offset:{og+1024*k}")
            A("s_waitcnt lgkmcnt(0)")
            A("s_barrier")
            if OPT["ast"]: stamp(A, 1)
            for k in range(4): A(f"ds_read_b128 {v(96+4*k,4)}, v4 offset:{ok+1024*k}")
            for k in range(4):
                A(f"s_waitcnt lgkmcnt({3-k})")
                for i in range(4): A(f"v_add_f32 v{vY+keep+4*k+i}, v{vY+keep+4*k+i}, v{96+4*k+i}")
        A(f"s_cmp_eq_u32 s{sMode}, 0"); A("s_cbranch_scc1 A_lo")
        red(0, 16, 4096, 0)
        A("s_branch A_hi")
        A.label("A_red0")
        stamp(A, 8)
        red(16, 0, 0, 4096)
        A.label("A_lo")
        outp(0); outp(2)
        A(f"s_cmp_eq_u32 s{sMode}, 1"); A("s_cbranch_scc1 A_sig")
        A.label("A_hi")
        outp(4); outp(6)
    A.label("A_sig")
    A(f"s_lshr_b32 s46, s{sD}, 1"); A("s_lshl_b32 s46, s46, 7"); A(f"s_add_u32 s46, s46, {WS_FA}")
    A("v_lshl_add_u32 v4, v1, 7, s46"); A("v_mov_b32 v5, 1")
    if OPT["ast"]: stamp(A, 2)
    A("s_waitcnt vmcnt(0)")
    if OPT["ast"]: stamp(A, 3)
    A("s_barrier")
    A("s_cmp_lg_u32 s40, 0"); A("s_cbranch_scc1 A_end")
    A(f"s_cmp_eq_u32 s{sMode}, 1"); A("s_cselect_b64 exec, 1, 3")
    A(f"global_store_dword v4, v5, {s(S_WS,2)} sc1")
    A.label("A_end")
    endpgm(A)
    if OPT["l2p"]:
        A.label("A_pf")
        A("s_sub_u32 s46, s7, 56"); A("s_lshl_b32 s46, s46, 2"); A("s_add_u32 s46, s46, s40")
        A("s_lshr_b32 s47, s6, 2")
        A(f"s_mul_i32 s50, s46, {10*3840}"); A("s_mul_i32 s51, s47, 640"); A("s_add_u32 s50, s50, s51"); A(f"s_add_u32 s50, s50, {320*3840}")
        for k in range(3):
            A(f"v_add_u32 v176, {64*k}, v1"); A("v_min_u32 v176, 149, v176")
            A("v_mul_u32_u24 v177, 4370, v176"); A("v_lshrrev_b32 v177, 16, v177")
            A("v_mul_u32_u24 v178, 15, v177"); A("v_sub_u32 v176, v176, v178")
            A("v_mul_u32_u24 v178, 52, v176"); A("v_lshrrev_b32 v178, 8, v178")
            A("v_mul_u32_u24 v177, 3840, v177"); A("v_lshl_add_u32 v177, v176, 7, v177")
            A("v_mul_u32_u24 v178, 640, v178"); A("v_add3_u32 v177, v177, v178, s50")
            A(f"global_load_dword v{180+k}, v177, {s(S_WQKV,2)}")
        A("s_and_b32 s50, s6, 3"); A("s_lshl_b32 s50, s50, 5"); A("s_add_u32 s50, s50, s46"); A(f"s_mul_i32 s50, s50, {16*1280}")
        A("s_lshl_b32 s47, s47, 7"); A("s_add_u32 s50, s50, s47"); A("s_add_u32 s50, s50, 640")
        A("v_and_b32 v176, 15, v1"); A("v_bfe_u32 v177, v1, 4, 1"); A("v_mul_u32_u24 v176, 1280, v176")
        A("v_lshl_add_u32 v176, v177, 8, v176"); A("v_add_u32 v176, s50, v176")
        A(f"global_load_dword v183, v176, {s(S_U,2)}")
        A("s_branch A_pfr")

def T_head(A, sN):
    A("v_lshrrev_b32 v2, 3, v1"); A("v_and_b32 v3, 7, v1")
    A("v_mul_u32_u24 v4, 10240, v2"); A("v_lshl_add_u32 v4, v3, 4, v4")
    A("v_add_u32 v5, 5120, v4")
    A("s_and_b32 s41, s6, 3"); A("s_lshl_b32 s41, s41, 3"); A(f"s_lshr_b32 s54, s{sN}, 3"); A("s_add_u32 s41, s41, s54"); A("s_lshr_b32 s42, s6, 2")
    A("s_lshl_b32 s43, s40, 1"); A("s_add_u32 s53, s43, 6"); A("s_add_u32 s43, s43, s42"); A("s_sub_u32 s53, s53, s42")
    A(f"s_mul_i32 s44, s41, {64*1280}")
    if OPT["tfix"]: A("s_min_u32 s45, s43, 4"); A("s_lshl_b32 s45, s45, 7")
    else: A("s_lshl_b32 s45, s43, 7")
    A("s_add_u32 s45, s44, s45")
    A("s_waitcnt lgkmcnt(0)")
    A(f"s_add_u32 s48, s{S_U}, s45"); A(f"s_addc_u32 s49, s{S_U+1}, 0")
    if OPT["g3"]:
        A("s_cmp_eq_u32 s40, 0"); A("s_cbranch_scc1 T_h0")
        A("v_subrev_u32 v9, 64, v0"); A("v_min_u32 v9, 89, v9"); A("v_lshlrev_b32 v9, 7, v9")
        A(f"s_mul_i32 s54, s{sN}, {3*3840}"); A(f"s_add_u32 s54, s54, {128*3840}"); A("v_add_u32 v9, s54, v9")
        A("s_barrier")
        A(f"global_load_dword v130, v9, {s(S_WQKV,2)}")
        A.label("T_h0")
    for i in range(8):
        A(f"global_load_dwordx4 {v(16+4*i,4)}, v{4 if i<4 else 5}, s[48:49] offset:{1280*(i%4)}")
    A("s_branch T_tr2")

def T_role(A, sN):
    ZW = ZPW * 8 // 64
    A(f"s_mul_i32 s52, s{sN}, {ZW}"); A(f"s_add_u32 s52, s52, {WS_KV}")
    A("v_lshl_add_u32 v8, v1, 4, s52")
    nfull = (ZW//16 - 1)//64
    A(f"v_min_u32 v9, {ZW//16-64*nfull-1}, v1")
    A("v_lshl_add_u32 v9, v9, 4, s52")
    for i in range(4): A(f"v_mov_b32 v{12+i}, 0")
    A("s_waitcnt lgkmcnt(0)")
    for k in range(nfull): A(f"global_store_dwordx4 v8, v[12:15], {s(S_WS,2)} offset:{1024*k} sc1")
    A(f"global_store_dwordx4 v9, v[12:15], {s(S_WS,2)} offset:{1024*nfull} sc1")
    if OPT["g3"]: A("s_barrier"); A("s_barrier")
    A("s_waitcnt vmcnt(0)")
    if OPT["twait"] == 2:
        A(f"s_add_u32 s52, s{sN}, 128"); A("s_lshl_b32 s52, s52, 8"); A(f"s_add_u32 s52, s52, {WS_CP}"); A("v_mov_b32 v16, s52")
        A(f"global_load_dword v17, v16, {s(S_WS,2)} sc1")
    A("v_mov_b32 v10, 0"); A("v_mov_b32 v11, 1")
    A("s_mov_b64 exec, 1")
    if OPT['tm']:
        A(f"global_atomic_add v10, v11, {s(S_DBG,2)} sc1")
        A("s_mov_b64 exec, -1")
        A("s_barrier")
        A(f"global_load_dword v11, v10, {s(S_DBG,2)} sc1")
        A(f"s_mul_i32 s52, s{sN}, 12800"); A("v_min_u32 v8, 49, v1"); A("v_lshl_add_u32 v8, v8, 8, s52")
        A(f"global_load_dword v14, v8, {s(S_WO,2)}")
        A(f"global_load_dword v15, v8, {s(S_WO,2)} offset:128")
        poll(A, 10, S_DBG, 64, 1, vt=11, sleep=16, first_loaded=True)
        A("s_barrier")
        lsignal(A, WS_C2, S_WS, 1, 64, 128, va=10, vd=11, fbase=S_DBG, hint=WS_UH if OPT['uh'] < 448 else None)
    else:
        if OPT["wop"] == 3:
            A("s_mov_b64 exec, -1")
            A(f"s_mul_i32 s52, s{sN}, 12800"); A("v_min_u32 v8, 49, v1"); A("v_lshl_add_u32 v8, v8, 8, s52")
            A(f"global_load_dword v12, v8, {s(S_WO,2)}")
            A(f"global_load_dword v13, v8, {s(S_WO,2)} offset:128")
            A("s_mov_b64 exec, 1")
        A("s_barrier")
        A(f"global_atomic_add v10, v11, {s(S_DBG,2)} sc1")
        A("s_mov_b64 exec, -1")
        A(f"s_mul_i32 s52, s{sN}, 12800"); A("v_min_u32 v8, 49, v1"); A("v_lshl_add_u32 v8, v8, 8, s52")
        if OPT["wop"] == 1: A("s_waitcnt vmcnt(0)")
        if OPT["wop"] < 2:
            A(f"global_load_dword v12, v8, {s(S_WO,2)}")
            A(f"global_load_dword v13, v8, {s(S_WO,2)} offset:128")
        A("s_barrier")
        poll(A, 10, S_DBG, 64, 1, vt=11, sleep=16)
        lsignal(A, WS_C2, S_WS, 1, 64, 128, va=10, vd=11, fbase=S_DBG, hint=WS_UH if OPT['uh'] < 448 else None)
    if OPT["twait"] == 2:
        poll(A, 16, S_WS, "v17", 1, vt=18, sleep=4, cmp="ne", spin=48)
    elif OPT["twait"]:
        A("v_mov_b32 v10, 128")
        poll(A, 10, S_DBG, 1, 1, vt=11, sleep=16)
    A("s_branch T_done")
    A.label("T_tr2")
    A("s_min_u32 s45, s53, 9"); A("s_lshl_b32 s45, s45, 7"); A("s_add_u32 s45, s44, s45")
    A(f"s_add_u32 s48, s{S_U}, s45"); A(f"s_addc_u32 s49, s{S_U+1}, 0")
    A(f"v_mul_u32_u24 v6, {8*OPT['rs']}, v3"); A("v_lshl_add_u32 v6, v2, 4, v6")
    A("s_lshl_b32 s46, s41, 7"); A(f"s_add_u32 s55, s46, {WS_UT}")
    A("s_mov_b32 s46, 0x05040100"); A("s_mov_b32 s47, 0x07060302")
    R2 = 10 - OPT["r1"]
    A(f"v_min_u32 v9, {30*R2-1}, v0"); A("v_lshlrev_b32 v9, 7, v9")
    A(f"s_mul_i32 s54, s{sN}, {R2*3840}"); A(f"s_add_u32 s54, s54, {64*OPT['r1']*3840}"); A("v_add_u32 v9, s54, v9")
    if OPT["gt"]:
        A("s_min_u32 s57, s43, 9"); A("s_lshl_b32 s57, s57, 7"); A("v_lshl_add_u32 v10, v3, 4, s57")
        A(f"global_load_dwordx4 v[132:135], v10, {s(S_GW,2)}")
        A("s_min_u32 s57, s53, 9"); A("s_lshl_b32 s57, s57, 7"); A("v_lshl_add_u32 v10, v3, 4, s57")
        A(f"global_load_dwordx4 v[136:139], v10, {s(S_GW,2)}")
        for i in range(8): A(f"v_mov_b32 v{140+i}, 0")
    stamp(A, 1)
    if OPT["g3"]:
        A("s_cmp_lg_u32 s40, 0"); A("s_cbranch_scc1 T_h1")
        A(f"s_waitcnt vmcnt({OPT['tw']})"); A("s_barrier")
        A.label("T_h1")
    if OPT["g3"] != 2: A("s_waitcnt vmcnt(0)")
    if OPT["g3"]: A("s_barrier")
    stamp(A, 2)
    if OPT['tm']:
        for i in range(8):
            A(f"global_load_dwordx4 {v(80+4*i,4)}, v{4 if i<4 else 5}, s[48:49] offset:{1280*(i%4)}")
        A(f"global_load_dword v129, v9, {s(S_WQKV,2)}")
        A(f"s_waitcnt vmcnt({OPT['tm']-1})")
        A("s_barrier")
        stamp(A, 3)
        A("s_mov_b32 s56, 5")
        A.label("T_loop")
        A("s_cmp_ge_u32 s43, s56"); A("s_cbranch_scc1 T_skip")
        A(f"s_mul_i32 s45, s43, {64*OPT['rs']}"); A("s_add_u32 s45, s45, s55")
        A(f"s_add_u32 s50, s{S_WS}, s45"); A(f"s_addc_u32 s51, s{S_WS+1}, 0")
        for k in range(8):
            for i in range(4):
                A(f"v_perm_b32 v{48+4*k+i}, v{16+8*i+4+k//2}, v{16+8*i+k//2}, s{47 if k%2 else 46}")
            A(f"global_store_dwordx4 v6, {v(48+4*k,4)}, s[50:51] sc1")
            A(f"s_add_u32 s50, s50, {OPT['rs']}"); A("s_addc_u32 s51, s51, 0")
        A.label("T_skip")
        A("s_cmp_eq_u32 s56, 10"); A("s_cbranch_scc1 T_fin")
        A("s_mov_b32 s43, s53"); A("s_mov_b32 s56, 10")
        for i in range(32): A(f"v_mov_b32 v{16+i}, v{80+i}")
        A("s_branch T_loop")
    else:
        A("s_mov_b32 s56, 5")
        if OPT["t3"]:
            for i in range(8):
                A(f"global_load_dwordx4 {v(80+4*i,4)}, v{4 if i<4 else 5}, s[48:49] offset:{1280*(i%4)}")
            A(f"global_load_dword v129, v9, {s(S_WQKV,2)}")
            A("s_waitcnt vmcnt(9)")
        A.label("T_loop")
        A("s_cmp_ge_u32 s43, s56"); A("s_cbranch_scc1 T_skip")
        A(f"s_mul_i32 s45, s43, {64*OPT['rs']}"); A("s_add_u32 s45, s45, s55")
        A(f"s_add_u32 s50, s{S_WS}, s45"); A(f"s_addc_u32 s51, s{S_WS+1}, 0")
        for k in range(8):
            for i in range(4):
                A(f"v_perm_b32 v{48+4*k+i}, v{16+8*i+4+k//2}, v{16+8*i+k//2}, s{47 if k%2 else 46}")
            A(f"global_store_dwordx4 v6, {v(48+4*k,4)}, s[50:51] sc1" + (" nt" if OPT["wnt"] & 1 else ""))
            A(f"s_add_u32 s50, s50, {OPT['rs']}"); A("s_addc_u32 s51, s51, 0")
        if OPT["gt"]:
            for c in range(4):
                for i in range(8): A(f"v_dot2_f32_bf16 v{140+i}, v{16+4*i+c}, v{132+c}, v{140+i}")
        A.label("T_skip")
        if OPT["gt"]:
            for c in range(4): A(f"v_mov_b32 v{132+c}, v{136+c}")
        A("s_cmp_eq_u32 s56, 10"); A("s_cbranch_scc1 T_fin")
        if OPT["t3"]:
            A("s_mov_b32 s43, s53"); A("s_mov_b32 s56, 10")
            A("s_waitcnt vmcnt(0)")
            A("s_barrier")
            stamp(A, 3)
            for i in range(32): A(f"v_mov_b32 v{16+i}, v{80+i}")
            A("s_branch T_loop")
        else:
            for i in range(8):
                A(f"global_load_dwordx4 {v(16+4*i,4)}, v{4 if i<4 else 5}, s[48:49] offset:{1280*(i%4)}")
            A(f"global_load_dword v129, v9, {s(S_WQKV,2)}")
            if OPT["wop"] == 4:
                A(f"s_mul_i32 s52, s{sN}, 12800"); A("v_min_u32 v8, 99, v0"); A("v_lshl_add_u32 v8, v8, 7, s52")
                A(f"global_load_dword v130, v8, {s(S_WO,2)}")
            A("s_mov_b32 s43, s53"); A("s_mov_b32 s56, 10")
            A(f"s_waitcnt vmcnt({10 if OPT['wop'] == 4 else 9})")
            A("s_barrier")
            stamp(A, 3)
            A(f"s_waitcnt vmcnt({2 if OPT['wop'] == 4 else 1})")
            A("s_branch T_loop")
    A.label("T_fin")
    if OPT["gt"]:
        A("s_nop 3")
        for ctl in ("quad_perm:[1,0,3,2]", "quad_perm:[2,3,0,1]", "row_half_mirror"):
            for i in range(8): A(f"v_add_f32_dpp v{140+i}, v{140+i}, v{140+i} {ctl} row_mask:0xf bank_mask:0xf")
        for i in range(1, 8):
            A(f"v_cmp_eq_u32 vcc, {i}, v3"); A(f"v_cndmask_b32 v140, v140, v{140+i}, vcc")
        A("s_lshl_b32 s57, s41, 11"); A("s_lshl_b32 s58, s42, 2"); A("s_add_u32 s58, s58, s40"); A("s_lshl_b32 s58, s58, 2")
        A("s_add_u32 s57, s57, s58"); A(f"s_add_u32 s57, s57, {WS_G}")
        A("v_lshl_add_u32 v10, v1, 5, s57")
        A(f"global_store_dword v10, v140, {s(S_WS,2)} sc1")
    A("s_waitcnt vmcnt(0)")
    A("s_barrier")
    stamp(A, 4)
    A.label("T_done")
    A("s_barrier")
    stamp(A, 5)

F_RB, F_CB, F_X, F_LB, F_SW, F_VA = 16, 17, 18, 19, 12, 220
def F_pre(A, sN):
    A(f"s_and_b32 s20, s{sN}, 7"); A(f"s_lshr_b32 s21, s{sN}, 3")
    A("s_mul_i32 s22, s21, 52"); A("s_lshr_b32 s22, s22, 8")
    A(f"s_lshl_b32 s{F_RB}, s20, 2"); A(f"s_add_u32 s{F_RB}, s{F_RB}, s22")
    A("s_mul_i32 s22, s22, 5"); A(f"s_sub_u32 s{F_CB}, s21, s22")
    if OPT["py"]:
        A(f"s_lshl_b32 s20, s{F_CB}, 2"); A("s_lshr_b32 s20, 0x16420, s20")
        A(f"s_and_b32 s{F_X}, s20, 3"); A("s_bfe_u32 s11, s20, 0x10002")
    else:
        A(f"s_and_b32 s{F_X}, s{F_CB}, 3"); A("s_mov_b32 s11, 0")
    A(f"s_lshl_b32 s{F_LB}, s40, 10")
    srd(A, F_SW, S_WO, 640*1280)
    A(f"v_lshrrev_b32 v{F_VA}, 4, v0"); A(f"v_and_b32 v{F_VA+1}, 15, v0")
    A(f"v_and_b32 v{F_VA+2}, 3, v{F_VA}"); A(f"v_lshlrev_b32 v{F_VA+2}, 2, v{F_VA+2}"); A(f"v_xor_b32 v{F_VA+1}, v{F_VA+1}, v{F_VA+2}")
    A(f"v_mul_u32_u24 v{F_VA}, 1280, v{F_VA}"); A(f"v_lshl_add_u32 v{F_VA}, v{F_VA+1}, 4, v{F_VA}")
    A(f"s_lshl_b32 s20, s{F_CB}, 8"); A(f"v_add_u32 v{F_VA}, s20, v{F_VA}")
    for l in range(4):
        A(f"s_xor_b32 s20, s{F_X}, {l}"); A(f"s_mul_i32 s{26+l}, s20, {160*1280}")
    a, b, c, d = 234, 235, 236, 237
    A(f"v_bfe_u32 v{c}, v1, 2, 2"); A(f"v_lshrrev_b32 v{d}, 5, v1")
    A(f"v_and_b32 v{a}, 1, v1"); A(f"v_bfe_u32 v{b}, v1, 1, 1"); A(f"v_lshl_add_u32 v{a}, v{a}, 1, v{b}")
    A("s_lshl_b32 s20, s40, 6")
    A(f"v_lshl_add_u32 v{a}, v{a}, 3, s20"); A(f"v_bfe_u32 v{b}, v1, 4, 1"); A(f"v_lshl_add_u32 v{a}, v{b}, 5, v{a}")
    A(f"v_lshlrev_b32 v{b}, 6, v{c}"); A(f"v_xor_b32 v{a}, v{a}, v{b}")
    A(f"v_lshl_add_u32 v{a}, v{c}, 8, v{a}")
    A(f"v_mul_u32_u24 v{b}, {20*256}, v{d}"); A(f"v_add_u32 v{b}, {16*256}, v{b}"); A(f"v_add_u32 v{b}, v{b}, v{a}")
    A(f"v_lshl_add_u32 v{a}, v{d}, 10, v{a}")
    A(f"v_add_u32 v{c}, 40960, v{a}"); A(f"v_add_u32 v{d}, 40960, v{b}")
F_QB = [26, 27, 28, 29]
def wo_piece(j, k):
    return [f"s_add_u32 m0, s{F_LB}, {20480*(j%4) + 4096*k}", f"s_add_u32 s20, s{F_QB[j//2]}, {(80*(j%2) + 16*k)*1280}",
            f"buffer_load_dwordx4 v{F_VA}, {s(F_SW,4)}, s20 offen lds"]
def wo_dma(j):
    return [wo_piece(j, k) for k in range(5)]
F_RA = 234
def wo_read(j, ra):
    l, e = divmod(j, 2); b = j % 4; up = 2*(b//2); o = 20480*(b%2)
    R = []
    for p2 in range(2):
        for s_ in range(2):
            for h in range(2):
                R.append(f"ds_read_b64_tr_b16 {v(96+8*(5*l+2*e+p2)+4*s_+2*h, 2)}, v{ra[up]} offset:{o+256*(40*p2+20*h+8*s_)}")
    for s_ in range(2):
        R.append(f"ds_read_b64_tr_b16 {v(96+8*(5*l+4)+4*s_+2*e, 2)}, v{ra[up+1]} offset:{o+256*40*s_}")
    return R

def F_role(A):
    sRB, sCB = F_RB, F_CB
    SS = 52
    vWf = 96
    vAcc = 64
    vGt = 44
    vR1, vR2, vRo, vO, vRd = 2, 3, 4, 5, 46
    def flat(G):
        for g in G:
            for l in g: A(l)
    RA = [2, 3, 6, 7]
    if OPT["fst"] == 2: stamp(A, 1)
    if OPT["gt"]:
        A("v_mov_b32 v44, 128"); A(f"global_load_dword v45, v44, {s(S_DBG,2)} sc1")
    flat(wo_dma(4) + wo_dma(5))
    for k in range(4): A(f"v_mov_b32 v{RA[k]}, v{F_RA+k}")
    A(f"s_mov_b32 s56, s{F_X}"); A("s_lshl_b32 s45, s40, 10")
    A("v_bfe_u32 v10, v1, 2, 2"); A("v_and_b32 v11, 3, v1")
    A("v_bfe_u32 v8, v1, 4, 1"); A("v_lshrrev_b32 v9, 5, v1")
    flat(wo_dma(6))
    srd(A, SS, S_WS, WSZ)
    A(f"v_lshlrev_b32 v{vRd}, 4, v1")
    A(f"s_mul_i32 s41, s{sRB}, 5"); A(f"s_add_u32 s41, s41, s{sCB}"); A(f"s_lshl_b32 s41, s41, {CSH}"); A(f"s_add_u32 s41, s41, {WS_CF}")
    A(f"s_lshl_b32 s42, s{sCB}, 2"); A("s_add_u32 s42, s42, s40"); A("s_lshl_b32 s42, s42, 11"); A(f"s_add_u32 s42, s42, {WS_FA}")
    A("v_min_u32 v20, 15, v1"); A("v_lshl_add_u32 v20, v20, 7, s42")
    A("s_add_u32 s41, s41, s25")
    A("v_mov_b32 v21, s41")
    A("v_lshrrev_b32 v22, 3, v1"); A("v_and_b32 v23, 7, v1")
    A(f"v_mul_u32_u24 v22, {OPT['rs']}, v22"); A("v_lshl_add_u32 v22, v23, 4, v22")
    A(f"s_lshl_b32 s57, s{sCB}, 2"); A("s_add_u32 s57, s57, s40"); A(f"s_mul_i32 s57, s57, {32*OPT['rs']}")
    A(f"s_lshl_b32 s42, s{sRB}, 7"); A("s_add_u32 s57, s57, s42")
    A("s_lshl_b32 s58, s40, 12")
    if OPT["pre"]: A("s_add_u32 s58, s58, 40960")
    if OPT["ra"]: A("s_add_u32 s58, s58, 61440")
    A("v_lshl_add_u32 v23, v9, 3, v10"); A("v_lshlrev_b32 v23, 7, v23"); A("v_lshl_add_u32 v23, v8, 5, v23")
    A("v_lshl_add_u32 v23, v11, 3, v23"); A("s_lshl_b32 s42, s11, 6"); A("s_add_u32 s42, s42, s58"); A("v_add_u32 v23, s42, v23")
    A("v_and_b32 v24, 31, v1"); A(f"s_lshl_b32 s41, s{sRB}, 6"); A("v_add_u32 v24, s41, v24")
    A("s_lshl_b32 s42, s11, 7"); A(f"s_add_u32 s42, s42, {WS_G}"); A(f"v_lshl_add_u32 v25, v24, {5 if OPT['gt'] else 2}, s42")
    A("v_mul_u32_u24 v24, 1280, v24"); A("v_lshl_add_u32 v24, v9, 4, v24")
    A(f"s_lshl_b32 s41, s{sCB}, 8"); A("s_lshl_b32 s42, s40, 6"); A("s_add_u32 s41, s41, s42")
    if not OPT["full"]:
        A(f"v_add_u32 v{vO}, s41, v24"); A(f"v_add_u32 v47, {32*1280}, v{vO}")
    else:
        A("v_and_b32 v24, 31, v1"); A("v_mul_u32_u24 v24, 272, v24"); A("v_lshl_add_u32 v24, v9, 4, v24")
        A("s_add_u32 s42, s42, 20480"); A("v_add_u32 v47, s42, v24")
        A("v_lshrrev_b32 v24, 4, v1"); A("s_lshl_b32 s42, s40, 3"); A("v_add_u32 v24, s42, v24"); A("v_and_b32 v26, 15, v1")
        A("v_mul_u32_u24 v27, 272, v24"); A("v_lshl_add_u32 v27, v26, 4, v27"); A("v_add_u32 v27, 20480, v27")
        A(f"s_lshl_b32 s42, s{sRB}, 6"); A("v_add_u32 v24, s42, v24"); A("v_mul_u32_u24 v24, 1280, v24")
        A("v_lshl_add_u32 v24, v26, 4, v24"); A(f"s_lshl_b32 s41, s{sCB}, 8"); A(f"v_add_u32 v{vO}, s41, v24")

    A("v_and_b32 v24, 15, v1"); A("v_lshl_add_u32 v24, v9, 4, v24"); A("v_lshlrev_b32 v24, 4, v24")
    A(f"v_lshl_add_u32 v{vRo}, v8, 12, v24")
    if OPT["gt"]: A("v_lshl_add_u32 v24, v8, 3, v24"); A("v_mov_b32 v26, v24")
    else:
        A("s_and_b32 s41, s56, 1"); A("v_xor_b32 v26, s41, v8")
        A("v_lshl_add_u32 v24, v26, 3, v24"); A("v_xor_b32 v26, 8, v24")
    A(f"s_lshl_b32 s47, s{sRB}, 1"); A("s_add_u32 s47, s47, s11"); A("s_mul_i32 s47, s47, 40960"); A(f"s_add_u32 s47, s47, {WS_OF}")
    A("s_mul_i32 s43, s11, 81920"); A("s_sub_u32 s43, 40960, s43")
    for l in range(4):
        A(f"s_xor_b32 s41, s56, {l}"); A("s_mul_i32 s41, s41, 10240"); A("s_add_u32 s41, s41, s47"); A(f"s_add_u32 s{60+l}, s41, s45")
        if l & 1: A(f"s_sub_u32 s{60+l}, s{60+l}, 10240")
    A("s_cmp_lt_u32 s40, 2"); A("s_cselect_b32 s64, s60, s61"); A("s_cselect_b32 s65, s62, s63")
    def fin_sig():
        A("s_cmp_eq_u32 s10, 0"); A("s_cbranch_scc1 F_nofin")
        msignal(A, 63, 16, vd=62)
        A.label("F_nofin")
    A("s_waitcnt vmcnt(15)"); A("s_barrier")
    if OPT["fst"] == 2: stamp(A, 2)
    for l in wo_read(3, RA): A(l)
    A("s_waitcnt vmcnt(10) lgkmcnt(0)"); A("s_barrier")
    if OPT["fst"] == 2: stamp(A, 3)
    flat(wo_dma(7))
    if OPT["ks"]: fin_sig()
    for l in wo_read(4, RA): A(l)
    A(f"s_waitcnt vmcnt({6 if OPT['ks'] else 5})") if False else A("s_waitcnt vmcnt(5)")
    A("s_barrier")
    if OPT["fst"] == 2: stamp(A, 4)
    for l in wo_read(5, RA) + wo_read(6, RA): A(l)
    if OPT["ks"]:
        A("s_cmp_eq_u32 s10, 0"); A("s_cbranch_scc1 F_w0")
        A("s_waitcnt vmcnt(1)"); A("s_branch F_w1")
        A.label("F_w0"); A("s_waitcnt vmcnt(0)"); A.label("F_w1")
    else: A("s_waitcnt vmcnt(0)")
    A("s_barrier")
    if OPT["fst"] == 2: stamp(A, 5)
    if OPT["gt"]:
        A("v_readfirstlane_b32 s42, v45")
        A("s_cmp_ge_u32 s42, 1"); A("s_cbranch_scc1 F_gok")
        poll(A, 44, S_DBG, 1, 1, vt=45, sleep=8)
        A.label("F_gok")
        for P in range(2):
            for h in range(2): A(f"global_load_dwordx3 {v(64+8*P+4*h,3)}, v25, {s(S_WS,2)} offset:{1024*P+16*h} sc1")
    for l in wo_read(7, RA): A(l)
    A("s_waitcnt lgkmcnt(0)")
    stamp(A, 7)
    vAt = 48
    A(f"s_mul_i32 s41, s11, {32*1280}"); A(f"s_sub_u32 s42, {32*1280}, s41")
    A(f"v_add_u32 v2, s42, v{vO}"); A(f"v_add_u32 v{vO}, s41, v{vO}")
    A(f"v_add_u32 v7, {4*1280}, v{vO}"); A(f"v_add_u32 v3, {4*1280}, v2")
    atd = [[f"s_add_u32 m0, s58, {1024*j}", f"s_add_u32 s42, s57, {8*OPT['rs']*j}", f"buffer_load_dwordx4 v22, {s(SS,4)}, s42 offen sc1 lds"] for j in range(4)]
    atr = [[f"ds_read_b64_tr_b16 {v(vAt+8*P+2*qd,2)}, v23 offset:{2048*(qd//2)+512*(qd%2)}" for qd in range(4)] + (["v_xor_b32 v23, 64, v23"] if P == 0 else []) for P in range(2)]
    if OPT["pre"]:
        poll(A, 20, S_WS, 1, "0xffff", vt=6, sleep=3)
        flat(atd)
        A("s_waitcnt vmcnt(0)")
        flat(atr)
        A("s_waitcnt lgkmcnt(0)")
    if OPT["fst"] == 3: stamp(A, 1)
    A("s_cmp_lg_u32 s40, 0"); A("s_cbranch_scc1 F_go")
    A("s_mov_b64 exec, 1")
    if OPT["fp"]: fpoll(A, 21, S_WS, 8, 60, OPT["fp"], OPT["gap"])
    else: poll(A, 21, S_WS, 8, 1, vt=6, sleep=OPT["fs"], first_loaded=bool(OPT["ep"]))
    A("s_mov_b64 exec, -1")
    A.label("F_go")
    A("s_barrier")
    stamp(A, 8)
    def odma(gi):
        G = []
        for m in range(5):
            sb = 60+2*(gi%2) if m < 2 else 61+2*(gi%2) if m > 2 else 64+(gi%2)
            pre = [f"s_add_u32 s{sb}, s{sb}, s43"] if (gi >= 2 and m in (0, 2, 3)) else []
            G.append(pre + [f"s_add_u32 m0, s45, {(0 if (gi == 3 and OPT['ra']) else 20480*gi) + 4096*m}", f"s_add_u32 s42, s{sb}, {4096*m}",
                      f"buffer_load_dwordx4 v{vRd}, {s(SS,4)}, s42 offen sc1 lds"])
        return G
    for g in odma(0) + odma(1)[:2]:
        for l in g: A(l)
    if OPT["gt"]:
        A("s_waitcnt vmcnt(7)")
        for P in range(2):
            b = 64 + 8*P
            A(f"v_add_f32 v{b}, v{b}, v{b+1}"); A(f"v_add_f32 v{b+2}, v{b+2}, v{b+4}"); A(f"v_add_f32 v{b+5}, v{b+5}, v{b+6}")
            A(f"v_add_f32 v{b}, v{b}, v{b+2}"); A(f"v_add_f32 v{b}, v{b}, v{b+5}")
            A(f"v_mul_f32 v{b}, {hex(f2u(-LOG2E))}, v{b}"); A(f"v_exp_f32 v{b}, v{b}"); A(f"v_add_f32 v{b}, 1.0, v{b}"); A(f"v_rcp_f32 v{vGt+P}, v{b}")
    if OPT["fst"] == 1: stamp(A, 1)
    fr = [28, 32, 36, 40, 8, 12, 16, 48, 52, 56, 60][:OPT["nr"]]
    NR = len(fr); LOOK = NR - 2
    seq = [(n, k) for n in range(8) for k in range(10)]
    def rd(i):
        n, k = seq[i]; s_, ph = k % 2, k // 2; r = fr[i % NR]
        if OPT["ra"] and n >= 6: n -= 2
        if ph < 4: return [f"ds_read_b128 {v(r,4)}, v{vRo} offset:{10240*(n%4) + 512*s_ + 1024*ph}"]
        return [f"ds_read_b64 {v(r+2*c,2)}, v{[24,26][n&1]} offset:{10240*(n%4) + 8192 + 1024*c + 512*s_}" for c in range(2)]
    issued = []; done = [0]
    def issue(i):
        if i == 40:
            for r in (vRo, 24, 26): A(f"v_add_u32 v{r}, 40960, v{r}")
        if i == 60 and OPT["ra"]:
            for r in (vRo, 24, 26): A(f"v_subrev_u32 v{r}, 40960, v{r}")
        for l in rd(i):
            A(l); issued.append(i)
    def need_i(i):
        idx = max(j for j, x in enumerate(issued) if x == i)
        if idx >= done[0]:
            n = min(15, len(issued) - 1 - idx)
            A(f"s_waitcnt lgkmcnt({n})"); done[0] = len(issued) - n
    if OPT["two"]: OPT["lp"] = [0,1,2] + [OPT["ls"] + k for k in (0,1,2,3,4, 6,8,10,12,14)]
    if OPT["ra"]:
        fl_ = [f"global_load_dword v6, v20, {s(S_WS,2)} sc1"]
        if OPT["flp"] < 0: A(fl_[0])
        late = [(g, p) for g, p in zip(odma(1)[2:], [0,1,2])]
        if OPT["flp"] >= 0: late.insert(0, (fl_, OPT["flp"]))
        late += [(g, OPT["ls"] + k) for k, g in enumerate(odma(2))]
        c_ = OPT["ra"]
        chk = [f"s_waitcnt vmcnt({3 + sum(1 for k in range(5) if OPT['ls'] + k < c_)})", "v_cmp_le_u32 vcc, 1, v6", "s_cmp_eq_u32 vcc_lo, -1", "s_cbranch_scc0 F_slow", "F_at:"]
        assert c_ >= OPT["ls"] + 5
        late += [((chk if j == 0 else []) + g, c_ + j) for j, g in enumerate(atd)]
        late += [(g, max(25, c_ + 4) + k) for k, g in enumerate(odma(3))]
        needn = {0: 3, 10: 5, 20: 9, 30: 11, 40: 14, 50: 16, 60: 23, 70: 25}
    else:
        late = [(g, p) for g, p in zip(odma(1)[2:] + odma(2) + odma(3), OPT["lp"])]
        if not OPT["gt"]: late += [([f"global_load_dword v{vGt+P}, v25, {s(S_WS,2)} sc1"] + (["v_xor_b32 v25, 128, v25"] if P == 0 else []), OPT["lp"][-1]+1+P) for P in range(2)]
        needn = {0: 3, 10: 5, 20: 8, 30: 10, 40: 13, 50: 15, 60: 20}
        if not OPT["pre"]:
            if OPT["fl0"]:
                A(f"global_load_dword v6, v20, {s(S_WS,2)} sc1")
                for n in needn:
                    if n >= 20: needn[n] += 1
            else:
                k = needn[OPT["ca"]] - 7
                late.insert(k, ([f"global_load_dword v6, v20, {s(S_WS,2)} sc1"], late[k-1][1] + 1))
                for n in needn:
                    if n >= OPT["ca"]: needn[n] += 1
    vOm = 22 if OPT['ra'] else 160; vT = 96
    def ga(P):
        V = []
        for qd in range(4):
            tm = vT + 16*P + 4*qd; a_ = vAt + 8*P + 2*qd
            V += [f"v_lshlrev_b32 v{tm}, 16, v{a_}", f"v_and_b32 v{tm+1}, 0xffff0000, v{a_}",
                  f"v_lshlrev_b32 v{tm+2}, 16, v{a_+1}", f"v_and_b32 v{tm+3}, 0xffff0000, v{a_+1}"]
            V += [f"v_mul_f32 v{tm+k}, v{tm+k}, v{vGt+P}" for k in range(4)]
        return V
    def fin(P):
        V = []; o = 128 + 8*P
        for qd in range(4):
            tm = vT + 16*P + 4*qd; ac = vAcc + 16*P + 4*qd
            V += [f"v_fmac_f32 v{tm+k}, v{ac+k}, v{vOm+P}" for k in range(4)]
            V += cvt4(tm, o+2*qd)
            if qd & 1 and OPT["full"]: V.append(f"ds_write_b128 v47, {v(o+2*qd-2,4)} offset:{10240*P+16*(qd-1)}")
            elif qd & 1: V.append(f"global_store_dwordx4 v{[vO,47][P]}, {v(o+2*qd-2,4)}, {s(S_OUT,2)} offset:{16*(qd-1)}" + ["", " nt", " sc1", " sc0 sc1"][OPT["ont"]])
        return V
    g0 = ga(0)
    epi = [l for l in g0 if not l.startswith("v_mul")] + ([] if OPT["gt"] else ["s_waitcnt vmcnt(0)"]) + [f"v_sub_f32 v{vOm+P}, 1.0, v{vGt+P}" for P in range(2)] + [l for l in g0 if l.startswith("v_mul")] + fin(0) + ga(1)
    if OPT["hk"]:
        fin_ = fin
        def fin(P): return [l for l in fin_(P) if not l.startswith("v_fmac")]
        dm_ = lambda P: [f"v_cndmask_b32 v{96+k}, 0, v44, s[62:63]" for k in range(8)] + [f"v_mfma_f32_32x32x16_bf16 {v(vAcc+16*P,16)}, {v(48+4*k,4)}, {v(96+4*k,4)}, {v(vAcc+16*P,16)}" for k in range(2)]
        epi = dm_(0) + dm_(1) + fin(0)
    if OPT["spec"]: epi = [f"v_cmp_u_f32 s[60:61], v{vAcc}, v{vAcc}", "s_lshl_b32 s42, s40, 2", "v_mov_b32 v20, s42", "v_mov_b32 v25, 0"] + epi
    E0 = OPT['e0']
    fl = ["", " nt", " sc1", " sc0 sc1", " sc1 nt"][OPT["ont"]]
    def rd2(P): return [f"ds_read_b128 {v(144+8*P+4*j,4)}, v27 offset:{10240*P+4*272*j}" for j in range(2)]
    def st2(P): return [f"global_store_dwordx4 v{[vO,7,2,3][2*P+j]}, {v(144+8*P+4*j,4)}, {s(S_OUT,2)}{fl}" for j in range(2)]
    nvm = 7 + (1 if ((OPT['fl0'] and not OPT['pre']) or (OPT['ra'] and OPT['flp'] < 0)) else 0)
    nxt = 0
    for i in range(80):
        while nxt < 80 and nxt <= i + LOOK and (nxt < 10 or i >= 2) and not (OPT['pw'] and i >= E0 and i % 2 == 1):
            if nxt in needn:
                A(f"s_waitcnt vmcnt({nvm - needn[nxt]})")
                assert nvm - needn[nxt] >= 0
                A("s_barrier")
                if OPT["fst"] == 1: stamp(A, min(6, 1 + list(needn).index(nxt)))
                if nxt == OPT["ca"] and not OPT["pre"] and not OPT["ra"]:
                    A("v_cmp_le_u32 vcc, 1, v6")
                    A("s_cmp_eq_u32 vcc_lo, -1")
                    A("s_cbranch_scc0 F_slow")
                    A.label("F_at")
                    late += [(g, max(i, late[-1][1]+1 if late else 0)+j) for j, g in enumerate(atd)]
            issue(nxt); nxt += 1
        if not OPT["pre"]:
            if i == E0 - 3:
                A(f"s_waitcnt vmcnt({5 if OPT['ra'] else 0})")
            if i == OPT["fchk"] and OPT["ks"]:
                A("v_or_b32 v21, 8, v21"); A(f"global_load_dwordx2 v[162:163], v21, {s(S_WS,2)} sc1")
            if E0 - 3 <= i < E0 - 1:
                for l in atr[i-(E0-3)]:
                    A(l)
                    if l.startswith("ds_"): issued.append(-1-(i-(E0-3)))
        if OPT["fst"] == 4 and i in (56, 58, 62, 68, 74, 77): stamp(A, 1 + (56, 58, 62, 68, 74, 77).index(i))
        n, k = seq[i]; s_, ph = k % 2, k // 2
        need_i(min(79, i+1) if (OPT['pw'] and i >= E0 and i % 2 == 0) else i)
        d = v(vAcc + 16*((i%2) if (OPT['alt'] and i < 56) else (n//4)), 16)
        A(f"v_mfma_f32_32x32x16_bf16 {d}, {v(vWf+8*(5*(n%4)+ph)+4*s_,4)}, {v(fr[i%NR],4)}, {'0' if i % 40 == 0 else d}")
        while late and late[0][1] <= i:
            for l in late.pop(0)[0]: A(l)
            nvm += 1
        if i == E0 and not OPT['pre']: need_i(-2)
        if i >= E0 and not OPT['fx'] & 4:
            for _ in range(OPT['epg'] if i < OPT['epx'] else OPT['ep2']):
                if epi:
                    if epi[0].startswith("ds_"): issued.append(-3)
                    A(epi.pop(0))
        if OPT["full"] and i == OPT["tb"] and OPT["mg"] != 1:
            assert issued.count(-3) == 2
            need_i(-3)
            if not OPT["fx"] & 8: A("s_barrier")
            for l in rd2(0): A(l); issued.append(-4)
        if OPT["full"] and i == OPT["tb"] + 3 and OPT["mg"] == 0:
            need_i(-4)
            if not OPT["fx"] & 16:
                for l in st2(0): A(l)
    assert not late
    stamp(A, 9)
    for l in epi + fin(1): A(l)
    sp = OPT["spec"]
    if OPT["fst"] == 5: stamp(A, 1)
    if sp:
        A(f"v_cmp_u_f32 vcc, v{vAcc+16}, v{vAcc+16}")
        A("s_or_b64 vcc, vcc, s[60:61]"); A("s_or_b32 s42, vcc_lo, vcc_hi")
        A("v_mov_b32 v6, s42")
        A("ds_write_b32 v20, v6 offset:40000")
    if OPT["mg"] == 2:
        A(f"s_waitcnt lgkmcnt({2+sp})")
        for l in st2(0): A(l)
    A("s_waitcnt lgkmcnt(0)"); A("s_barrier")
    if OPT["fst"] == 5: stamp(A, 2)
    RD = rd2(1) + (rd2(0) if OPT["mg"] == 1 else []); ST = st2(1) + (st2(0) if OPT["mg"] == 1 else [])
    for l in RD: A(l)
    if sp: A("ds_read_b128 v[8:11], v25 offset:40000")
    if OPT["mg"] == 3:
        for l in st2(0): A(l)
    for j, l in enumerate(ST):
        A(f"s_waitcnt lgkmcnt({len(ST)-1-j+sp})"); A(l)
    if OPT["fst"] == 5: stamp(A, 3)
    if sp:
        A("s_waitcnt lgkmcnt(0)")
        A("v_or3_b32 v8, v8, v9, v10"); A("v_or_b32 v8, v8, v11")
        A("v_readfirstlane_b32 s42, v8")
        if OPT["ks"]:
            A(f"s_mov_b32 s66, {OPT['spin']}")
            A("s_waitcnt vmcnt(4)")
            A.label("F_fchk")
            A("v_readfirstlane_b32 s44, v162"); A("v_readfirstlane_b32 s45, v163")
            A("s_cmp_ge_u32 s44, 8"); A("s_cbranch_scc1 F_fok")
            A("s_sleep 4")
            A(f"global_load_dwordx2 v[162:163], v21, {s(S_WS,2)} sc1")
            A("s_waitcnt vmcnt(0)")
            A("s_sub_u32 s66, s66, 1"); A("s_cmp_lg_u32 s66, 0"); A("s_cbranch_scc1 F_fchk")
            A.label("F_fok")
            A("s_or_b32 s42, s42, s45")
        A("s_cmp_eq_u32 s42, 0"); A("s_cbranch_scc1 F_end")
        A("s_cmp_lg_u32 s25, 0"); A("s_cbranch_scc1 F_end")
        A(f"s_mov_b32 s25, {8 if OPT['ks'] else 4}")
        A("s_waitcnt vmcnt(0)"); A("s_barrier")
        A("s_branch F_redo")
        A.label("F_end")
    if OPT["endw"] and gen.STAMPS: A("s_waitcnt vmcnt(0)")
    if OPT["hold"] and OPT["wh"]:
        A("s_cmp_ge_u32 s2, 128"); A("s_cbranch_scc1 F_nh")
        A("s_sub_u32 s60, s70, s68"); A(f"s_cmp_ge_u32 s60, {OPT['wh']}"); A("s_cbranch_scc1 F_nh")
    if OPT["hold"]:
        if OPT["dith"]:
            A("s_lshr_b32 s60, s68, 12"); A("s_mul_i32 s60, s60, 0x9E3779B1"); A("s_lshr_b32 s60, s60, 16"); A("s_mul_i32 s60, s60, 10000"); A("s_lshr_b32 s60, s60, 16")
            A("s_add_u32 s68, s68, s60"); A("s_mul_i32 s60, s25, 2500"); A("s_add_u32 s68, s68, s60")
        A(f"s_add_u32 s68, s68, {OPT['hold']}")
        A.label("F_hold")
        A("s_memrealtime s[60:61]"); A("s_waitcnt lgkmcnt(0)")
        A("s_sub_u32 s60, s60, s68"); A("s_cmp_lt_i32 s60, 0"); A("s_cbranch_scc1 F_hold")
        if OPT["wh"]: A.label("F_nh")
    endpgm(A)
    if not OPT["pre"]:
        A.label("F_slow")
        if OPT["fst"] == 1: stamp(A, 7)
        poll(A, 20, S_WS, 1, "0xffff", vt=6, sleep=5)
        A("s_branch F_at")

def unpack(lines):
    out = []
    def half(op, hi):
        m = re.match(r"([vs])\[(\d+):(\d+)\]", op)
        return f"{m.group(1)}{int(m.group(2))+hi}"
    for l in lines:
        if not l.startswith("v_pk_"):
            out.append(l); continue
        i = Ins(l); n = len(i.ops) - 1
        def mod(name, dflt):
            m = re.search(name + r":\[([01,]+)\]", i.mods)
            return [int(x) for x in m.group(1).split(",")] if m else [dflt]*n
        sel, selh, nl, nh = mod("op_sel", 0), mod("op_sel_hi", 1), mod("neg_lo", 0), mod("neg_hi", 0)
        if i.op == "v_pk_mov_b32":
            out += [f"v_mov_b32 {half(i.ops[0],0)}, {half(i.ops[1],sel[0])}", f"v_mov_b32 {half(i.ops[0],1)}, {half(i.ops[2],sel[1])}"]
            continue
        base = {"v_pk_mul_f32": "v_mul_f32", "v_pk_add_f32": "v_add_f32", "v_pk_fma_f32": "v_fma_f32"}[i.op]
        two = []
        for hi, (se, ng) in enumerate(((sel, nl), (selh, nh))):
            srcs = [half(i.ops[1+k], se[k]) for k in range(n)]
            if n == 2:
                if base == "v_add_f32" and ng[1] and not ng[0]:
                    two.append(f"v_sub_f32 {half(i.ops[0],hi)}, {srcs[0]}, {srcs[1]}"); continue
                assert not any(ng)
                if srcs[1].startswith("s"): srcs = srcs[::-1]
            else:
                srcs = [("-" if ng[k] else "") + srcs[k] for k in range(n)]
            two.append(f"{base} {half(i.ops[0],hi)}, " + ", ".join(srcs))
        assert not (Ins(two[0]).w & Ins(two[1]).r), l
        out += two
    return out

def build(path):
    _lab[0] = 0
    A = Asm(); prologue(A)
    if OPT["hold"] and not gen.STAMPS: A("s_memrealtime s[68:69]")
    if OPT["nq"]:
        A("s_cmp_ge_u32 s2, 448"); A("s_cbranch_scc1 X_exit")
        A("s_lshr_b32 s3, s2, 4"); A("s_and_b32 s3, s3, 28"); A("s_lshr_b32 s3, 0x7462310, s3"); A("s_and_b32 s3, s3, 7"); A("s_lshl_b32 s3, s3, 6")
        A("s_andn2_b32 s2, s2, 0x1c0"); A("s_or_b32 s2, s2, s3")
        if gen.STAMPS: A("s_mov_b32 s67, s2")
    if OPT["rm"]:
        A("s_lshr_b32 s3, s2, 4"); A("s_and_b32 s3, s3, 28"); A("s_lshr_b32 s3, 0x72546310, s3"); A("s_and_b32 s3, s3, 7"); A("s_lshl_b32 s3, s3, 6")
        A("s_andn2_b32 s2, s2, 0x1c0"); A("s_or_b32 s2, s2, s3")
        if gen.STAMPS: A("s_mov_b32 s67, s2")
    A("s_sub_u32 s3, s2, 192"); A("s_cmp_ge_u32 s3, 16"); A("s_cbranch_scc1 nocpf")
    A("s_getpc_b64 s[44:45]")
    A("s_and_b32 s3, s3, 8"); A("s_lshl_b32 s3, s3, 12")
    A("v_lshl_add_u32 v3, v0, 7, s3")
    A("s_and_b32 s44, s44, 0xffffff00")
    A("v_min_u32 v3, X_exit-KERNEL, v3")
    A("global_load_dword v128, v3, s[44:45]")
    A.label("nocpf")
    A("v_and_b32 v1, 63, v0")
    A("v_lshrrev_b32 v2, 6, v0")
    A("v_readfirstlane_b32 s40, v2")
    A("s_and_b32 s6, s2, 7"); A("s_lshr_b32 s7, s2, 3")
    A("s_cmp_lt_u32 s2, 256"); A("s_cbranch_scc1 notA")
    A("s_setprio 3")
    A("s_cmp_ge_u32 s2, " + str({0: 512, 1: 0}.get(OPT["noA"], 512))); A("s_cbranch_scc1 X_exit")
    if OPT["noA"] == 2: A("s_cmp_lt_u32 s2, 448"); A("s_cbranch_scc1 X_exit")
    if OPT['nq']:
        A("s_lshr_b32 s60, s40, 1"); A("s_add_u32 s60, s60, 1"); A("s_and_b32 s43, s40, 1")
        A("s_lshl_b32 s42, s2, 1"); A("s_add_u32 s42, s42, s43")
        A("s_xor_b32 s43, s2, 448"); A("s_lshl_b32 s43, s43, 2"); A("s_add_u32 s43, s43, s40")
        A("s_cmp_ge_u32 s2, 384"); A("s_cselect_b32 s60, 0, s60"); A("s_cselect_b32 s41, s43, s42")
    else:
        A("s_lshr_b32 s60, s40, 1"); A("s_add_u32 s60, s60, 1"); A("s_and_b32 s43, s40, 1")
        A("s_lshl_b32 s42, s2, 1"); A("s_sub_u32 s42, s42, 256"); A("s_add_u32 s42, s42, s43")
        A("s_lshl_b32 s43, s2, 2"); A(f"s_sub_u32 s43, s43, {4*448}"); A("s_add_u32 s43, s43, s40")
        A("s_cmp_ge_u32 s2, 448"); A("s_cselect_b32 s60, 0, s60"); A("s_cselect_b32 s41, s43, s42")
    A_head(A)
    A.label("notA")
    if OPT["onlyA4"]: A("s_endpgm")
    A("s_cmp_lt_u32 s2, 192"); A("s_cbranch_scc1 isG")
    A("s_setprio 2")
    A("s_sub_u32 s5, s2, 192")
    A("s_cmp_eq_u32 s40, 3"); A("s_cbranch_scc1 notG")
    T_head(A, 5)
    A.label("isG")
    if OPT["noQ"]: A("s_cmp_ge_u32 s2, 128"); A("s_cbranch_scc1 X_exit")
    A("s_cmp_ge_u32 s2, 128"); A("s_cselect_b32 s63, 1, 0")
    A("s_and_b32 s41, s7, 3"); A("s_and_b32 s3, s6, 3"); A("s_lshl_b32 s3, s3, 2"); A("s_add_u32 s3, s3, s41")
    A("s_lshr_b32 s42, s7, 2")
    A("s_lshr_b32 s43, s6, 2"); A("s_sub_u32 s44, 2, s63"); A("s_lshl_b32 s43, s43, s44")
    A("s_and_b32 s4, s42, 3"); A("s_add_u32 s4, s4, s43")
    if OPT["grp"]:
        R1 = OPT["r1"]; R2 = 10 - R1
        A("s_add_u32 s5, s42, s41"); A("s_and_b32 s41, s6, 3"); A("s_add_u32 s5, s5, s41")
        A("s_lshr_b32 s41, s6, 2"); A("s_lshl_b32 s41, s41, 1"); A("s_add_u32 s5, s5, s41")
        def rotm(R, base, dst):
            mul = -(-256 // R)
            assert all((e*mul >> 8) == e // R for e in range(14))
            A(f"s_mul_i32 s41, s5, {mul}"); A("s_lshr_b32 s41, s41, 8"); A(f"s_mul_i32 s41, s41, {R}"); A("s_sub_u32 s41, s5, s41")
            A("s_lshl_b32 s41, s41, 2")
            pat = sum((base + k % R) << (4*k) for k in range(2*R-1))
            A(f"s_mov_b32 s{dst}, {hex(pat & 0xffffffff)}"); A(f"s_mov_b32 s{dst+1}, {hex(pat >> 32)}")
            A(f"s_lshr_b64 s[{dst}:{dst+1}], s[{dst}:{dst+1}], s41"); A(f"s_and_b32 s{dst}, s{dst}, {hex((1 << 4*R) - 1)}")
        if OPT["g3"]:
            rotm(3, 2, 64)
            A("s_lshl_b32 s64, s64, 8"); A("s_bitcmp1_b32 s5, 0"); A("s_cselect_b32 s41, 1, 16"); A("s_or_b32 s64, s64, s41")
        else: rotm(R1, 0, 64)
        if OPT["rev"]:
            A("s_and_b32 s41, s7, 3"); A("s_sub_u32 s5, s5, s41"); A(f"s_add_u32 s41, s41, {OPT['rev']}"); A("s_and_b32 s41, s41, 3"); A("s_add_u32 s5, s5, s41")
            rotm(R2, R1, 60)
        elif R1 == 5: A("s_add_u32 s60, s64, 0x55555")
        else: rotm(R2, R1, 60)
        A(f"s_lshr_b32 s65, s60, {32 - 4*R1}"); A(f"s_lshl_b32 s60, s60, {4*R1}"); A("s_or_b32 s64, s64, s60")
    else:
        A("s_mul_i32 s41, s41, 5"); A("s_add_u32 s41, s41, 1"); A("s_lshr_b32 s41, s41, 1")
        A("s_lshl_b32 s5, s42, 1"); A("s_add_u32 s5, s5, s41")
        A("s_and_b32 s41, s6, 3"); A("s_add_u32 s5, s5, s41"); A("s_lshr_b32 s41, s6, 2"); A("s_add_u32 s5, s5, s41")
        A("s_cmp_ge_u32 s5, 20"); A("s_cselect_b32 s41, 10, 0"); A("s_sub_u32 s5, s5, s41")
        A("s_cmp_ge_u32 s5, 10"); A("s_cselect_b32 s41, 10, 0"); A("s_sub_u32 s5, s5, s41")
        A("s_lshl_b32 s5, s5, 2")
        A("s_mov_b32 s64, 0x76543210"); A("s_mov_b32 s65, 0x98")
        A("s_sub_u32 s41, 40, s5"); A("s_lshl_b64 s[60:61], s[64:65], s41"); A("s_lshr_b64 s[64:65], s[64:65], s5"); A("s_or_b64 s[64:65], s[64:65], s[60:61]")
    A("s_setprio 2")
    G_start(A, 3, 4, 63, 5)
    A("s_cmp_eq_u32 s63, 1"); A("s_cbranch_scc1 Q_comp")
    G_compute(A, False, 3, 4, 5, "KV")
    A.label("Q_comp")
    G_compute(A, True, 3, 4, 5, "Q")
    A.label("notG")
    if OPT["noT"]: A("s_branch X_exit")
    T_role(A, 5)
    A("s_cmp_ge_u32 s2, 224"); A("s_cbranch_scc1 T_exit")
    A("s_sub_u32 s24, s2, 64"); A("s_mov_b32 s25, 0")
    A.label("F_redo")
    A("s_mov_b32 s10, 0"); A("v_mov_b32 v63, 0")
    F_pre(A, 24)
    for g in wo_dma(0) + wo_dma(1) + wo_dma(2) + wo_dma(3):
        for l in g: A(l)
    A("s_waitcnt vmcnt(5)"); A("s_barrier")
    for j in range(3):
        for l in wo_read(j, [234, 235, 236, 237]): A(l)
    A("s_waitcnt lgkmcnt(0)"); A("s_barrier")
    A.label("F_entry")
    F_role(A)
    A.label("T_exit")
    A("s_sub_u32 s41, s7, 28"); A("s_mul_i32 s41, s41, 160")
    A("v_lshrrev_b32 v2, 1, v0"); A("v_and_b32 v3, 1, v0"); A("v_add_u32 v2, s41, v2")
    A("v_mul_u32_u24 v2, 1280, v2"); A("v_lshl_add_u32 v2, v3, 7, v2")
    A(f"global_load_dword v4, v2, {s(S_WO,2)}")
    A(f"v_add_u32 v2, {32*1280}, v2")
    A("s_cmp_lt_u32 s40, 3"); A("s_cbranch_scc1 T_exit2")
    A(f"global_load_dword v5, v2, {s(S_WO,2)}")
    A.label("T_exit2")
    endpgm(A)
    A_chan(A)
    A.label("X_exit"); A("s_endpgm")
    kn = NAME + "_kernel"
    if OPT["nopk"]:
        if OPT["scalar"]: A.lines = unpack(A.lines)
        else:
            p0 = A.lines.index("A_pass:"); p1 = A.lines.index("s_cbranch_scc1 A_pass")
            A.lines = unpack(A.lines[:p0]) + A.lines[p0:p1] + unpack(A.lines[p1:])
    A.lines = [l.replace("CODE_END_OFF", f"X_exit-{kn}").replace("KERNEL", kn) for l in A.lines]
    emit([kernel_text(kn, A, 256)], [(kn, 448 if OPT['nq'] else 512, 256, LDS)], path)

if __name__ == "__main__":
    for a in sys.argv[1:]:
        k, val = a.split("="); OPT[k] = int(val)
    build("u.s"); gen.STAMPS = True; build("us.s")
```
